```python
import torch

def _softmax(x, axis=-1):
    return torch.softmax(x, dim=axis)
def _gelu(x):
    return torch.nn.functional.gelu(x, approximate="tanh")
def _silu(x):
    return torch.nn.functional.silu(x)
def _sigmoid(x):
    return torch.sigmoid(x)
def _layernorm(x, axis=-1, eps=1e-5):
    m = x.mean(dim=axis, keepdim=True)
    v = x.var(dim=axis, keepdim=True, unbiased=False)
    return (x - m) / torch.sqrt(v + eps)
def _scatter_add(tgt, idx, src, axis=0):
    return tgt.clone().index_add_(axis, idx, src)
def _segment_sum(src, seg, n):
    out = torch.zeros((n,) + src.shape[1:], dtype=src.dtype)
    return out.index_add_(0, seg, src)
def _pad(x, pw):
    flat = tuple(v for pair in reversed(pw) for v in pair)
    return torch.nn.functional.pad(x, flat)

kernel_name = 'gated_mix__sliding_block_cached__gqa_block_cached__decode'

def setup_inputs():

    _w = (lambda a: (lambda t: t.to(torch.bfloat16) if t.is_floating_point() else t)(torch.as_tensor(a)))
    def _A_setup():
        B, Sq, D = 2, 1, 512
        Hq, Hkv, Sk, Dh = 32, 8, 32768, 128
        assert Hq % Hkv == 0, (Hq, Hkv)
        return {
            "x": _w((lambda *s: torch.randn(*s, dtype=torch.bfloat16) * 0.05)(B, Sq, D)),
            "k_cache": _w((lambda *s: torch.randn(*s, dtype=torch.bfloat16) * 6.4)(B, Hkv, Sk, Dh)),
            "v_cache": _w((lambda *s: torch.randn(*s, dtype=torch.bfloat16) * 0.05)(B, Hkv, Sk, Dh)),
            "wq": _w((lambda *s: torch.randn(*s, dtype=torch.bfloat16) * 6.4)(D, Hq * Dh) * (D ** -0.5)),
            "wo": _w((lambda *s: torch.randn(*s, dtype=torch.bfloat16) * 0.05)(Hq * Dh, D) * ((Hq * Dh) ** -0.5)),
        }
    _A_in = _A_setup()

    def _B_setup():
        B, Sq, D = 2, 1, 512
        Hq, Hkv, Sk, Dh = 32, 8, 32768, 128
        assert Hq % Hkv == 0, (Hq, Hkv)
        return {
            "x": _w((lambda *s: torch.randn(*s, dtype=torch.bfloat16) * 0.05)(B, Sq, D)),
            "k_cache": _w((lambda *s: torch.randn(*s, dtype=torch.bfloat16) * 6.4)(B, Hkv, Sk, Dh)),
            "v_cache": _w((lambda *s: torch.randn(*s, dtype=torch.bfloat16) * 0.05)(B, Hkv, Sk, Dh)),
            "wq": _w((lambda *s: torch.randn(*s, dtype=torch.bfloat16) * 6.4)(D, Hq * Dh) * (D ** -0.5)),
            "wo": _w((lambda *s: torch.randn(*s, dtype=torch.bfloat16) * 0.05)(Hq * Dh, D) * ((Hq * Dh) ** -0.5)),
        }
    _B_in = _B_setup()

    return {
        "A_x": _A_in["x"],
        "A_k_cache": _A_in["k_cache"],
        "A_v_cache": _A_in["v_cache"],
        "A_wq": _A_in["wq"],
        "A_wo": _A_in["wo"],
        "B_x": _B_in["x"],
        "B_k_cache": _B_in["k_cache"],
        "B_v_cache": _B_in["v_cache"],
        "B_wq": _B_in["wq"],
        "B_wo": _B_in["wo"],
        "gate_w": _w((lambda *s: torch.randn(*s, dtype=torch.bfloat16) * 0.05)(512) * 16.0),
    }

def reference(A_x, A_k_cache, A_v_cache, A_wq, A_wo, B_x, B_k_cache, B_v_cache, B_wq, B_wo, gate_w):
    def _A_ref(x, k_cache, v_cache, wq, wo):
        B, Sq, D = x.shape
        Hq, Dh = 32, 128
        Hkv, Sk = k_cache.shape[1], k_cache.shape[2]
        W = min(4096, max(256, Sk // 4))
        rep = Hq // Hkv
        q = (lambda x, *d: x.permute(*d))((x @ wq).reshape(B, Sq, Hq, Dh), 0, 2, 1, 3)
        k = (lambda x, n, axis: torch.repeat_interleave(x, n, dim=axis))(k_cache[:, :, Sk - W:, :], rep, axis=1)
        v = (lambda x, n, axis: torch.repeat_interleave(x, n, dim=axis))(v_cache[:, :, Sk - W:, :], rep, axis=1)
        scores = torch.einsum("bhqd,bhkd->bhqk", q, k) * (Dh ** -0.5)
        p = _softmax(scores, axis=-1)
        o = torch.einsum("bhqk,bhkd->bhqd", p, v)
        return (lambda x, *d: x.permute(*d))(o, 0, 2, 1, 3).reshape(B, Sq, Hq * Dh) @ wo

    def _B_ref(x, k_cache, v_cache, wq, wo):
        B, Sq, D = x.shape
        Hq, Dh = 32, 128
        Hkv = k_cache.shape[1]
        rep = Hq // Hkv
        q = (lambda x, *d: x.permute(*d))((x @ wq).reshape(B, Sq, Hq, Dh), 0, 2, 1, 3)
        k = (lambda x, n, axis: torch.repeat_interleave(x, n, dim=axis))(k_cache, rep, axis=1)
        v = (lambda x, n, axis: torch.repeat_interleave(x, n, dim=axis))(v_cache, rep, axis=1)
        scores = torch.einsum("bhqd,bhkd->bhqk", q, k) * (Dh ** -0.5)
        p = _softmax(scores, axis=-1)
        o = torch.einsum("bhqk,bhkd->bhqd", p, v)
        return (lambda x, *d: x.permute(*d))(o, 0, 2, 1, 3).reshape(B, Sq, Hq * Dh) @ wo

    x = A_x
    g = _sigmoid((x * gate_w).sum(-1, keepdims=True))
    a = _A_ref(x, A_k_cache, A_v_cache, A_wq, A_wo)
    b = _B_ref(x, B_k_cache, B_v_cache, B_wq, B_wo)
    return g * a + (1 - g) * b
```

```python
import sys, struct, argparse

NAME = "gated_mix__sliding_block_cached__gqa_block_cached__decode_kernel"

HDR = """; Kernarg layout for this problem (112 bytes, ptrs only, base s[0:1]):
"""

def f2u(x):
    return struct.unpack("<I", struct.pack("<f", x))[0]

WS_EPOCH = 0
WS_CNT = 4096
WS_Q = 0x10000
WS_PML = 0x20000
WS_PO = 0x100000
WS_C = 0x200000
WS_TS = 0x300000
WS_SIZE = 0x400000

L_O = 0
L_ML = 32768
L_Q = 33280
L_OF = 35328
L_R = 35584
L_G = 36608
LDS_BYTES = 36864

class Gen:
    def __init__(self, D=4, NS=12, dyn=True, P1=18, F0=4, ts=False, kvpol="nt", wqpol="nt", wopol="nt",
                 name=NAME, spin=1 << 20):
        self.L = []
        self.D, self.NS, self.dyn, self.P1, self.F0, self.ts = D, NS, dyn, P1, F0, ts
        self.kvpol, self.wqpol, self.wopol = kvpol, wqpol, wopol
        self.name = name
        self.spin = spin
        self.uid = 0
        self.nts = 0

    def A(self, s):
        for line in s.split("\n"):
            self.L.append("    " + line.strip() if not line.strip().endswith(":") else line.strip())

    def lab(self, base):
        self.uid += 1
        return f"L{base}_{self.uid}"

    def TS(self, k):
        if not self.ts:
            return
        A = self.A
        A("s_memrealtime s[96:97]")
        A("s_waitcnt lgkmcnt(0)")
        A(f"v_writelane_b32 v59, s96, {k}")

    def gen(self):
        A = self.A
        D, NS, P1, F0 = self.D, self.NS, self.P1, self.F0
        name = self.name
        sKA, sVA, sKB, sVB, sWQ, sWO, sWS, sX, sOUT = 8, 12, 16, 20, 24, 28, 32, 36, 40
        sW, sBH, sS, sB, sH = 44, 45, 46, 47, 76
        sC, sJ, sLast, sStat, sOff, sTk, sT, sSpin = 77, 78, 79, 80, 81, 82, 83, 84
        sT0, sT1, sT2, sT3 = 85, 86, 87, 88
        sSelx, sSely, sMaskHi = 89, 90, 91
        sIdx = 92
        sAoff = 93
        vKoff, vVoff, vLane = 1, 2, 3
        vQ, vQB, vO1, vO2 = 4, 8, 12, 16
        vM, vL, vMC, vmX, vmY, vA, vB, vAl = 20, 21, 22, 23, 24, 25, 26, 27
        vD, vt, vXY = 28, 44, 48
        vTk, vOne, vT = 56, 57, 58
        vCnt = 60
        vtb = 61
        RING, vWO = 64, 192

        def srd(s):
            return f"s[{s}:{s+3}]"

        def vr(r, n):
            return f"v[{r}:{r+n-1}]"

        def slotK(p, b):
            return RING + (p * 8 + b) * 4

        def slotV(p, b):
            return RING + (p * 8 + 4 + b) * 4

        self.L.append(f"{name}:")
        A("s_cmp_ge_u32 s2, 256")
        A("s_cbranch_scc1 L_end")
        A("s_load_dwordx16 s[48:63], s[0:1], 0")
        A("s_load_dwordx8 s[64:71], s[0:1], 64")
        A("s_load_dwordx4 s[72:75], s[0:1], 96")
        if self.ts:
            A("v_mov_b32 v59, 0")
            A("s_memrealtime s[96:97]")
        A(f"v_lshrrev_b32 v{vA}, 6, v0")
        A(f"v_and_b32 v{vLane}, 63, v0")
        A(f"s_lshr_b32 s{sBH}, s2, 4")
        A(f"v_readfirstlane_b32 s{sW}, v{vA}")
        A(f"s_and_b32 s{sS}, s2, 15")
        A(f"s_lshr_b32 s{sB}, s{sBH}, 3")
        A(f"s_and_b32 s{sH}, s{sBH}, 7")
        A(f"v_lshrrev_b32 v{vA}, 2, v{vLane}")
        A(f"v_lshlrev_b32 v{vB}, 15, v{vA}")
        A(f"v_and_b32 v{vAl}, 3, v{vLane}")
        A(f"v_lshl_add_u32 v{vB}, v{vAl}, 4, v{vB}")
        A(f"v_lshlrev_b32 v{vA}, 3, v{vA}")
        A(f"s_and_b32 s{sT0}, s{sS}, 7")
        A(f"s_lshl_b32 s{sT0}, s{sT0}, 7")
        A(f"s_lshr_b32 s{sT1}, s{sS}, 3")
        A(f"s_lshl_b32 s{sT1}, s{sT1}, 6")
        A(f"s_add_u32 s{sT0}, s{sT0}, s{sT1}")
        A(f"s_lshl_b32 s{sT1}, s{sH}, 10")
        A(f"s_add_u32 s{sT1}, s{sT1}, s{sT0}")
        A(f"s_lshl_b32 s{sT2}, s{sW}, 19")
        A(f"s_add_u32 s{sT1}, s{sT1}, s{sT2}")
        A(f"s_lshl_b32 s{sT2}, s{sW}, 7")
        A(f"v_lshlrev_b32 v{vVoff}, 4, v{vLane}")
        A(f"s_cmp_eq_u32 s{sB}, 0")
        A("s_waitcnt lgkmcnt(0)")
        if self.ts:
            A("v_writelane_b32 v59, s96, 0")
        A(f"s_cselect_b32 s{sWQ}, s54, s64")
        A(f"s_cselect_b32 s{sWQ+1}, s55, s65")
        A(f"s_cselect_b32 s{sWO}, s56, s66")
        A(f"s_cselect_b32 s{sWO+1}, s57, s67")
        A(f"s_mov_b32 s{sWQ+2}, 0x400000")
        A(f"s_mov_b32 s{sWQ+3}, 0x20000")
        A(f"s_mov_b32 s{sX}, s48")
        A(f"s_mov_b32 s{sX+1}, s49")
        A(f"s_mov_b32 s{sX+2}, 2048")
        A(f"s_mov_b32 s{sX+3}, 0x20000")
        A(f"s_mov_b32 s{sWS}, s74")
        A(f"s_mov_b32 s{sWS+1}, s75")
        A(f"s_mov_b32 s{sWS+2}, {WS_SIZE}")
        A(f"s_mov_b32 s{sWS+3}, 0x20000")
        A(f"s_load_dword s{sT}, s[74:75], {WS_EPOCH}")
        A(f"s_lshl_b32 s{sT3}, s{sBH}, 3")
        A(f"s_add_u32 s{sT3}, s{sT3}, s{sW}")
        A(f"s_lshl_b32 s{sT3}, s{sT3}, 8")
        A(f"s_add_u32 s{sT3}, s{sT3}, {WS_CNT}")
        A(f"v_mov_b32 v{vCnt}, s{sT3}")
        if self.dyn:
            l = self.lab("noinit")
            A(f"s_cmp_lg_u32 s{sS}, 0")
            A(f"s_cbranch_scc1 {l}")
            A(f"v_mov_b32 v{vOne}, 0")
            A("s_mov_b64 exec, 1")
            A(f"buffer_store_dword v{vOne}, v{vCnt}, {srd(sWS)}, 0 offen sc1")
            A("s_mov_b64 exec, -1")
            A(f"{l}:")
        vXd, vWd = 208, 192
        A(f"buffer_load_dwordx2 {vr(vXd,2)}, v{vA}, {srd(sX)}, s{sT2} offen")
        A(f"buffer_load_dwordx2 {vr(vXd+2,2)}, v{vA}, {srd(sX)}, s{sT2} offen offset:1024")
        for i in range(4):
            A(f"buffer_load_dwordx4 {vr(vWd+4*i,4)}, v{vB}, {srd(sWQ)}, s{sT1} offen {self.wqpol}")
            if i < 3:
                A(f"s_add_u32 s{sT1}, s{sT1}, 8192")
        A(f"s_lshl_b32 s{sT1}, s{sBH}, 23")
        A(f"s_lshl_b32 s{sT2}, s{sS}, 16")
        A(f"s_add_u32 s{sT2}, s{sT2}, {(32768-4096)*256}")
        A(f"s_add_u32 s{sT2}, s{sT2}, s{sT1}")
        for (d, src, off, n) in ((sKA, 50, sT2, 65536), (sVA, 52, sT2, 65536), (sKB, 60, sT1, 0x800000), (sVB, 62, sT1, 0x800000)):
            A(f"s_add_u32 s{d}, s{src}, s{off}")
            A(f"s_addc_u32 s{d+1}, s{src+1}, 0")
            A(f"s_mov_b32 s{d+2}, {n}")
            A(f"s_mov_b32 s{d+3}, 0x20000")
        A(f"v_lshrrev_b32 v{vKoff}, 4, v{vLane}")
        A(f"v_lshlrev_b32 v{vKoff}, 6, v{vKoff}")
        A(f"v_lshl_add_u32 v{vKoff}, v{vAl}, 4, v{vKoff}")
        A(f"v_bfe_u32 v{vA}, v{vLane}, 2, 2")
        A(f"v_lshl_add_u32 v{vKoff}, v{vA}, 8, v{vKoff}")
        A(f"s_lshl_b32 s{sAoff}, s{sW}, 12")
        A(f"s_mul_i32 s{sStat}, s{sS}, {8*NS*4096}")
        A(f"s_add_u32 s{sStat}, s{sStat}, s{sAoff}")

        fill = []
        for t in range(4):
            for kv in range(2):
                for b in range(4):
                    fill.append((t, kv, b))
        self.fill_pos = 0

        def issue_fill(paced):
            t, kv, b = fill[self.fill_pos]
            if paced:
                A(f"s_waitcnt vmcnt({D-1})")
            if kv == 0 and b == 0:
                if t == 0:
                    A(f"s_mov_b32 s{sOff}, s{sAoff}")
                elif t == 1:
                    A(f"s_add_u32 s{sOff}, s{sAoff}, 32768")
                else:
                    A(f"s_mov_b32 s{sOff}, s{sStat}")
                    A(f"s_add_u32 s{sStat}, s{sStat}, 32768")
            sr = (sKA, sVA)[kv] if t < 2 else (sKB, sVB)[kv]
            r = slotK(t, b) if kv == 0 else slotV(t, b)
            vo = vKoff if kv == 0 else vVoff
            A(f"buffer_load_dwordx4 {vr(r,4)}, v{vo}, {srd(sr)}, s{sOff} offen offset:{b*1024} {self.kvpol}")
            self.fill_pos += 1

        for _ in range(F0):
            issue_fill(False)
        l = self.lab("nopf")
        A(f"s_cmp_lg_u32 s{sW}, 7")
        A(f"s_cbranch_scc1 {l}")
        A("s_getpc_b64 s[94:95]")
        A("L_pc:")
        A(f"v_lshlrev_b32 v{vA}, 7, v{vLane}")
        A(f"v_min_u32 v{vA}, L_end-L_pc, v{vA}")
        A(f"global_load_dword v{vtb}, v{vA}, s[94:95]")
        A(f"{l}:")
        A(f"s_mov_b32 s{sC}, {f2u(128 ** -0.5 * 1.4426950408889634):#x}")
        A(f"s_mov_b32 s{sWO+2}, 0x400000")
        A(f"s_mov_b32 s{sWO+3}, 0x20000")
        A(f"s_mov_b32 s{sOUT}, s70")
        A(f"s_mov_b32 s{sOUT+1}, s71")
        A(f"s_mov_b32 s{sOUT+2}, 2048")
        A(f"s_mov_b32 s{sOUT+3}, 0x20000")
        A(f"s_mov_b32 s{sSelx}, 0x0c0c0400")
        A(f"s_mov_b32 s{sSely}, 0x04000c0c")
        A(f"s_mov_b32 s{sMaskHi}, 0xffffff00")
        A(f"s_mov_b32 s{sJ}, 0")
        A(f"s_mov_b32 s{sLast}, 0x7fffffff")
        A(f"s_mov_b32 s{sSpin}, {self.spin}")
        A(f"v_and_b32 v{vA}, 1, v{vLane}")
        A(f"v_lshlrev_b32 v{vA}, 4, v{vA}")
        A(f"v_mov_b32 v{vmX}, 0xffff")
        A(f"v_lshlrev_b32 v{vmX}, v{vA}, v{vmX}")
        A(f"v_and_b32 v{vA}, 2, v{vLane}")
        A(f"v_cmp_eq_u32 vcc, 0, v{vA}")
        A(f"v_mov_b32 v{vOne}, 1")
        A(f"v_mov_b32 v{vL}, 0")
        A(f"v_cndmask_b32 v{vmY}, v{vmX}, 0, vcc")
        A(f"v_cndmask_b32 v{vmX}, 0, v{vmX}, vcc")
        A(f"v_mov_b32 v{vM}, 0xff7fffff")
        A(f"v_mov_b32 v{vMC}, 0xff7fffff")
        for i in range(8):
            A(f"v_mov_b32 v{vO1+i}, 0")
        A("s_waitcnt lgkmcnt(0)")
        A(f"s_mul_i32 s{sT}, s{sT}, 0x9e3779b1")
        A(f"s_add_u32 s{sT}, s{sT}, 0x7f4a7c15")
        A(f"v_mov_b32 v{vT}, s{sT}")
        A(f"s_waitcnt vmcnt({F0})")
        self.TS(1)
        acc = vD
        xs = vt
        tw = 52
        for b in range(2):
            for j in range(2):
                A(f"v_lshlrev_b32 v{xs+b*4+2*j}, 16, v{vXd+2*b+j}")
                A(f"v_and_b32 v{xs+b*4+2*j+1}, 0xffff0000, v{vXd+2*b+j}")
        for i in range(4):
            for j in range(4):
                w = vWd + 4 * i + j
                lo, hi = tw + (j & 1) * 2, tw + (j & 1) * 2 + 1
                A(f"v_lshlrev_b32 v{lo}, 16, v{w}")
                A(f"v_and_b32 v{hi}, 0xffff0000, v{w}")
                for b in range(2):
                    op = "v_mul_f32" if i == 0 else "v_fmac_f32"
                    A(f"{op} v{acc+8*b+2*j}, v{lo}, v{xs+4*b+i}")
                    A(f"{op} v{acc+8*b+2*j+1}, v{hi}, v{xs+4*b+i}")
            issue_fill(False)
        A("s_nop 1")
        for i in range(8):
            A(f"v_permlane32_swap_b32 v{acc+i}, v{acc+i+8}")
        for i in range(8):
            A(f"v_add_f32 v{acc+i}, v{acc+i}, v{acc+i+8}")
        A("s_nop 1")
        for i in range(4):
            A(f"v_permlane16_swap_b32 v{acc+i}, v{acc+i+4}")
        for i in range(4):
            A(f"v_add_f32 v{acc+i}, v{acc+i}, v{acc+i+4}")
        A("s_nop 1")
        for i in range(4):
            A(f"v_add_f32_dpp v{acc+i}, v{acc+i}, v{acc+i} row_ror:8 row_mask:0xf bank_mask:0xf")
        A("s_nop 1")
        for i in range(4):
            A(f"v_add_f32_dpp v{acc+i}, v{acc+i}, v{acc+i} row_ror:4 row_mask:0xf bank_mask:0xf")
        A(f"v_lshrrev_b32 v{vA}, 5, v{vLane}")
        A(f"v_lshlrev_b32 v{vA}, 7, v{vA}")
        A(f"v_and_b32 v{vB}, 3, v{vLane}")
        A(f"v_lshl_add_u32 v{vA}, v{vB}, 5, v{vA}")
        A(f"v_and_b32 v{vB}, 16, v{vLane}")
        A(f"v_add_u32 v{vA}, v{vA}, v{vB}")
        A(f"s_lshl_b32 s{sT1}, s{sW}, 8")
        A(f"v_add_u32 v{vA}, s{sT1}, v{vA}")
        A("s_mov_b32 exec_lo, 0x000f000f")
        A("s_mov_b32 exec_hi, 0x000f000f")
        A(f"ds_write_b128 v{vA}, {vr(acc,4)} offset:{L_Q}")
        A("s_mov_b64 exec, -1")
        A("s_waitcnt lgkmcnt(0)")
        A("s_barrier")
        l = self.lab("nosvc")
        A(f"s_and_b32 s{sT1}, s{sS}, 7")
        A(f"s_cmp_lg_u32 s{sT1}, s{sW}")
        A(f"s_cbranch_scc1 {l}")
        A(f"v_lshlrev_b32 v{vA}, 2, v{vLane}")
        for w in range(8):
            A(f"ds_read_b32 v{acc+w}, v{vA} offset:{L_Q+w*256}")
        A(f"s_lshl_b32 s{sT1}, s{sB}, 4")
        A(f"s_add_u32 s{sT1}, s{sT1}, s{sH}")
        A(f"s_lshl_b32 s{sT1}, s{sT1}, 11")
        A(f"s_lshl_b32 s{sT2}, s{sT0}, 1")
        A(f"s_add_u32 s{sT1}, s{sT1}, s{sT2}")
        A(f"s_add_u32 s{sT1}, s{sT1}, {WS_Q}")
        A(f"v_lshrrev_b32 v{vB}, 5, v{vLane}")
        A(f"v_lshlrev_b32 v{vB}, 14, v{vB}")
        A(f"v_and_b32 v{vA}, 31, v{vLane}")
        A(f"v_lshl_add_u32 v{vB}, v{vA}, 2, v{vB}")
        A("s_waitcnt lgkmcnt(0)")
        A(f"v_add_f32 v{acc}, v{acc}, v{acc+1}")
        A(f"v_add_f32 v{acc+2}, v{acc+2}, v{acc+3}")
        A(f"v_add_f32 v{acc+4}, v{acc+4}, v{acc+5}")
        A(f"v_add_f32 v{acc+6}, v{acc+6}, v{acc+7}")
        A(f"v_add_f32 v{acc}, v{acc}, v{acc+2}")
        A(f"v_add_f32 v{acc+4}, v{acc+4}, v{acc+6}")
        A(f"v_add_f32 v{acc}, v{acc}, v{acc+4}")
        A(f"v_mov_b32 v{acc+9}, v{vT}")
        A(f"v_mov_b32 v{acc+11}, v{vT}")
        A(f"v_mov_b32_dpp v{acc+1}, v{acc} quad_perm:[1,1,3,3] row_mask:0xf bank_mask:0xf")
        A("s_nop 0")
        A(f"v_cvt_pk_bf16_f32 v{acc+8}, v{acc}, v{acc+1}")
        A("s_nop 1")
        A(f"v_mov_b32_dpp v{acc+10}, v{acc+8} quad_perm:[2,2,2,2] row_mask:0xf bank_mask:0xf")
        A("s_mov_b32 exec_lo, 0x11111111")
        A("s_mov_b32 exec_hi, 0x11111111")
        A(f"buffer_store_dwordx4 {vr(acc+8,4)}, v{vB}, {srd(sWS)}, s{sT1} offen sc1")
        A("s_mov_b64 exec, -1")
        self.TS(2)
        A(f"{l}:")
        vQg = 208
        vQoff = vtb + 1
        A(f"v_lshlrev_b32 v{vQoff}, 1, v{vKoff}")
        A(f"s_lshl_b32 s{sT1}, s{sBH}, 11")
        A(f"s_add_u32 s{sT1}, s{sT1}, {WS_Q}")
        A(f"s_add_u32 s{sT2}, s{sT1}, 32768")

        def q_loads():
            A(f"buffer_load_dwordx4 {vr(vQg,4)}, v{vQoff}, {srd(sWS)}, s{sT1} offen sc1")
            A(f"buffer_load_dwordx4 {vr(vQg+4,4)}, v{vQoff}, {srd(sWS)}, s{sT1} offen offset:16 sc1")
            A(f"buffer_load_dwordx4 {vr(vQg+8,4)}, v{vQoff}, {srd(sWS)}, s{sT2} offen sc1")
            A(f"buffer_load_dwordx4 {vr(vQg+12,4)}, v{vQoff}, {srd(sWS)}, s{sT2} offen offset:16 sc1")

        while self.fill_pos < 32:
            if self.fill_pos == P1:
                q_loads()
            issue_fill(True)
        assert 32 - P1 >= D
        self.TS(3)
        lchk, lok = self.lab("qchk"), self.lab("qok")
        A(f"{lchk}:")
        A(f"v_xor_b32 v{vA}, v{vQg+1}, v{vT}")
        for i in range(1, 8):
            A(f"v_xor_b32 v{vB}, v{vQg+2*i+1}, v{vT}")
            A(f"v_or_b32 v{vA}, v{vA}, v{vB}")
        A(f"v_cmp_ne_u32 vcc, 0, v{vA}")
        A(f"s_cbranch_vccz {lok}")
        A(f"s_sub_u32 s{sSpin}, s{sSpin}, 1")
        A("s_cbranch_scc1 L_end")
        q_loads()
        A("s_waitcnt vmcnt(0)")
        A(f"s_branch {lchk}")
        A(f"{lok}:")
        for i in range(4):
            A(f"v_mov_b32 v{vQ+i}, v{vQg+2*i}")
        for i in range(4):
            A(f"v_mov_b32 v{vQB+i}, v{vQg+8+2*i}")
        A("s_mov_b64 vcc, 0")
        self.TS(4)

        DYN = 16 * (16 - NS)
        DYNBASE = 128 * NS * 4096
        A(".p2align 6")
        A("L_loop:")
        for p in range(4):
            lskip, ldyn, lreq, lnw = self.lab("skip"), self.lab("dyn"), self.lab("req"), self.lab("nw")
            A(f"s_cmp_gt_u32 s{sJ}, s{sLast}")
            A("s_cbranch_scc1 L_exit")
            A(f"s_cbranch_vccz {lnw}")
            A(f"s_cmp_lg_u32 s{sJ}, s{sLast}")
            A(f"s_cbranch_scc1 {lskip}")
            A("s_waitcnt vmcnt(0)")
            A(f"s_branch {lskip}")
            A(f"{lnw}:")
            A(f"s_cmp_lt_u32 s{sJ}, {NS-2}")
            A(f"s_cbranch_scc0 {ldyn}")
            A(f"s_mov_b32 s{sOff}, s{sStat}")
            A(f"s_add_u32 s{sStat}, s{sStat}, 32768")
            if self.dyn:
                A(f"s_cmp_lt_u32 s{sJ}, {NS-3}")
                A(f"s_cbranch_scc1 {lskip}")
                A(f"s_branch {lreq}")
            else:
                A(f"s_branch {lskip}")
            A(f"{ldyn}:")
            if self.dyn:
                A(f"v_readfirstlane_b32 s{sTk}, v{vTk}")
                A("s_nop 3")
                A(f"s_lshl_b32 s{sOff}, s{sTk}, 15")
                A(f"s_add_u32 s{sOff}, s{sOff}, s{sAoff}")
                A(f"s_add_u32 s{sOff}, s{sOff}, {DYNBASE}")
                A(f"s_cmp_lt_u32 s{sTk}, {DYN}")
                A(f"s_cbranch_scc1 {lreq}")
            A(f"s_add_u32 s{sLast}, s{sJ}, 3")
            A("s_mov_b64 vcc, -1")
            if self.dyn:
                A(f"s_branch {lskip}")
                A(f"{lreq}:")
                A(f"v_mov_b32 v{vTk}, 1")
                A("s_mov_b64 exec, 1")
                A(f"buffer_atomic_add v{vTk}, v{vCnt}, {srd(sWS)}, 0 offen sc0 sc1")
                A("s_mov_b64 exec, -1")
            A(f"{lskip}:")

            def IP(kv, b):
                l = self.lab("ip")
                A(f"s_cbranch_vccnz {l}")
                A(f"s_waitcnt vmcnt({D-1})")
                r = slotK(p, b) if kv == 0 else slotV(p, b)
                A(f"buffer_load_dwordx4 {vr(r,4)}, v{(vKoff, vVoff)[kv]}, {srd((sKB, sVB)[kv])}, s{sOff} offen offset:{b*1024} {self.kvpol}")
                A(f"{l}:")

            for b in range(4):
                A(f"v_mfma_f32_16x16x32_bf16 {vr(vD+4*b,4)}, {vr(slotK(p,b),4)}, {vr(vQ,4)}, 0")
            IP(0, 0)
            A("s_nop 3")
            for b in range(4):
                d = vD + 4 * b
                A(f"v_mov_b32_dpp v{vt+b}, v{d} quad_perm:[0,0,0,0] row_mask:0xf bank_mask:0xf")
                for q in range(1, 4):
                    A(f"v_add_f32_dpp v{vt+b}, v{d+q}, v{vt+b} quad_perm:[{q},{q},{q},{q}] row_mask:0xf bank_mask:0xf")
            IP(0, 1)
            A(f"v_max3_f32 v{vA}, v{vt}, v{vt+1}, v{vt+2}")
            A(f"v_max3_f32 v{vA}, v{vA}, v{vt+3}, v{vM}")
            A(f"v_mov_b32 v{vB}, v{vA}")
            A("s_nop 1")
            A(f"v_permlane16_swap_b32 v{vA}, v{vB}")
            A(f"v_max_f32 v{vA}, v{vA}, v{vB}")
            A(f"v_mov_b32 v{vB}, v{vA}")
            A("s_nop 1")
            A(f"v_permlane32_swap_b32 v{vA}, v{vB}")
            A(f"v_max_f32 v{vM}, v{vA}, v{vB}")
            IP(0, 2)
            A(f"v_mul_f32 v{vA}, s{sC}, v{vM}")
            A(f"v_sub_f32 v{vAl}, v{vMC}, v{vA}")
            A(f"v_mov_b32 v{vMC}, v{vA}")
            A(f"v_exp_f32 v{vAl}, v{vAl}")
            for b in range(4):
                A(f"v_fma_f32 v{vt+b}, v{vt+b}, s{sC}, -v{vA}")
            for b in range(4):
                A(f"v_exp_f32 v{vt+b}, v{vt+b}")
            IP(0, 3)
            for i in range(8):
                A(f"v_mul_f32 v{vO1+i}, v{vO1+i}, v{vAl}")
            for b in range(4):
                A(f"v_cvt_pk_bf16_f32 v{vD+b}, v{vt+b}, v{vt+b}")
            A(f"v_fma_f32 v{vL}, v{vL}, v{vAl}, v{vt}")
            A(f"v_add_f32 v{vA}, v{vt+1}, v{vt+2}")
            for b in range(4):
                A(f"v_and_b32 v{vXY+2*b}, v{vD+b}, v{vmX}")
                A(f"v_and_b32 v{vXY+2*b+1}, v{vD+b}, v{vmY}")
            A(f"v_add_f32 v{vL}, v{vL}, v{vt+3}")
            A(f"v_add_f32 v{vL}, v{vL}, v{vA}")
            for b in range(4):
                r = slotV(p, b)
                A(f"v_mfma_f32_16x16x16_bf16 {vr(vO1,4)}, {vr(r,2)}, {vr(vXY+2*b,2)}, {vr(vO1,4)}")
                A(f"v_mfma_f32_16x16x16_bf16 {vr(vO2,4)}, {vr(r+2,2)}, {vr(vXY+2*b,2)}, {vr(vO2,4)}")
                IP(1, b)
            if p == 1:
                A(f"s_cmp_eq_u32 s{sJ}, 1")
                A("s_cbranch_scc1 L_flushA")
                A("L_flushA_ret:")
            A(f"s_add_u32 s{sJ}, s{sJ}, 1")
        A("s_branch L_loop")

        def state_to_lds(br):
            A(f"v_mov_b32 v{vB}, v{vL}")
            A(f"s_lshl_b32 s{sT1}, s{sW}, 11")
            A(f"v_add_u32 v{vA}, s{sT1}, v{vVoff}")
            A(f"v_permlane16_swap_b32 v{vL}, v{vB}")
            A(f"v_add_f32 v{vL}, v{vL}, v{vB}")
            A(f"v_mov_b32 v{vB}, v{vL}")
            A(f"s_lshl_b32 s{sT1}, s{sW}, 3")
            A("s_nop 0")
            A(f"v_permlane32_swap_b32 v{vL}, v{vB}")
            A(f"v_add_f32 v{vL}, v{vL}, v{vB}")
            A(f"v_bfe_u32 v{vB}, v{vLane}, 2, 2")
            A(f"v_lshlrev_b32 v{vB}, 6, v{vB}")
            A(f"v_add_u32 v{vB}, s{sT1}, v{vB}")
            A(f"ds_write_b128 v{vA}, {vr(vO1,4)} offset:{L_O+br*16384}")
            A(f"ds_write_b128 v{vA}, {vr(vO2,4)} offset:{L_O+br*16384+1024}")
            A("s_mov_b64 exec, 0x1111")
            A(f"ds_write_b64 v{vB}, {vr(vM,2)} offset:{L_ML+br*256}")
            A("s_mov_b64 exec, -1")

        A("L_flushA:")
        A("s_nop 7")
        state_to_lds(0)
        A("s_waitcnt lgkmcnt(0)")
        A(f"v_mov_b32 v{vM}, 0xff7fffff")
        A(f"v_mov_b32 v{vMC}, 0xff7fffff")
        A(f"v_mov_b32 v{vL}, 0")
        for i in range(8):
            A(f"v_mov_b32 v{vO1+i}, 0")
        for i in range(4):
            A(f"v_mov_b32 v{vQ+i}, v{vQB+i}")
        A("s_branch L_flushA_ret")

        A("L_exit:")
        self.TS(5)
        l = self.lab("nowo")
        A(f"s_cmp_ge_u32 s{sW}, 4")
        A(f"s_cbranch_scc1 {l}")
        A(f"s_lshl_b32 s{sT1}, s{sH}, 19")
        A(f"s_lshl_b32 s{sT2}, s{sS}, 15")
        A(f"s_add_u32 s{sT1}, s{sT1}, s{sT2}")
        A(f"s_lshl_b32 s{sT2}, s{sW}, 8")
        A(f"s_add_u32 s{sT1}, s{sT1}, s{sT2}")
        A(f"s_add_u32 s{sT2}, s{sT1}, 4096")
        A(f"v_lshrrev_b32 v{vA}, 4, v{vLane}")
        A(f"v_lshlrev_b32 v{vA}, 13, v{vA}")
        A(f"v_and_b32 v{vB}, 15, v{vLane}")
        A(f"v_lshl_add_u32 v{vA}, v{vB}, 4, v{vA}")
        for i in range(8):
            A(f"buffer_load_dwordx4 {vr(vWO+4*i,4)}, v{vA}, {srd(sWO)}, s{(sT1, sT2)[i>>2]} offen offset:{(i&3)*1024} {self.wopol}")
        A(f"{l}:")
        l = self.lab("nogate")
        A(f"s_and_b32 s{sT1}, s{sS}, 3")
        A(f"s_lshl_b32 s{sT1}, s{sT1}, 3")
        A(f"s_or_b32 s{sT1}, s{sT1}, s{sW}")
        A(f"s_cmp_lg_u32 s{sT1}, 7")
        A(f"s_cbranch_scc1 {l}")
        A(f"s_lshl_b32 s{sT1}, s{sS}, 7")
        A(f"s_and_b32 s{sT1}, s{sT1}, 1024")
        A(f"buffer_load_dwordx4 {vr(vWO,4)}, v{vVoff}, {srd(sX)}, s{sT1} offen")
        A(f"global_load_dwordx4 {vr(vWO+4,4)}, v{vVoff}, s[68:69]")
        A(f"{l}:")
        state_to_lds(1)
        A("s_waitcnt lgkmcnt(0)")
        A("s_barrier")
        self.TS(6)
        A(f"s_cmp_ge_u32 s{sW}, 4")
        A("s_cbranch_scc1 L_t2")
        ml = RING
        od = RING + 16
        A(f"s_lshr_b32 s{sT1}, s{sW}, 1")
        A(f"s_and_b32 s{sT2}, s{sW}, 1")
        A(f"s_lshl_b32 s{sT3}, s{sT1}, 8")
        A(f"v_bfe_u32 v{vB}, v{vLane}, 2, 2")
        A(f"v_lshlrev_b32 v{vA}, 6, v{vB}")
        A(f"v_add_u32 v{vA}, s{sT3}, v{vA}")
        for i in range(4):
            A(f"ds_read_b128 {vr(ml+4*i,4)}, v{vA} offset:{L_ML+16*i}")
        A(f"s_lshl_b32 s{sT3}, s{sT1}, 14")
        A(f"s_lshl_b32 s{sT0}, s{sT2}, 10")
        A(f"s_add_u32 s{sT3}, s{sT3}, s{sT0}")
        A(f"v_add_u32 v{vA}, s{sT3}, v{vVoff}")
        for w in range(8):
            A(f"ds_read_b128 {vr(od+4*w,4)}, v{vA} offset:{L_O+2048*w}")
        A(f"s_lshl_b32 s{sIdx}, s{sT1}, 8")
        A(f"s_add_u32 s{sIdx}, s{sIdx}, s2")
        A(f"v_lshrrev_b32 v{vA}, 2, v{vLane}")
        A(f"v_lshlrev_b32 v{vA}, 7, v{vA}")
        A(f"v_and_b32 v{vAl}, 3, v{vLane}")
        A(f"v_lshl_add_u32 v{vA}, v{vAl}, 4, v{vA}")
        A(f"s_lshl_b32 s{sT3}, s{sIdx}, 11")
        A(f"s_lshl_b32 s{sT0}, s{sT2}, 6")
        A(f"s_add_u32 s{sT3}, s{sT3}, s{sT0}")
        A(f"s_add_u32 s{sT3}, s{sT3}, {WS_PO}")
        tb = vD
        A(f"v_and_b32 v{tb}, 0xff, v{vT}")
        A(f"v_bfe_u32 v{tb+1}, v{vT}, 8, 8")
        A(f"v_bfe_u32 v{tb+2}, v{vT}, 16, 8")
        A(f"v_lshrrev_b32 v{tb+3}, 24, v{vT}")
        A("s_waitcnt lgkmcnt(8)")
        Mx, Ls = vD + 4, vD + 5
        A(f"v_max3_f32 v{Mx}, v{ml}, v{ml+2}, v{ml+4}")
        A(f"v_max3_f32 v{Mx}, v{Mx}, v{ml+6}, v{ml+8}")
        A(f"v_max3_f32 v{Mx}, v{Mx}, v{ml+10}, v{ml+12}")
        A(f"v_max_f32 v{Mx}, v{Mx}, v{ml+14}")
        for w in range(8):
            A(f"v_sub_f32 v{ml+2*w}, v{ml+2*w}, v{Mx}")
        for w in range(8):
            A(f"v_mul_f32 v{ml+2*w}, s{sC}, v{ml+2*w}")
        for w in range(8):
            A(f"v_exp_f32 v{ml+2*w}, v{ml+2*w}")
        A(f"v_mov_b32 v{vD+6}, v{vT}")
        A(f"v_mov_b32 v{vD+7}, v{vT}")
        A(f"v_mul_f32 v{Ls}, v{ml}, v{ml+1}")
        for w in range(1, 8):
            A(f"v_fmac_f32 v{Ls}, v{ml+2*w}, v{ml+2*w+1}")
        A("s_waitcnt lgkmcnt(0)")
        res = vD + 8
        for i in range(4):
            A(f"v_mul_f32 v{res+i}, v{ml}, v{od+i}")
        for w in range(1, 8):
            for i in range(4):
                A(f"v_fmac_f32 v{res+i}, v{ml+2*w}, v{od+4*w+i}")
        for i in range(4):
            A(f"v_and_or_b32 v{res+i}, v{res+i}, s{sMaskHi}, v{tb+i}")
        A(f"buffer_store_dwordx4 {vr(res,4)}, v{vA}, {srd(sWS)}, s{sT3} offen sc1")
        l = self.lab("noml")
        A(f"s_cmp_lg_u32 s{sT2}, 0")
        A(f"s_cbranch_scc1 {l}")
        A(f"s_lshl_b32 s{sT3}, s{sIdx}, 6")
        A(f"s_add_u32 s{sT3}, s{sT3}, {WS_PML}")
        A(f"v_lshlrev_b32 v{vB}, 4, v{vB}")
        A("s_mov_b64 exec, 0x1111")
        A(f"buffer_store_dwordx4 {vr(Mx,4)}, v{vB}, {srd(sWS)}, s{sT3} offen sc1")
        A("s_mov_b64 exec, -1")
        A(f"{l}:")
        self.TS(7)
        mk = vXY
        A(f"v_and_b32 v{vA}, 1, v{vLane}")
        A(f"v_lshlrev_b32 v{vA}, 4, v{vA}")
        A(f"v_mov_b32 v{vB}, 0xffff")
        A(f"v_lshlrev_b32 v{vB}, v{vA}, v{vB}")
        A(f"v_bfe_u32 v{vA}, v{vLane}, 1, 2")
        for j in range(4):
            A(f"v_cmp_eq_u32 vcc, {j}, v{vA}")
            A("s_nop 1")
            A(f"v_cndmask_b32 v{mk+j}, 0, v{vB}, vcc")
        A(f"v_bfe_u32 v{vA}, v{vLane}, 3, 1")
        A(f"v_lshlrev_b32 v{vA}, 7, v{vA}")
        A(f"v_lshrrev_b32 v{vB}, 4, v{vLane}")
        A(f"v_lshl_add_u32 v{vA}, v{vB}, 5, v{vA}")
        A(f"v_lshrrev_b32 v{vB}, 2, v{vLane}")
        A(f"v_lshlrev_b32 v{vB}, 14, v{vB}")
        A(f"v_lshl_add_u32 v{vB}, v{vAl}, 4, v{vB}")
        A(f"s_lshl_b32 s{sT3}, s{sW}, 18")
        A(f"s_lshl_b32 s{sT0}, s2, 6")
        A(f"s_add_u32 s{sT3}, s{sT3}, s{sT0}")
        A(f"s_add_u32 s{sT3}, s{sT3}, {WS_C}")
        A("s_barrier")
        ob = RING
        bo = RING + 8
        A(f"ds_read_b128 {vr(ob,4)}, v{vA} offset:{L_OF}")
        A(f"ds_read_b128 {vr(ob+4,4)}, v{vA} offset:{L_OF+16}")
        A("s_waitcnt lgkmcnt(0)")
        for i in range(8):
            for j in range(4):
                A(f"v_and_b32 v{bo+4*i+j}, v{ob+i}, v{mk+j}")
        A("s_waitcnt vmcnt(0)")
        for i in range(8):
            c = "0" if i == 0 else vr(res, 4)
            A(f"v_mfma_f32_16x16x32_bf16 {vr(res,4)}, {vr(vWO+4*i,4)}, {vr(bo+4*i,4)}, {c}")
        A("s_nop 7")
        for i in range(4):
            A(f"v_and_or_b32 v{res+i}, v{res+i}, s{sMaskHi}, v{tb+i}")
        A(f"buffer_store_dwordx4 {vr(res,4)}, v{vB}, {srd(sWS)}, s{sT3} offen sc1")
        self.TS(9)
        A("s_branch L_t4")

        A("L_t2:")
        A(f"s_cmp_ge_u32 s{sW}, 6")
        A("s_cbranch_scc1 L_t2b")
        oa, obb, mla, mlb = RING, RING + 4, RING + 8, RING + 12
        A(f"s_and_b32 s{sT1}, s{sW}, 1")
        A(f"s_lshl_b32 s{sT1}, s{sT1}, 7")
        A(f"s_lshl_b32 s{sT2}, s{sB}, 8")
        A(f"s_add_u32 s{sT1}, s{sT1}, s{sT2}")
        A(f"s_lshl_b32 s{sT2}, s{sH}, 4")
        A(f"s_add_u32 s{sT1}, s{sT1}, s{sT2}")
        A(f"s_and_b32 s{sT2}, s{sS}, 3")
        A(f"s_lshl_b32 s{sT2}, s{sT2}, 9")
        A(f"s_lshr_b32 s{sT3}, s{sS}, 2")
        A(f"s_lshl_b32 s{sT0}, s{sT3}, 7")
        A(f"s_add_u32 s{sT2}, s{sT2}, s{sT0}")
        A(f"s_lshl_b32 s{sT0}, s{sT1}, 11")
        A(f"s_add_u32 s{sT2}, s{sT2}, s{sT0}")
        A(f"s_add_u32 s{sT2}, s{sT2}, {WS_PO}")
        A(f"s_add_u32 s{sIdx}, s{sT2}, 16384")
        A(f"s_lshl_b32 s{sT1}, s{sT1}, 6")
        A(f"s_lshl_b32 s{sT3}, s{sT3}, 4")
        A(f"s_add_u32 s{sT1}, s{sT1}, s{sT3}")
        A(f"s_add_u32 s{sT1}, s{sT1}, {WS_PML}")
        A(f"v_lshrrev_b32 v{vB}, 3, v{vLane}")
        A(f"v_lshlrev_b32 v{vA}, 11, v{vB}")
        A(f"v_and_b32 v{vAl}, 7, v{vLane}")
        A(f"v_lshl_add_u32 v{vA}, v{vAl}, 4, v{vA}")
        A(f"v_lshlrev_b32 v{vB}, 6, v{vB}")
        lp = self.lab("h1")
        A(f"{lp}:")
        A(f"buffer_load_dwordx4 {vr(mla,4)}, v{vB}, {srd(sWS)}, s{sT1} offen sc1")
        A(f"buffer_load_dwordx4 {vr(mlb,4)}, v{vB}, {srd(sWS)}, s{sT1} offen offset:512 sc1")
        A(f"buffer_load_dwordx4 {vr(oa,4)}, v{vA}, {srd(sWS)}, s{sT2} offen sc1")
        A(f"buffer_load_dwordx4 {vr(obb,4)}, v{vA}, {srd(sWS)}, s{sIdx} offen sc1")
        A(f"s_sub_u32 s{sSpin}, s{sSpin}, 1")
        A("s_cbranch_scc1 L_end")
        A("s_waitcnt vmcnt(0)")

        def tagcheck(regs, extra):
            n = 0
            for r in regs:
                A(f"v_perm_b32 v{vD+n}, v{r+1}, v{r}, s{sSelx}")
                A(f"v_perm_b32 v{vD+n+1}, v{r+3}, v{r+2}, s{sSely}")
                A(f"v_or_b32 v{vD+n}, v{vD+n}, v{vD+n+1}")
                A(f"v_xor_b32 v{vD+n}, v{vD+n}, v{vT}")
                n += 1
            for r in extra:
                A(f"v_xor_b32 v{vD+n}, v{r}, v{vT}")
                n += 1
            for i in range(1, n):
                A(f"v_or_b32 v{vD}, v{vD}, v{vD+i}")
            A(f"v_cmp_ne_u32 vcc, 0, v{vD}")

        tagcheck([oa, obb], [mla + 2, mlb + 2])
        A(f"s_cbranch_vccnz {lp}")
        self.TS(8)

        def xreduce(regs, op, tmp):
            A("s_nop 1")
            for r in regs:
                A(f"{op}_dpp v{r}, v{r}, v{r} row_ror:8 row_mask:0xf bank_mask:0xf")
            for sw in ("v_permlane16_swap_b32", "v_permlane32_swap_b32"):
                for i, r in enumerate(regs):
                    A(f"v_mov_b32 v{tmp+i}, v{r}")
                A("s_nop 1")
                for i, r in enumerate(regs):
                    A(f"{sw} v{r}, v{tmp+i}")
                for i, r in enumerate(regs):
                    A(f"{op} v{r}, v{r}, v{tmp+i}")

        Mg = vD
        A(f"v_max_f32 v{Mg}, v{mla}, v{mlb}")
        xreduce([Mg], "v_max_f32", vD + 8)
        A(f"v_sub_f32 v{mla}, v{mla}, v{Mg}")
        A(f"v_sub_f32 v{mlb}, v{mlb}, v{Mg}")
        A(f"v_mul_f32 v{mla}, s{sC}, v{mla}")
        A(f"v_mul_f32 v{mlb}, s{sC}, v{mlb}")
        A(f"v_exp_f32 v{mla}, v{mla}")
        A(f"v_exp_f32 v{mlb}, v{mlb}")
        A("s_nop 0")
        A(f"v_mul_f32 v{vD+1}, v{mla}, v{mla+1}")
        A(f"v_fmac_f32 v{vD+1}, v{mlb}, v{mlb+1}")
        for i in range(4):
            A(f"v_mul_f32 v{vD+2+i}, v{mla}, v{oa+i}")
        for i in range(4):
            A(f"v_fmac_f32 v{vD+2+i}, v{mlb}, v{obb+i}")
        xreduce([vD + 1 + i for i in range(5)], "v_add_f32", vD + 8)
        A(f"v_rcp_f32 v{vD+1}, v{vD+1}")
        A(f"s_and_b32 s{sT1}, s{sW}, 1")
        A(f"s_lshl_b32 s{sT1}, s{sT1}, 7")
        A(f"v_lshlrev_b32 v{vA}, 2, v{vAl}")
        A(f"v_add_u32 v{vA}, s{sT1}, v{vA}")
        for i in range(4):
            A(f"v_mul_f32 v{vD+2+i}, v{vD+2+i}, v{vD+1}")
        for i in range(4):
            A(f"v_cvt_pk_bf16_f32 v{vD+2+i}, v{vD+2+i}, v{vD+2+i}")
        A("s_mov_b64 exec, 0xff")
        for i in range(4):
            A(f"ds_write_b32 v{vA}, v{vD+2+i} offset:{L_OF+32*i}")
        A("s_mov_b64 exec, -1")
        A("s_waitcnt lgkmcnt(0)")
        A("s_barrier")
        A("s_branch L_t4")

        A("L_t2b:")
        l = self.lab("nog2")
        A(f"s_and_b32 s{sT1}, s{sS}, 3")
        A(f"s_lshl_b32 s{sT1}, s{sT1}, 3")
        A(f"s_or_b32 s{sT1}, s{sT1}, s{sW}")
        A(f"s_cmp_lg_u32 s{sT1}, 7")
        A(f"s_cbranch_scc1 {l}")
        A("s_waitcnt vmcnt(0)")
        g0 = RING
        for j in range(4):
            A(f"v_lshlrev_b32 v{g0+4*j}, 16, v{vWO+j}")
            A(f"v_and_b32 v{g0+4*j+1}, 0xffff0000, v{vWO+j}")
            A(f"v_lshlrev_b32 v{g0+4*j+2}, 16, v{vWO+4+j}")
            A(f"v_and_b32 v{g0+4*j+3}, 0xffff0000, v{vWO+4+j}")
        for j in range(4):
            A(f"v_mul_f32 v{g0+4*j}, v{g0+4*j}, v{g0+4*j+2}")
            A(f"v_mul_f32 v{g0+4*j+1}, v{g0+4*j+1}, v{g0+4*j+3}")
        for j in range(4):
            A(f"v_cvt_pk_bf16_f32 v{g0+4*j}, v{g0+4*j}, v{g0+4*j+1}")
        for j in range(4):
            A(f"v_and_b32 v{g0+4*j+1}, 0xffff0000, v{g0+4*j}")
            A(f"v_lshlrev_b32 v{g0+4*j}, 16, v{g0+4*j}")
        for j in range(4):
            A(f"v_add_f32 v{g0+4*j}, v{g0+4*j}, v{g0+4*j+1}")
        A(f"v_add_f32 v{g0}, v{g0}, v{g0+4}")
        A(f"v_add_f32 v{g0+8}, v{g0+8}, v{g0+12}")
        A(f"v_add_f32 v{g0}, v{g0}, v{g0+8}")
        for ror in (1, 2, 4):
            A("s_nop 1")
            A(f"v_add_f32_dpp v{g0}, v{g0}, v{g0} row_ror:{ror} row_mask:0xf bank_mask:0xf")
        xreduce([g0], "v_add_f32", g0 + 1)
        A(f"v_cvt_pk_bf16_f32 v{g0}, v{g0}, v{g0}")
        A(f"v_and_b32 v{g0}, 0xffff0000, v{g0}")
        A(f"v_mul_f32 v{g0}, {f2u(-1.4426950408889634):#x}, v{g0}")
        A(f"v_exp_f32 v{g0}, v{g0}")
        A("s_nop 0")
        A(f"v_add_f32 v{g0}, 1.0, v{g0}")
        A(f"v_rcp_f32 v{g0}, v{g0}")
        A("s_nop 0")
        A(f"v_cvt_pk_bf16_f32 v{g0}, v{g0}, v{g0}")
        A(f"v_and_b32 v{g0}, 0xffff0000, v{g0}")
        A(f"v_mov_b32 v{g0+1}, {L_G}")
        A("s_mov_b64 exec, 1")
        A(f"ds_write_b32 v{g0+1}, v{g0}")
        A("s_mov_b64 exec, -1")
        A("s_waitcnt lgkmcnt(0)")
        A(f"{l}:")
        A("s_barrier")

        A("L_t4:")
        A(f"s_and_b32 s{sT1}, s{sS}, 3")
        A(f"s_cmp_lg_u32 s{sT1}, 0")
        A("s_cbranch_scc1 L_fin")
        ca, cb = RING, RING + 4
        A(f"s_lshr_b32 s{sT1}, s2, 2")
        A(f"s_lshl_b32 s{sT2}, s{sT1}, 14")
        A(f"s_lshl_b32 s{sT3}, s{sW}, 10")
        A(f"s_add_u32 s{sT2}, s{sT2}, s{sT3}")
        A(f"s_add_u32 s{sT2}, s{sT2}, {WS_C}")
        A(f"s_add_u32 s{sT3}, s{sT2}, 8192")
        lp = self.lab("h2")
        A(f"{lp}:")
        A(f"buffer_load_dwordx4 {vr(ca,4)}, v{vVoff}, {srd(sWS)}, s{sT2} offen sc1")
        A(f"buffer_load_dwordx4 {vr(cb,4)}, v{vVoff}, {srd(sWS)}, s{sT3} offen sc1")
        A(f"s_sub_u32 s{sSpin}, s{sSpin}, 1")
        A("s_cbranch_scc1 L_end")
        A("s_waitcnt vmcnt(0)")
        tagcheck([ca, cb], [])
        A(f"s_cbranch_vccnz {lp}")
        self.TS(10)
        for i in range(4):
            A(f"v_permlane32_swap_b32 v{ca+i}, v{cb+i}")
        for i in range(4):
            A(f"v_add_f32 v{ca+i}, v{ca+i}, v{cb+i}")
        for i in range(4):
            A(f"v_mov_b32 v{cb+i}, v{ca+i}")
        A("s_nop 1")
        for i in range(4):
            A(f"v_permlane16_swap_b32 v{ca+i}, v{cb+i}")
        for i in range(4):
            A(f"v_add_f32 v{ca+i}, v{ca+i}, v{cb+i}")
        for ror in (8, 4):
            A("s_nop 1")
            for i in range(4):
                A(f"v_add_f32_dpp v{ca+i}, v{ca+i}, v{ca+i} row_ror:{ror} row_mask:0xf bank_mask:0xf")
        A(f"v_lshrrev_b32 v{vA}, 5, v{vLane}")
        A(f"v_lshlrev_b32 v{vA}, 6, v{vA}")
        A(f"v_and_b32 v{vB}, 3, v{vLane}")
        A(f"v_lshl_add_u32 v{vA}, v{vB}, 4, v{vA}")
        A(f"s_lshl_b32 s{sT2}, s{sW}, 7")
        A(f"v_add_u32 v{vA}, s{sT2}, v{vA}")
        A("s_mov_b32 exec_lo, 0xf")
        A("s_mov_b32 exec_hi, 0xf")
        A(f"ds_write_b128 v{vA}, {vr(ca,4)} offset:{L_R}")
        A("s_mov_b64 exec, -1")
        A("s_waitcnt lgkmcnt(0)")
        A("s_barrier")
        A(f"s_cmp_lg_u32 s{sW}, 0")
        A("s_cbranch_scc1 L_fin")
        A(f"v_and_b32 v{vB}, 15, v{vLane}")
        A(f"v_lshlrev_b32 v{vA}, 2, v{vB}")
        A(f"v_add_u32 v{vAl}, {L_R}, v{vA}")
        fa = RING
        for w in range(8):
            A(f"ds_read2_b32 {vr(fa+2*w,2)}, v{vAl} offset0:{w*32} offset1:{w*32+16}")
        A(f"v_mov_b32 v{vD}, {L_G}")
        A(f"ds_read_b32 v{vD}, v{vD}")
        A(f"s_lshr_b32 s{sT2}, s{sT1}, 2")
        A(f"s_lshl_b32 s{sT2}, s{sT2}, 6")
        A(f"s_and_b32 s{sT3}, s{sT1}, 1")
        A(f"s_lshl_b32 s{sT3}, s{sT3}, 3")
        A(f"s_add_u32 s{sT2}, s{sT2}, s{sT3}")
        A(f"s_and_b32 s{sT3}, s{sT1}, 2")
        A(f"s_lshl_b32 s{sT3}, s{sT3}, 9")
        A(f"s_add_u32 s{sT2}, s{sT2}, s{sT3}")
        A(f"v_and_b32 v{vA}, 3, v{vB}")
        A(f"v_lshlrev_b32 v{vA}, 4, v{vA}")
        A(f"v_lshrrev_b32 v{vB}, 2, v{vB}")
        A(f"v_lshl_add_u32 v{vA}, v{vB}, 1, v{vA}")
        A("s_waitcnt lgkmcnt(0)")
        for st in (2, 4, 8):
            for w in range(0, 16, 2 * st):
                A(f"v_add_f32 v{fa+w}, v{fa+w}, v{fa+w+st}")
                A(f"v_add_f32 v{fa+w+1}, v{fa+w+1}, v{fa+w+st+1}")
        A(f"v_cvt_pk_bf16_f32 v{fa}, v{fa}, v{fa+1}")
        A(f"v_sub_f32 v{vD+1}, 1.0, v{vD}")
        A(f"v_and_b32 v{fa+1}, 0xffff0000, v{fa}")
        A(f"v_lshlrev_b32 v{fa}, 16, v{fa}")
        A(f"v_cvt_pk_bf16_f32 v{vD+1}, v{vD+1}, v{vD+1}")
        A(f"v_and_b32 v{vD+1}, 0xffff0000, v{vD+1}")
        A(f"v_mul_f32 v{fa}, v{fa}, v{vD}")
        A(f"v_mul_f32 v{fa+1}, v{fa+1}, v{vD+1}")
        A(f"v_cvt_pk_bf16_f32 v{fa}, v{fa}, v{fa+1}")
        A(f"v_and_b32 v{fa+1}, 0xffff0000, v{fa}")
        A(f"v_lshlrev_b32 v{fa}, 16, v{fa}")
        A(f"v_add_f32 v{fa}, v{fa}, v{fa+1}")
        A(f"v_cvt_pk_bf16_f32 v{fa}, v{fa}, v{fa}")
        A("s_mov_b64 exec, 0xffff")
        A(f"buffer_store_short v{fa}, v{vA}, {srd(sOUT)}, s{sT2} offen")
        A("s_cmp_lg_u32 s2, 0")
        A("s_cbranch_scc1 L_fin")
        A("s_mov_b64 exec, 1")
        A(f"v_mov_b32 v{vA}, {WS_EPOCH}")
        A(f"buffer_store_dword v{vT}, v{vA}, {srd(sWS)}, 0 offen sc1")
        A("L_fin:")
        if self.ts:
            A("s_mov_b64 exec, -1")
            self.TS(11)
            A(f"v_writelane_b32 v59, s{sJ}, 12")
            A("s_getreg_b32 s96, hwreg(HW_REG_XCC_ID)")
            A("s_nop 0")
            A("v_writelane_b32 v59, s96, 13")
            A(f"s_lshl_b32 s{sT1}, s2, 3")
            A(f"s_add_u32 s{sT1}, s{sT1}, s{sW}")
            A(f"s_lshl_b32 s{sT1}, s{sT1}, 6")
            A(f"s_add_u32 s{sT1}, s{sT1}, {WS_TS}")
            A(f"v_lshlrev_b32 v{vA}, 2, v{vLane}")
            A("s_mov_b64 exec, 0xffff")
            A(f"buffer_store_dword v59, v{vA}, {srd(sWS)}, s{sT1} offen")
        A("L_end:")
        A("s_endpgm")
        body = "\n".join(self.L)
        out = HDR + f"; @launch grid=(256,1,1) block=(512,1,1) lds={LDS_BYTES}\n"
        out += '.amdgcn_target "amdgcn-amd-amdhsa--gfx950"\n.text\n'
        out += f".globl {name}\n.p2align 8\n.type {name},@function\n" + body + "\n"
        out += f""".section .rodata,"a"
.p2align 6
.amdhsa_kernel {name}
  .amdhsa_next_free_vgpr 224
  .amdhsa_next_free_sgpr 100
  .amdhsa_accum_offset 224
  .amdhsa_group_segment_fixed_size 0
  .amdhsa_kernarg_size 112
  .amdhsa_user_sgpr_count 2
  .amdhsa_user_sgpr_kernarg_segment_ptr 1
  .amdhsa_system_sgpr_workgroup_id_x 1
.end_amdhsa_kernel
"""
        return out


if __name__ == "__main__":
    ap = argparse.ArgumentParser()
    ap.add_argument("-o", default="k.s")
    ap.add_argument("--D", type=int, default=4)
    ap.add_argument("--NS", type=int, default=12)
    ap.add_argument("--static", action="store_true")
    ap.add_argument("--P1", type=int, default=18)
    ap.add_argument("--F0", type=int, default=4)
    ap.add_argument("--ts", action="store_true")
    ap.add_argument("--kvpol", default="nt")
    ap.add_argument("--wqpol", default="nt")
    ap.add_argument("--wopol", default="nt")
    a = ap.parse_args()
    g = Gen(D=a.D, NS=16 if a.static else a.NS, dyn=not a.static, P1=a.P1, F0=a.F0, ts=a.ts,
            kvpol=a.kvpol, wqpol=a.wqpol, wopol=a.wopol)
    open(a.o, "w").write(g.gen())
```

```python
import sys, struct, argparse

NAME = "gated_mix__sliding_block_cached__gqa_block_cached__decode_kernel"

HDR = """; Kernarg layout for this problem (112 bytes, ptrs only, base s[0:1]):
"""

def f2u(x):
    return struct.unpack("<I", struct.pack("<f", x))[0]

WS_EPOCH = 0
WS_CNT = 4096
WS_Q = 0x10000
WS_PML = 0x20000
WS_PO = 0x100000
WS_C = 0x200000
WS_TS = 0x300000
WS_SIZE = 0x400000

L_O = 0
L_ML = 32768
L_Q = 33280
L_OF = 35328
L_R = 35584
L_G = 36608
LDS_BYTES = 36864

class Gen:
    def __init__(self, D=4, NS=12, dyn=True, P1=18, F0=4, ts=False, kvpol="nt", wqpol="nt", wopol="nt",
                 name=NAME, spin=1 << 20, dbgts=False):
        self.dbgts = dbgts
        self.L = []
        self.D, self.NS, self.dyn, self.P1, self.F0, self.ts = D, NS, dyn, P1, F0, ts
        self.kvpol, self.wqpol, self.wopol = kvpol, wqpol, wopol
        self.name = name
        self.spin = spin
        self.uid = 0
        self.nts = 0

    def A(self, s):
        for line in s.split("\n"):
            self.L.append("    " + line.strip() if not line.strip().endswith(":") else line.strip())

    def lab(self, base):
        self.uid += 1
        return f"L{base}_{self.uid}"

    def TS(self, k):
        if not self.ts:
            return
        A = self.A
        A("s_memrealtime s[96:97]")
        A("s_waitcnt lgkmcnt(0)")
        A(f"v_writelane_b32 v59, s96, {k}")

    def gen(self):
        A = self.A
        D, NS, P1, F0 = self.D, self.NS, self.P1, self.F0
        name = self.name
        sKA, sVA, sKB, sVB, sWQ, sWO, sWS, sX, sOUT = 8, 12, 16, 20, 24, 28, 32, 36, 40
        sW, sBH, sS, sB, sH = 44, 45, 46, 47, 76
        sC, sJ, sLast, sStat, sOff, sTk, sT, sSpin = 77, 78, 79, 80, 81, 82, 83, 84
        sT0, sT1, sT2, sT3 = 85, 86, 87, 88
        sSelx, sSely, sMaskHi = 89, 90, 91
        sIdx = 92
        sAoff = 93
        vKoff, vVoff, vLane = 1, 2, 3
        vQ, vQB, vO1, vO2 = 4, 8, 12, 16
        vM, vL, vMC, vmX, vmY, vA, vB, vAl = 20, 21, 22, 23, 24, 25, 26, 27
        vD, vt, vXY = 28, 44, 48
        vTk, vOne, vT = 56, 57, 58
        vCnt = 60
        vtb = 61
        RING, vWO = 64, 192

        def srd(s):
            return f"s[{s}:{s+3}]"

        def vr(r, n):
            return f"v[{r}:{r+n-1}]"

        def slotK(p, b):
            return RING + (p * 8 + b) * 4

        def slotV(p, b):
            return RING + (p * 8 + 4 + b) * 4

        self.L.append(f"{name}:")
        A("s_cmp_ge_u32 s2, 256")
        A("s_cbranch_scc1 L_end")
        A("s_load_dwordx16 s[48:63], s[0:1], 0")
        A("s_load_dwordx8 s[64:71], s[0:1], 64")
        A("s_load_dwordx4 s[72:75], s[0:1], 96")
        if self.ts:
            A("v_mov_b32 v59, 0")
            A("s_memrealtime s[96:97]")
        A(f"v_lshrrev_b32 v{vA}, 6, v0")
        A(f"v_and_b32 v{vLane}, 63, v0")
        A(f"s_lshr_b32 s{sBH}, s2, 4")
        A(f"v_readfirstlane_b32 s{sW}, v{vA}")
        A(f"s_and_b32 s{sS}, s2, 15")
        A(f"s_lshr_b32 s{sB}, s{sBH}, 3")
        A(f"s_and_b32 s{sH}, s{sBH}, 7")
        A(f"v_lshrrev_b32 v{vA}, 2, v{vLane}")
        A(f"v_lshlrev_b32 v{vB}, 15, v{vA}")
        A(f"v_and_b32 v{vAl}, 3, v{vLane}")
        A(f"v_lshl_add_u32 v{vB}, v{vAl}, 4, v{vB}")
        A(f"v_lshlrev_b32 v{vA}, 3, v{vA}")
        A(f"s_and_b32 s{sT0}, s{sS}, 7")
        A(f"s_lshl_b32 s{sT0}, s{sT0}, 7")
        A(f"s_lshr_b32 s{sT1}, s{sS}, 3")
        A(f"s_lshl_b32 s{sT1}, s{sT1}, 6")
        A(f"s_add_u32 s{sT0}, s{sT0}, s{sT1}")
        A(f"s_lshl_b32 s{sT1}, s{sH}, 10")
        A(f"s_add_u32 s{sT1}, s{sT1}, s{sT0}")
        A(f"s_lshl_b32 s{sT2}, s{sW}, 19")
        A(f"s_add_u32 s{sT1}, s{sT1}, s{sT2}")
        A(f"s_lshl_b32 s{sT2}, s{sW}, 7")
        A(f"v_lshlrev_b32 v{vVoff}, 4, v{vLane}")
        A(f"s_cmp_eq_u32 s{sB}, 0")
        A("s_waitcnt lgkmcnt(0)")
        if self.ts:
            A("v_writelane_b32 v59, s96, 0")
        A(f"s_cselect_b32 s{sWQ}, s54, s64")
        A(f"s_cselect_b32 s{sWQ+1}, s55, s65")
        A(f"s_cselect_b32 s{sWO}, s56, s66")
        A(f"s_cselect_b32 s{sWO+1}, s57, s67")
        A(f"s_mov_b32 s{sWQ+2}, 0x400000")
        A(f"s_mov_b32 s{sWQ+3}, 0x20000")
        A(f"s_mov_b32 s{sX}, s48")
        A(f"s_mov_b32 s{sX+1}, s49")
        A(f"s_mov_b32 s{sX+2}, 2048")
        A(f"s_mov_b32 s{sX+3}, 0x20000")
        A(f"s_mov_b32 s{sWS}, s74")
        A(f"s_mov_b32 s{sWS+1}, s75")
        A(f"s_mov_b32 s{sWS+2}, {WS_SIZE}")
        A(f"s_mov_b32 s{sWS+3}, 0x20000")
        A(f"s_load_dword s{sT}, s[74:75], {WS_EPOCH}")
        A(f"s_lshl_b32 s{sT3}, s{sBH}, 3")
        A(f"s_add_u32 s{sT3}, s{sT3}, s{sW}")
        A(f"s_lshl_b32 s{sT3}, s{sT3}, 8")
        A(f"s_add_u32 s{sT3}, s{sT3}, {WS_CNT}")
        A(f"v_mov_b32 v{vCnt}, s{sT3}")
        if self.dyn:
            l = self.lab("noinit")
            A(f"s_cmp_lg_u32 s{sS}, 0")
            A(f"s_cbranch_scc1 {l}")
            A(f"v_mov_b32 v{vOne}, 0")
            A("s_mov_b64 exec, 1")
            A(f"buffer_store_dword v{vOne}, v{vCnt}, {srd(sWS)}, 0 offen sc1")
            A("s_mov_b64 exec, -1")
            A(f"{l}:")
        vXd, vWd = 208, 192
        A(f"buffer_load_dwordx2 {vr(vXd,2)}, v{vA}, {srd(sX)}, s{sT2} offen")
        A(f"buffer_load_dwordx2 {vr(vXd+2,2)}, v{vA}, {srd(sX)}, s{sT2} offen offset:1024")
        for i in range(4):
            A(f"buffer_load_dwordx4 {vr(vWd+4*i,4)}, v{vB}, {srd(sWQ)}, s{sT1} offen {self.wqpol}")
            if i < 3:
                A(f"s_add_u32 s{sT1}, s{sT1}, 8192")
        A(f"s_lshl_b32 s{sT1}, s{sBH}, 23")
        A(f"s_lshl_b32 s{sT2}, s{sS}, 16")
        A(f"s_add_u32 s{sT2}, s{sT2}, {(32768-4096)*256}")
        A(f"s_add_u32 s{sT2}, s{sT2}, s{sT1}")
        for (d, src, off, n) in ((sKA, 50, sT2, 65536), (sVA, 52, sT2, 65536), (sKB, 60, sT1, 0x800000), (sVB, 62, sT1, 0x800000)):
            A(f"s_add_u32 s{d}, s{src}, s{off}")
            A(f"s_addc_u32 s{d+1}, s{src+1}, 0")
            A(f"s_mov_b32 s{d+2}, {n}")
            A(f"s_mov_b32 s{d+3}, 0x20000")
        A(f"v_lshrrev_b32 v{vKoff}, 4, v{vLane}")
        A(f"v_lshlrev_b32 v{vKoff}, 6, v{vKoff}")
        A(f"v_lshl_add_u32 v{vKoff}, v{vAl}, 4, v{vKoff}")
        A(f"v_bfe_u32 v{vA}, v{vLane}, 2, 2")
        A(f"v_lshl_add_u32 v{vKoff}, v{vA}, 8, v{vKoff}")
        A(f"s_lshl_b32 s{sAoff}, s{sW}, 12")
        A(f"s_mul_i32 s{sStat}, s{sS}, {8*NS*4096}")
        A(f"s_add_u32 s{sStat}, s{sStat}, s{sAoff}")

        fill = []
        for t in range(4):
            for kv in range(2):
                for b in range(4):
                    fill.append((t, kv, b))
        self.fill_pos = 0

        def issue_fill(paced):
            t, kv, b = fill[self.fill_pos]
            if paced:
                A(f"s_waitcnt vmcnt({D-1})")
            if kv == 0 and b == 0:
                if t == 0:
                    A(f"s_mov_b32 s{sOff}, s{sAoff}")
                elif t == 1:
                    A(f"s_add_u32 s{sOff}, s{sAoff}, 32768")
                else:
                    A(f"s_mov_b32 s{sOff}, s{sStat}")
                    A(f"s_add_u32 s{sStat}, s{sStat}, 32768")
            sr = (sKA, sVA)[kv] if t < 2 else (sKB, sVB)[kv]
            r = slotK(t, b) if kv == 0 else slotV(t, b)
            vo = vKoff if kv == 0 else vVoff
            A(f"buffer_load_dwordx4 {vr(r,4)}, v{vo}, {srd(sr)}, s{sOff} offen offset:{b*1024} {self.kvpol}")
            self.fill_pos += 1

        for _ in range(F0):
            issue_fill(False)
        l = self.lab("nopf")
        A(f"s_cmp_lg_u32 s{sW}, 7")
        A(f"s_cbranch_scc1 {l}")
        A("s_getpc_b64 s[94:95]")
        A("L_pc:")
        A(f"v_lshlrev_b32 v{vA}, 7, v{vLane}")
        A(f"v_min_u32 v{vA}, L_end-L_pc, v{vA}")
        A(f"global_load_dword v{vtb}, v{vA}, s[94:95]")
        A(f"{l}:")
        A(f"s_mov_b32 s{sC}, {f2u(128 ** -0.5 * 1.4426950408889634):#x}")
        A(f"s_mov_b32 s{sWO+2}, 0x400000")
        A(f"s_mov_b32 s{sWO+3}, 0x20000")
        A(f"s_mov_b32 s{sOUT}, s70")
        A(f"s_mov_b32 s{sOUT+1}, s71")
        A(f"s_mov_b32 s{sOUT+2}, 2048")
        A(f"s_mov_b32 s{sOUT+3}, 0x20000")
        A(f"s_mov_b32 s{sSelx}, 0x0c0c0400")
        A(f"s_mov_b32 s{sSely}, 0x04000c0c")
        A(f"s_mov_b32 s{sMaskHi}, 0xffffff00")
        A(f"s_mov_b32 s{sJ}, 0")
        A(f"s_mov_b32 s{sLast}, 0x7fffffff")
        A(f"s_mov_b32 s{sSpin}, {self.spin}")
        A(f"v_and_b32 v{vA}, 1, v{vLane}")
        A(f"v_lshlrev_b32 v{vA}, 4, v{vA}")
        A(f"v_mov_b32 v{vmX}, 0xffff")
        A(f"v_lshlrev_b32 v{vmX}, v{vA}, v{vmX}")
        A(f"v_and_b32 v{vA}, 2, v{vLane}")
        A(f"v_cmp_eq_u32 vcc, 0, v{vA}")
        A(f"v_mov_b32 v{vOne}, 1")
        A(f"v_mov_b32 v{vL}, 0")
        A(f"v_cndmask_b32 v{vmY}, v{vmX}, 0, vcc")
        A(f"v_cndmask_b32 v{vmX}, 0, v{vmX}, vcc")
        A(f"v_mov_b32 v{vM}, 0xff7fffff")
        A(f"v_mov_b32 v{vMC}, 0xff7fffff")
        for i in range(8):
            A(f"v_mov_b32 v{vO1+i}, 0")
        A("s_waitcnt lgkmcnt(0)")
        A(f"s_mul_i32 s{sT}, s{sT}, 0x9e3779b1")
        A(f"s_add_u32 s{sT}, s{sT}, 0x7f4a7c15")
        A(f"v_mov_b32 v{vT}, s{sT}")
        A(f"s_waitcnt vmcnt({F0})")
        self.TS(1)
        acc = vD
        xs = vt
        tw = 52
        for b in range(2):
            for j in range(2):
                A(f"v_lshlrev_b32 v{xs+b*4+2*j}, 16, v{vXd+2*b+j}")
                A(f"v_and_b32 v{xs+b*4+2*j+1}, 0xffff0000, v{vXd+2*b+j}")
        for i in range(4):
            for j in range(4):
                w = vWd + 4 * i + j
                lo, hi = tw + (j & 1) * 2, tw + (j & 1) * 2 + 1
                A(f"v_lshlrev_b32 v{lo}, 16, v{w}")
                A(f"v_and_b32 v{hi}, 0xffff0000, v{w}")
                for b in range(2):
                    op = "v_mul_f32" if i == 0 else "v_fmac_f32"
                    A(f"{op} v{acc+8*b+2*j}, v{lo}, v{xs+4*b+i}")
                    A(f"{op} v{acc+8*b+2*j+1}, v{hi}, v{xs+4*b+i}")
            issue_fill(False)
        A("s_nop 1")
        for i in range(8):
            A(f"v_permlane32_swap_b32 v{acc+i}, v{acc+i+8}")
        for i in range(8):
            A(f"v_add_f32 v{acc+i}, v{acc+i}, v{acc+i+8}")
        A("s_nop 1")
        for i in range(4):
            A(f"v_permlane16_swap_b32 v{acc+i}, v{acc+i+4}")
        for i in range(4):
            A(f"v_add_f32 v{acc+i}, v{acc+i}, v{acc+i+4}")
        A("s_nop 1")
        for i in range(4):
            A(f"v_add_f32_dpp v{acc+i}, v{acc+i}, v{acc+i} row_ror:8 row_mask:0xf bank_mask:0xf")
        A("s_nop 1")
        for i in range(4):
            A(f"v_add_f32_dpp v{acc+i}, v{acc+i}, v{acc+i} row_ror:4 row_mask:0xf bank_mask:0xf")
        A(f"v_lshrrev_b32 v{vA}, 5, v{vLane}")
        A(f"v_lshlrev_b32 v{vA}, 7, v{vA}")
        A(f"v_and_b32 v{vB}, 3, v{vLane}")
        A(f"v_lshl_add_u32 v{vA}, v{vB}, 5, v{vA}")
        A(f"v_and_b32 v{vB}, 16, v{vLane}")
        A(f"v_add_u32 v{vA}, v{vA}, v{vB}")
        A(f"s_lshl_b32 s{sT1}, s{sW}, 8")
        A(f"v_add_u32 v{vA}, s{sT1}, v{vA}")
        A("s_mov_b32 exec_lo, 0x000f000f")
        A("s_mov_b32 exec_hi, 0x000f000f")
        A(f"ds_write_b128 v{vA}, {vr(acc,4)} offset:{L_Q}")
        A("s_mov_b64 exec, -1")
        A("s_waitcnt lgkmcnt(0)")
        A("s_barrier")
        l = self.lab("nosvc")
        A(f"s_and_b32 s{sT1}, s{sS}, 7")
        A(f"s_cmp_lg_u32 s{sT1}, s{sW}")
        A(f"s_cbranch_scc1 {l}")
        A(f"v_lshlrev_b32 v{vA}, 2, v{vLane}")
        for w in range(8):
            A(f"ds_read_b32 v{acc+w}, v{vA} offset:{L_Q+w*256}")
        A(f"s_lshl_b32 s{sT1}, s{sB}, 4")
        A(f"s_add_u32 s{sT1}, s{sT1}, s{sH}")
        A(f"s_lshl_b32 s{sT1}, s{sT1}, 11")
        A(f"s_lshl_b32 s{sT2}, s{sT0}, 1")
        A(f"s_add_u32 s{sT1}, s{sT1}, s{sT2}")
        A(f"s_add_u32 s{sT1}, s{sT1}, {WS_Q}")
        A(f"v_lshrrev_b32 v{vB}, 5, v{vLane}")
        A(f"v_lshlrev_b32 v{vB}, 14, v{vB}")
        A(f"v_and_b32 v{vA}, 31, v{vLane}")
        A(f"v_lshl_add_u32 v{vB}, v{vA}, 2, v{vB}")
        A("s_waitcnt lgkmcnt(0)")
        A(f"v_add_f32 v{acc}, v{acc}, v{acc+1}")
        A(f"v_add_f32 v{acc+2}, v{acc+2}, v{acc+3}")
        A(f"v_add_f32 v{acc+4}, v{acc+4}, v{acc+5}")
        A(f"v_add_f32 v{acc+6}, v{acc+6}, v{acc+7}")
        A(f"v_add_f32 v{acc}, v{acc}, v{acc+2}")
        A(f"v_add_f32 v{acc+4}, v{acc+4}, v{acc+6}")
        A(f"v_add_f32 v{acc}, v{acc}, v{acc+4}")
        A(f"v_mov_b32 v{acc+9}, v{vT}")
        A(f"v_mov_b32 v{acc+11}, v{vT}")
        A(f"v_mov_b32_dpp v{acc+1}, v{acc} quad_perm:[1,1,3,3] row_mask:0xf bank_mask:0xf")
        A("s_nop 0")
        A(f"v_cvt_pk_bf16_f32 v{acc+8}, v{acc}, v{acc+1}")
        A("s_nop 1")
        A(f"v_mov_b32_dpp v{acc+10}, v{acc+8} quad_perm:[2,2,2,2] row_mask:0xf bank_mask:0xf")
        A("s_mov_b32 exec_lo, 0x11111111")
        A("s_mov_b32 exec_hi, 0x11111111")
        A(f"buffer_store_dwordx4 {vr(acc+8,4)}, v{vB}, {srd(sWS)}, s{sT1} offen sc1")
        A("s_mov_b64 exec, -1")
        self.TS(2)
        A(f"{l}:")
        vQg = 208
        vQoff = vtb + 1
        A(f"v_lshlrev_b32 v{vQoff}, 1, v{vKoff}")
        A(f"s_lshl_b32 s{sT1}, s{sBH}, 11")
        A(f"s_add_u32 s{sT1}, s{sT1}, {WS_Q}")
        A(f"s_add_u32 s{sT2}, s{sT1}, 32768")

        def q_loads():
            A(f"buffer_load_dwordx4 {vr(vQg,4)}, v{vQoff}, {srd(sWS)}, s{sT1} offen sc1")
            A(f"buffer_load_dwordx4 {vr(vQg+4,4)}, v{vQoff}, {srd(sWS)}, s{sT1} offen offset:16 sc1")
            A(f"buffer_load_dwordx4 {vr(vQg+8,4)}, v{vQoff}, {srd(sWS)}, s{sT2} offen sc1")
            A(f"buffer_load_dwordx4 {vr(vQg+12,4)}, v{vQoff}, {srd(sWS)}, s{sT2} offen offset:16 sc1")

        while self.fill_pos < 32:
            if self.fill_pos == P1:
                q_loads()
            issue_fill(True)
        assert 32 - P1 >= D
        self.TS(3)
        lchk, lok = self.lab("qchk"), self.lab("qok")
        A(f"{lchk}:")
        A(f"v_xor_b32 v{vA}, v{vQg+1}, v{vT}")
        for i in range(1, 8):
            A(f"v_xor_b32 v{vB}, v{vQg+2*i+1}, v{vT}")
            A(f"v_or_b32 v{vA}, v{vA}, v{vB}")
        A(f"v_cmp_ne_u32 vcc, 0, v{vA}")
        A(f"s_cbranch_vccz {lok}")
        A(f"s_sub_u32 s{sSpin}, s{sSpin}, 1")
        A("s_cbranch_scc1 L_end")
        q_loads()
        A("s_waitcnt vmcnt(0)")
        A(f"s_branch {lchk}")
        A(f"{lok}:")
        for i in range(4):
            A(f"v_mov_b32 v{vQ+i}, v{vQg+2*i}")
        for i in range(4):
            A(f"v_mov_b32 v{vQB+i}, v{vQg+8+2*i}")
        A("s_mov_b64 vcc, 0")
        self.TS(4)

        DYN = 16 * (16 - NS)
        DYNBASE = 128 * NS * 4096
        A(".p2align 6")
        A("L_loop:")
        for p in range(4):
            lskip, ldyn, lreq, lnw = self.lab("skip"), self.lab("dyn"), self.lab("req"), self.lab("nw")
            A(f"s_cmp_gt_u32 s{sJ}, s{sLast}")
            A("s_cbranch_scc1 L_exit")
            A(f"s_cbranch_vccz {lnw}")
            A(f"s_cmp_lg_u32 s{sJ}, s{sLast}")
            A(f"s_cbranch_scc1 {lskip}")
            A("s_waitcnt vmcnt(0)")
            A(f"s_branch {lskip}")
            A(f"{lnw}:")
            A(f"s_cmp_lt_u32 s{sJ}, {NS-2}")
            A(f"s_cbranch_scc0 {ldyn}")
            A(f"s_mov_b32 s{sOff}, s{sStat}")
            A(f"s_add_u32 s{sStat}, s{sStat}, 32768")
            if self.dyn:
                A(f"s_cmp_lt_u32 s{sJ}, {NS-3}")
                A(f"s_cbranch_scc1 {lskip}")
                A(f"s_branch {lreq}")
            else:
                A(f"s_branch {lskip}")
            A(f"{ldyn}:")
            if self.dyn:
                A(f"v_readfirstlane_b32 s{sTk}, v{vTk}")
                A("s_nop 3")
                A(f"s_lshl_b32 s{sOff}, s{sTk}, 15")
                A(f"s_add_u32 s{sOff}, s{sOff}, s{sAoff}")
                A(f"s_add_u32 s{sOff}, s{sOff}, {DYNBASE}")
                A(f"s_cmp_lt_u32 s{sTk}, {DYN}")
                A(f"s_cbranch_scc1 {lreq}")
            A(f"s_add_u32 s{sLast}, s{sJ}, 3")
            A("s_mov_b64 vcc, -1")
            if self.dyn:
                A(f"s_branch {lskip}")
                A(f"{lreq}:")
                A(f"v_mov_b32 v{vTk}, 1")
                A("s_mov_b64 exec, 1")
                A(f"buffer_atomic_add v{vTk}, v{vCnt}, {srd(sWS)}, 0 offen sc0 sc1")
                A("s_mov_b64 exec, -1")
            A(f"{lskip}:")

            def IP(kv, b):
                l = self.lab("ip")
                A(f"s_cbranch_vccnz {l}")
                A(f"s_waitcnt vmcnt({D-1})")
                r = slotK(p, b) if kv == 0 else slotV(p, b)
                A(f"buffer_load_dwordx4 {vr(r,4)}, v{(vKoff, vVoff)[kv]}, {srd((sKB, sVB)[kv])}, s{sOff} offen offset:{b*1024} {self.kvpol}")
                A(f"{l}:")

            for b in range(4):
                A(f"v_mfma_f32_16x16x32_bf16 {vr(vD+4*b,4)}, {vr(slotK(p,b),4)}, {vr(vQ,4)}, 0")
            IP(0, 0)
            A("s_nop 3")
            for b in range(4):
                d = vD + 4 * b
                A(f"v_mov_b32_dpp v{vt+b}, v{d} quad_perm:[0,0,0,0] row_mask:0xf bank_mask:0xf")
                for q in range(1, 4):
                    A(f"v_add_f32_dpp v{vt+b}, v{d+q}, v{vt+b} quad_perm:[{q},{q},{q},{q}] row_mask:0xf bank_mask:0xf")
            IP(0, 1)
            A(f"v_max3_f32 v{vA}, v{vt}, v{vt+1}, v{vt+2}")
            A(f"v_max3_f32 v{vA}, v{vA}, v{vt+3}, v{vM}")
            A(f"v_mov_b32 v{vB}, v{vA}")
            A("s_nop 1")
            A(f"v_permlane16_swap_b32 v{vA}, v{vB}")
            A(f"v_max_f32 v{vA}, v{vA}, v{vB}")
            A(f"v_mov_b32 v{vB}, v{vA}")
            A("s_nop 1")
            A(f"v_permlane32_swap_b32 v{vA}, v{vB}")
            A(f"v_max_f32 v{vM}, v{vA}, v{vB}")
            IP(0, 2)
            A(f"v_mul_f32 v{vA}, s{sC}, v{vM}")
            A(f"v_sub_f32 v{vAl}, v{vMC}, v{vA}")
            A(f"v_mov_b32 v{vMC}, v{vA}")
            A(f"v_exp_f32 v{vAl}, v{vAl}")
            for b in range(4):
                A(f"v_fma_f32 v{vt+b}, v{vt+b}, s{sC}, -v{vA}")
            for b in range(4):
                A(f"v_exp_f32 v{vt+b}, v{vt+b}")
            IP(0, 3)
            for i in range(8):
                A(f"v_mul_f32 v{vO1+i}, v{vO1+i}, v{vAl}")
            for b in range(4):
                A(f"v_cvt_pk_bf16_f32 v{vD+b}, v{vt+b}, v{vt+b}")
            A(f"v_fma_f32 v{vL}, v{vL}, v{vAl}, v{vt}")
            A(f"v_add_f32 v{vA}, v{vt+1}, v{vt+2}")
            for b in range(4):
                A(f"v_and_b32 v{vXY+2*b}, v{vD+b}, v{vmX}")
                A(f"v_and_b32 v{vXY+2*b+1}, v{vD+b}, v{vmY}")
            A(f"v_add_f32 v{vL}, v{vL}, v{vt+3}")
            A(f"v_add_f32 v{vL}, v{vL}, v{vA}")
            for b in range(4):
                r = slotV(p, b)
                A(f"v_mfma_f32_16x16x16_bf16 {vr(vO1,4)}, {vr(r,2)}, {vr(vXY+2*b,2)}, {vr(vO1,4)}")
                A(f"v_mfma_f32_16x16x16_bf16 {vr(vO2,4)}, {vr(r+2,2)}, {vr(vXY+2*b,2)}, {vr(vO2,4)}")
                IP(1, b)
            if p == 1:
                A(f"s_cmp_eq_u32 s{sJ}, 1")
                A("s_cbranch_scc1 L_flushA")
                A("L_flushA_ret:")
            A(f"s_add_u32 s{sJ}, s{sJ}, 1")
        A("s_branch L_loop")

        def state_to_lds(br):
            A(f"v_mov_b32 v{vB}, v{vL}")
            A(f"s_lshl_b32 s{sT1}, s{sW}, 11")
            A(f"v_add_u32 v{vA}, s{sT1}, v{vVoff}")
            A(f"v_permlane16_swap_b32 v{vL}, v{vB}")
            A(f"v_add_f32 v{vL}, v{vL}, v{vB}")
            A(f"v_mov_b32 v{vB}, v{vL}")
            A(f"s_lshl_b32 s{sT1}, s{sW}, 3")
            A("s_nop 0")
            A(f"v_permlane32_swap_b32 v{vL}, v{vB}")
            A(f"v_add_f32 v{vL}, v{vL}, v{vB}")
            A(f"v_bfe_u32 v{vB}, v{vLane}, 2, 2")
            A(f"v_lshlrev_b32 v{vB}, 6, v{vB}")
            A(f"v_add_u32 v{vB}, s{sT1}, v{vB}")
            A(f"ds_write_b128 v{vA}, {vr(vO1,4)} offset:{L_O+br*16384}")
            A(f"ds_write_b128 v{vA}, {vr(vO2,4)} offset:{L_O+br*16384+1024}")
            A("s_mov_b64 exec, 0x1111")
            A(f"ds_write_b64 v{vB}, {vr(vM,2)} offset:{L_ML+br*256}")
            A("s_mov_b64 exec, -1")

        A("L_flushA:")
        A("s_nop 7")
        state_to_lds(0)
        A("s_waitcnt lgkmcnt(0)")
        A(f"v_mov_b32 v{vM}, 0xff7fffff")
        A(f"v_mov_b32 v{vMC}, 0xff7fffff")
        A(f"v_mov_b32 v{vL}, 0")
        for i in range(8):
            A(f"v_mov_b32 v{vO1+i}, 0")
        for i in range(4):
            A(f"v_mov_b32 v{vQ+i}, v{vQB+i}")
        A("s_branch L_flushA_ret")

        A("L_exit:")
        self.TS(5)
        l = self.lab("nowo")
        A(f"s_cmp_ge_u32 s{sW}, 4")
        A(f"s_cbranch_scc1 {l}")
        A(f"s_lshl_b32 s{sT1}, s{sH}, 19")
        A(f"s_lshl_b32 s{sT2}, s{sS}, 15")
        A(f"s_add_u32 s{sT1}, s{sT1}, s{sT2}")
        A(f"s_lshl_b32 s{sT2}, s{sW}, 8")
        A(f"s_add_u32 s{sT1}, s{sT1}, s{sT2}")
        A(f"s_add_u32 s{sT2}, s{sT1}, 4096")
        A(f"v_lshrrev_b32 v{vA}, 4, v{vLane}")
        A(f"v_lshlrev_b32 v{vA}, 13, v{vA}")
        A(f"v_and_b32 v{vB}, 15, v{vLane}")
        A(f"v_lshl_add_u32 v{vA}, v{vB}, 4, v{vA}")
        for i in range(8):
            A(f"buffer_load_dwordx4 {vr(vWO+4*i,4)}, v{vA}, {srd(sWO)}, s{(sT1, sT2)[i>>2]} offen offset:{(i&3)*1024} {self.wopol}")
        A(f"{l}:")
        l = self.lab("nogate")
        A(f"s_and_b32 s{sT1}, s{sS}, 3")
        A(f"s_lshl_b32 s{sT1}, s{sT1}, 3")
        A(f"s_or_b32 s{sT1}, s{sT1}, s{sW}")
        A(f"s_cmp_lg_u32 s{sT1}, 7")
        A(f"s_cbranch_scc1 {l}")
        A(f"s_lshl_b32 s{sT1}, s{sS}, 7")
        A(f"s_and_b32 s{sT1}, s{sT1}, 1024")
        A(f"buffer_load_dwordx4 {vr(vWO,4)}, v{vVoff}, {srd(sX)}, s{sT1} offen")
        A(f"global_load_dwordx4 {vr(vWO+4,4)}, v{vVoff}, s[68:69]")
        A(f"{l}:")
        state_to_lds(1)
        A("s_waitcnt lgkmcnt(0)")
        A("s_barrier")
        self.TS(6)
        A(f"s_cmp_ge_u32 s{sW}, 4")
        A("s_cbranch_scc1 L_t2")
        ml = RING
        od = RING + 16
        A(f"s_lshr_b32 s{sT1}, s{sW}, 1")
        A(f"s_and_b32 s{sT2}, s{sW}, 1")
        A(f"s_lshl_b32 s{sT3}, s{sT1}, 8")
        A(f"v_bfe_u32 v{vB}, v{vLane}, 2, 2")
        A(f"v_lshlrev_b32 v{vA}, 6, v{vB}")
        A(f"v_add_u32 v{vA}, s{sT3}, v{vA}")
        for i in range(4):
            A(f"ds_read_b128 {vr(ml+4*i,4)}, v{vA} offset:{L_ML+16*i}")
        A(f"s_lshl_b32 s{sT3}, s{sT1}, 14")
        A(f"s_lshl_b32 s{sT0}, s{sT2}, 10")
        A(f"s_add_u32 s{sT3}, s{sT3}, s{sT0}")
        A(f"v_add_u32 v{vA}, s{sT3}, v{vVoff}")
        for w in range(8):
            A(f"ds_read_b128 {vr(od+4*w,4)}, v{vA} offset:{L_O+2048*w}")
        A(f"s_lshl_b32 s{sIdx}, s{sT1}, 8")
        A(f"s_add_u32 s{sIdx}, s{sIdx}, s2")
        A(f"v_lshrrev_b32 v{vA}, 2, v{vLane}")
        A(f"v_lshlrev_b32 v{vA}, 7, v{vA}")
        A(f"v_and_b32 v{vAl}, 3, v{vLane}")
        A(f"v_lshl_add_u32 v{vA}, v{vAl}, 4, v{vA}")
        A(f"s_lshl_b32 s{sT3}, s{sIdx}, 11")
        A(f"s_lshl_b32 s{sT0}, s{sT2}, 6")
        A(f"s_add_u32 s{sT3}, s{sT3}, s{sT0}")
        A(f"s_add_u32 s{sT3}, s{sT3}, {WS_PO}")
        tb = vD
        A(f"v_and_b32 v{tb}, 0xff, v{vT}")
        A(f"v_bfe_u32 v{tb+1}, v{vT}, 8, 8")
        A(f"v_bfe_u32 v{tb+2}, v{vT}, 16, 8")
        A(f"v_lshrrev_b32 v{tb+3}, 24, v{vT}")
        A("s_waitcnt lgkmcnt(8)")
        Mx, Ls = vD + 4, vD + 5
        A(f"v_max3_f32 v{Mx}, v{ml}, v{ml+2}, v{ml+4}")
        A(f"v_max3_f32 v{Mx}, v{Mx}, v{ml+6}, v{ml+8}")
        A(f"v_max3_f32 v{Mx}, v{Mx}, v{ml+10}, v{ml+12}")
        A(f"v_max_f32 v{Mx}, v{Mx}, v{ml+14}")
        for w in range(8):
            A(f"v_sub_f32 v{ml+2*w}, v{ml+2*w}, v{Mx}")
        for w in range(8):
            A(f"v_mul_f32 v{ml+2*w}, s{sC}, v{ml+2*w}")
        for w in range(8):
            A(f"v_exp_f32 v{ml+2*w}, v{ml+2*w}")
        A(f"v_mov_b32 v{vD+6}, v{vT}")
        A(f"v_mov_b32 v{vD+7}, v{vT}")
        A(f"v_mul_f32 v{Ls}, v{ml}, v{ml+1}")
        for w in range(1, 8):
            A(f"v_fmac_f32 v{Ls}, v{ml+2*w}, v{ml+2*w+1}")
        A("s_waitcnt lgkmcnt(0)")
        res = vD + 8
        for i in range(4):
            A(f"v_mul_f32 v{res+i}, v{ml}, v{od+i}")
        for w in range(1, 8):
            for i in range(4):
                A(f"v_fmac_f32 v{res+i}, v{ml+2*w}, v{od+4*w+i}")
        for i in range(4):
            A(f"v_and_or_b32 v{res+i}, v{res+i}, s{sMaskHi}, v{tb+i}")
        A(f"buffer_store_dwordx4 {vr(res,4)}, v{vA}, {srd(sWS)}, s{sT3} offen sc1")
        l = self.lab("noml")
        A(f"s_cmp_lg_u32 s{sT2}, 0")
        A(f"s_cbranch_scc1 {l}")
        A(f"s_lshl_b32 s{sT3}, s{sIdx}, 6")
        A(f"s_add_u32 s{sT3}, s{sT3}, {WS_PML}")
        A(f"v_lshlrev_b32 v{vB}, 4, v{vB}")
        A("s_mov_b64 exec, 0x1111")
        A(f"buffer_store_dwordx4 {vr(Mx,4)}, v{vB}, {srd(sWS)}, s{sT3} offen sc1")
        A("s_mov_b64 exec, -1")
        A(f"{l}:")
        self.TS(7)
        mk = vXY
        A(f"v_and_b32 v{vA}, 1, v{vLane}")
        A(f"v_lshlrev_b32 v{vA}, 4, v{vA}")
        A(f"v_mov_b32 v{vB}, 0xffff")
        A(f"v_lshlrev_b32 v{vB}, v{vA}, v{vB}")
        A(f"v_bfe_u32 v{vA}, v{vLane}, 1, 2")
        for j in range(4):
            A(f"v_cmp_eq_u32 vcc, {j}, v{vA}")
            A("s_nop 1")
            A(f"v_cndmask_b32 v{mk+j}, 0, v{vB}, vcc")
        A(f"v_bfe_u32 v{vA}, v{vLane}, 3, 1")
        A(f"v_lshlrev_b32 v{vA}, 7, v{vA}")
        A(f"v_lshrrev_b32 v{vB}, 4, v{vLane}")
        A(f"v_lshl_add_u32 v{vA}, v{vB}, 5, v{vA}")
        A(f"v_lshrrev_b32 v{vB}, 2, v{vLane}")
        A(f"v_lshlrev_b32 v{vB}, 14, v{vB}")
        A(f"v_lshl_add_u32 v{vB}, v{vAl}, 4, v{vB}")
        A(f"s_lshl_b32 s{sT3}, s{sW}, 18")
        A(f"s_lshl_b32 s{sT0}, s2, 6")
        A(f"s_add_u32 s{sT3}, s{sT3}, s{sT0}")
        A(f"s_add_u32 s{sT3}, s{sT3}, {WS_C}")
        A("s_barrier")
        ob = RING
        bo = RING + 8
        A(f"ds_read_b128 {vr(ob,4)}, v{vA} offset:{L_OF}")
        A(f"ds_read_b128 {vr(ob+4,4)}, v{vA} offset:{L_OF+16}")
        A("s_waitcnt lgkmcnt(0)")
        for i in range(8):
            for j in range(4):
                A(f"v_and_b32 v{bo+4*i+j}, v{ob+i}, v{mk+j}")
        A("s_waitcnt vmcnt(0)")
        for i in range(8):
            c = "0" if i == 0 else vr(res, 4)
            A(f"v_mfma_f32_16x16x32_bf16 {vr(res,4)}, {vr(vWO+4*i,4)}, {vr(bo+4*i,4)}, {c}")
        A("s_nop 7")
        for i in range(4):
            A(f"v_and_or_b32 v{res+i}, v{res+i}, s{sMaskHi}, v{tb+i}")
        A(f"buffer_store_dwordx4 {vr(res,4)}, v{vB}, {srd(sWS)}, s{sT3} offen sc1")
        self.TS(9)
        A("s_branch L_t4")

        A("L_t2:")
        A(f"s_cmp_ge_u32 s{sW}, 6")
        A("s_cbranch_scc1 L_t2b")
        oa, obb, mla, mlb = RING, RING + 4, RING + 8, RING + 12
        A(f"s_and_b32 s{sT1}, s{sW}, 1")
        A(f"s_lshl_b32 s{sT1}, s{sT1}, 7")
        A(f"s_lshl_b32 s{sT2}, s{sB}, 8")
        A(f"s_add_u32 s{sT1}, s{sT1}, s{sT2}")
        A(f"s_lshl_b32 s{sT2}, s{sH}, 4")
        A(f"s_add_u32 s{sT1}, s{sT1}, s{sT2}")
        A(f"s_and_b32 s{sT2}, s{sS}, 3")
        A(f"s_lshl_b32 s{sT2}, s{sT2}, 9")
        A(f"s_lshr_b32 s{sT3}, s{sS}, 2")
        A(f"s_lshl_b32 s{sT0}, s{sT3}, 7")
        A(f"s_add_u32 s{sT2}, s{sT2}, s{sT0}")
        A(f"s_lshl_b32 s{sT0}, s{sT1}, 11")
        A(f"s_add_u32 s{sT2}, s{sT2}, s{sT0}")
        A(f"s_add_u32 s{sT2}, s{sT2}, {WS_PO}")
        A(f"s_add_u32 s{sIdx}, s{sT2}, 16384")
        A(f"s_lshl_b32 s{sT1}, s{sT1}, 6")
        A(f"s_lshl_b32 s{sT3}, s{sT3}, 4")
        A(f"s_add_u32 s{sT1}, s{sT1}, s{sT3}")
        A(f"s_add_u32 s{sT1}, s{sT1}, {WS_PML}")
        A(f"v_lshrrev_b32 v{vB}, 3, v{vLane}")
        A(f"v_lshlrev_b32 v{vA}, 11, v{vB}")
        A(f"v_and_b32 v{vAl}, 7, v{vLane}")
        A(f"v_lshl_add_u32 v{vA}, v{vAl}, 4, v{vA}")
        A(f"v_lshlrev_b32 v{vB}, 6, v{vB}")
        lp = self.lab("h1")
        A(f"{lp}:")
        A(f"buffer_load_dwordx4 {vr(mla,4)}, v{vB}, {srd(sWS)}, s{sT1} offen sc1")
        A(f"buffer_load_dwordx4 {vr(mlb,4)}, v{vB}, {srd(sWS)}, s{sT1} offen offset:512 sc1")
        A(f"buffer_load_dwordx4 {vr(oa,4)}, v{vA}, {srd(sWS)}, s{sT2} offen sc1")
        A(f"buffer_load_dwordx4 {vr(obb,4)}, v{vA}, {srd(sWS)}, s{sIdx} offen sc1")
        A(f"s_sub_u32 s{sSpin}, s{sSpin}, 1")
        A("s_cbranch_scc1 L_end")
        A("s_waitcnt vmcnt(0)")

        def tagcheck(regs, extra):
            n = 0
            for r in regs:
                A(f"v_perm_b32 v{vD+n}, v{r+1}, v{r}, s{sSelx}")
                A(f"v_perm_b32 v{vD+n+1}, v{r+3}, v{r+2}, s{sSely}")
                A(f"v_or_b32 v{vD+n}, v{vD+n}, v{vD+n+1}")
                A(f"v_xor_b32 v{vD+n}, v{vD+n}, v{vT}")
                n += 1
            for r in extra:
                A(f"v_xor_b32 v{vD+n}, v{r}, v{vT}")
                n += 1
            for i in range(1, n):
                A(f"v_or_b32 v{vD}, v{vD}, v{vD+i}")
            A(f"v_cmp_ne_u32 vcc, 0, v{vD}")

        tagcheck([oa, obb], [mla + 2, mlb + 2])
        A(f"s_cbranch_vccnz {lp}")
        self.TS(8)

        def xreduce(regs, op, tmp):
            A("s_nop 1")
            for r in regs:
                A(f"{op}_dpp v{r}, v{r}, v{r} row_ror:8 row_mask:0xf bank_mask:0xf")
            for sw in ("v_permlane16_swap_b32", "v_permlane32_swap_b32"):
                for i, r in enumerate(regs):
                    A(f"v_mov_b32 v{tmp+i}, v{r}")
                A("s_nop 1")
                for i, r in enumerate(regs):
                    A(f"{sw} v{r}, v{tmp+i}")
                for i, r in enumerate(regs):
                    A(f"{op} v{r}, v{r}, v{tmp+i}")

        Mg = vD
        A(f"v_max_f32 v{Mg}, v{mla}, v{mlb}")
        xreduce([Mg], "v_max_f32", vD + 8)
        A(f"v_sub_f32 v{mla}, v{mla}, v{Mg}")
        A(f"v_sub_f32 v{mlb}, v{mlb}, v{Mg}")
        A(f"v_mul_f32 v{mla}, s{sC}, v{mla}")
        A(f"v_mul_f32 v{mlb}, s{sC}, v{mlb}")
        A(f"v_exp_f32 v{mla}, v{mla}")
        A(f"v_exp_f32 v{mlb}, v{mlb}")
        A("s_nop 0")
        A(f"v_mul_f32 v{vD+1}, v{mla}, v{mla+1}")
        A(f"v_fmac_f32 v{vD+1}, v{mlb}, v{mlb+1}")
        for i in range(4):
            A(f"v_mul_f32 v{vD+2+i}, v{mla}, v{oa+i}")
        for i in range(4):
            A(f"v_fmac_f32 v{vD+2+i}, v{mlb}, v{obb+i}")
        xreduce([vD + 1 + i for i in range(5)], "v_add_f32", vD + 8)
        A(f"v_rcp_f32 v{vD+1}, v{vD+1}")
        A(f"s_and_b32 s{sT1}, s{sW}, 1")
        A(f"s_lshl_b32 s{sT1}, s{sT1}, 7")
        A(f"v_lshlrev_b32 v{vA}, 2, v{vAl}")
        A(f"v_add_u32 v{vA}, s{sT1}, v{vA}")
        for i in range(4):
            A(f"v_mul_f32 v{vD+2+i}, v{vD+2+i}, v{vD+1}")
        for i in range(4):
            A(f"v_cvt_pk_bf16_f32 v{vD+2+i}, v{vD+2+i}, v{vD+2+i}")
        A("s_mov_b64 exec, 0xff")
        for i in range(4):
            A(f"ds_write_b32 v{vA}, v{vD+2+i} offset:{L_OF+32*i}")
        A("s_mov_b64 exec, -1")
        A("s_waitcnt lgkmcnt(0)")
        A("s_barrier")
        A("s_branch L_t4")

        A("L_t2b:")
        l = self.lab("nog2")
        A(f"s_and_b32 s{sT1}, s{sS}, 3")
        A(f"s_lshl_b32 s{sT1}, s{sT1}, 3")
        A(f"s_or_b32 s{sT1}, s{sT1}, s{sW}")
        A(f"s_cmp_lg_u32 s{sT1}, 7")
        A(f"s_cbranch_scc1 {l}")
        A("s_waitcnt vmcnt(0)")
        g0 = RING
        for j in range(4):
            A(f"v_lshlrev_b32 v{g0+4*j}, 16, v{vWO+j}")
            A(f"v_and_b32 v{g0+4*j+1}, 0xffff0000, v{vWO+j}")
            A(f"v_lshlrev_b32 v{g0+4*j+2}, 16, v{vWO+4+j}")
            A(f"v_and_b32 v{g0+4*j+3}, 0xffff0000, v{vWO+4+j}")
        for j in range(4):
            A(f"v_mul_f32 v{g0+4*j}, v{g0+4*j}, v{g0+4*j+2}")
            A(f"v_mul_f32 v{g0+4*j+1}, v{g0+4*j+1}, v{g0+4*j+3}")
        for j in range(4):
            A(f"v_cvt_pk_bf16_f32 v{g0+4*j}, v{g0+4*j}, v{g0+4*j+1}")
        for j in range(4):
            A(f"v_and_b32 v{g0+4*j+1}, 0xffff0000, v{g0+4*j}")
            A(f"v_lshlrev_b32 v{g0+4*j}, 16, v{g0+4*j}")
        for j in range(4):
            A(f"v_add_f32 v{g0+4*j}, v{g0+4*j}, v{g0+4*j+1}")
        A(f"v_add_f32 v{g0}, v{g0}, v{g0+4}")
        A(f"v_add_f32 v{g0+8}, v{g0+8}, v{g0+12}")
        A(f"v_add_f32 v{g0}, v{g0}, v{g0+8}")
        for ror in (1, 2, 4):
            A("s_nop 1")
            A(f"v_add_f32_dpp v{g0}, v{g0}, v{g0} row_ror:{ror} row_mask:0xf bank_mask:0xf")
        xreduce([g0], "v_add_f32", g0 + 1)
        A(f"v_cvt_pk_bf16_f32 v{g0}, v{g0}, v{g0}")
        A(f"v_and_b32 v{g0}, 0xffff0000, v{g0}")
        A(f"v_mul_f32 v{g0}, {f2u(-1.4426950408889634):#x}, v{g0}")
        A(f"v_exp_f32 v{g0}, v{g0}")
        A("s_nop 0")
        A(f"v_add_f32 v{g0}, 1.0, v{g0}")
        A(f"v_rcp_f32 v{g0}, v{g0}")
        A("s_nop 0")
        A(f"v_cvt_pk_bf16_f32 v{g0}, v{g0}, v{g0}")
        A(f"v_and_b32 v{g0}, 0xffff0000, v{g0}")
        A(f"v_mov_b32 v{g0+1}, {L_G}")
        A("s_mov_b64 exec, 1")
        A(f"ds_write_b32 v{g0+1}, v{g0}")
        A("s_mov_b64 exec, -1")
        A("s_waitcnt lgkmcnt(0)")
        A(f"{l}:")
        A("s_barrier")

        A("L_t4:")
        A(f"s_and_b32 s{sT1}, s{sS}, 3")
        A(f"s_cmp_lg_u32 s{sT1}, 0")
        A("s_cbranch_scc1 L_fin")
        ca, cb = RING, RING + 4
        A(f"s_lshr_b32 s{sT1}, s2, 2")
        A(f"s_lshl_b32 s{sT2}, s{sT1}, 14")
        A(f"s_lshl_b32 s{sT3}, s{sW}, 10")
        A(f"s_add_u32 s{sT2}, s{sT2}, s{sT3}")
        A(f"s_add_u32 s{sT2}, s{sT2}, {WS_C}")
        A(f"s_add_u32 s{sT3}, s{sT2}, 8192")
        lp = self.lab("h2")
        A(f"{lp}:")
        A(f"buffer_load_dwordx4 {vr(ca,4)}, v{vVoff}, {srd(sWS)}, s{sT2} offen sc1")
        A(f"buffer_load_dwordx4 {vr(cb,4)}, v{vVoff}, {srd(sWS)}, s{sT3} offen sc1")
        A(f"s_sub_u32 s{sSpin}, s{sSpin}, 1")
        A("s_cbranch_scc1 L_end")
        A("s_waitcnt vmcnt(0)")
        tagcheck([ca, cb], [])
        A(f"s_cbranch_vccnz {lp}")
        self.TS(10)
        for i in range(4):
            A(f"v_permlane32_swap_b32 v{ca+i}, v{cb+i}")
        for i in range(4):
            A(f"v_add_f32 v{ca+i}, v{ca+i}, v{cb+i}")
        for i in range(4):
            A(f"v_mov_b32 v{cb+i}, v{ca+i}")
        A("s_nop 1")
        for i in range(4):
            A(f"v_permlane16_swap_b32 v{ca+i}, v{cb+i}")
        for i in range(4):
            A(f"v_add_f32 v{ca+i}, v{ca+i}, v{cb+i}")
        for ror in (8, 4):
            A("s_nop 1")
            for i in range(4):
                A(f"v_add_f32_dpp v{ca+i}, v{ca+i}, v{ca+i} row_ror:{ror} row_mask:0xf bank_mask:0xf")
        A(f"v_lshrrev_b32 v{vA}, 5, v{vLane}")
        A(f"v_lshlrev_b32 v{vA}, 6, v{vA}")
        A(f"v_and_b32 v{vB}, 3, v{vLane}")
        A(f"v_lshl_add_u32 v{vA}, v{vB}, 4, v{vA}")
        A(f"s_lshl_b32 s{sT2}, s{sW}, 7")
        A(f"v_add_u32 v{vA}, s{sT2}, v{vA}")
        A("s_mov_b32 exec_lo, 0xf")
        A("s_mov_b32 exec_hi, 0xf")
        A(f"ds_write_b128 v{vA}, {vr(ca,4)} offset:{L_R}")
        A("s_mov_b64 exec, -1")
        A("s_waitcnt lgkmcnt(0)")
        A("s_barrier")
        A(f"s_cmp_lg_u32 s{sW}, 0")
        A("s_cbranch_scc1 L_fin")
        A(f"v_and_b32 v{vB}, 15, v{vLane}")
        A(f"v_lshlrev_b32 v{vA}, 2, v{vB}")
        A(f"v_add_u32 v{vAl}, {L_R}, v{vA}")
        fa = RING
        for w in range(8):
            A(f"ds_read2_b32 {vr(fa+2*w,2)}, v{vAl} offset0:{w*32} offset1:{w*32+16}")
        A(f"v_mov_b32 v{vD}, {L_G}")
        A(f"ds_read_b32 v{vD}, v{vD}")
        A(f"s_lshr_b32 s{sT2}, s{sT1}, 2")
        A(f"s_lshl_b32 s{sT2}, s{sT2}, 6")
        A(f"s_and_b32 s{sT3}, s{sT1}, 1")
        A(f"s_lshl_b32 s{sT3}, s{sT3}, 3")
        A(f"s_add_u32 s{sT2}, s{sT2}, s{sT3}")
        A(f"s_and_b32 s{sT3}, s{sT1}, 2")
        A(f"s_lshl_b32 s{sT3}, s{sT3}, 9")
        A(f"s_add_u32 s{sT2}, s{sT2}, s{sT3}")
        A(f"v_and_b32 v{vA}, 3, v{vB}")
        A(f"v_lshlrev_b32 v{vA}, 4, v{vA}")
        A(f"v_lshrrev_b32 v{vB}, 2, v{vB}")
        A(f"v_lshl_add_u32 v{vA}, v{vB}, 1, v{vA}")
        A("s_waitcnt lgkmcnt(0)")
        for st in (2, 4, 8):
            for w in range(0, 16, 2 * st):
                A(f"v_add_f32 v{fa+w}, v{fa+w}, v{fa+w+st}")
                A(f"v_add_f32 v{fa+w+1}, v{fa+w+1}, v{fa+w+st+1}")
        A(f"v_cvt_pk_bf16_f32 v{fa}, v{fa}, v{fa+1}")
        A(f"v_sub_f32 v{vD+1}, 1.0, v{vD}")
        A(f"v_and_b32 v{fa+1}, 0xffff0000, v{fa}")
        A(f"v_lshlrev_b32 v{fa}, 16, v{fa}")
        A(f"v_cvt_pk_bf16_f32 v{vD+1}, v{vD+1}, v{vD+1}")
        A(f"v_and_b32 v{vD+1}, 0xffff0000, v{vD+1}")
        A(f"v_mul_f32 v{fa}, v{fa}, v{vD}")
        A(f"v_mul_f32 v{fa+1}, v{fa+1}, v{vD+1}")
        A(f"v_cvt_pk_bf16_f32 v{fa}, v{fa}, v{fa+1}")
        A(f"v_and_b32 v{fa+1}, 0xffff0000, v{fa}")
        A(f"v_lshlrev_b32 v{fa}, 16, v{fa}")
        A(f"v_add_f32 v{fa}, v{fa}, v{fa+1}")
        A(f"v_cvt_pk_bf16_f32 v{fa}, v{fa}, v{fa}")
        A("s_mov_b64 exec, 0xffff")
        A(f"buffer_store_short v{fa}, v{vA}, {srd(sOUT)}, s{sT2} offen")
        A("s_cmp_lg_u32 s2, 0")
        A("s_cbranch_scc1 L_fin")
        A("s_mov_b64 exec, 1")
        A(f"v_mov_b32 v{vA}, {WS_EPOCH}")
        A(f"buffer_store_dword v{vT}, v{vA}, {srd(sWS)}, 0 offen sc1")
        A("L_fin:")
        if self.ts:
            A("s_mov_b64 exec, -1")
            self.TS(11)
            A(f"v_writelane_b32 v59, s{sJ}, 12")
            A("s_getreg_b32 s96, hwreg(HW_REG_XCC_ID)")
            A("s_nop 0")
            A("v_writelane_b32 v59, s96, 13")
            A(f"s_lshl_b32 s{sT1}, s2, 3")
            A(f"s_add_u32 s{sT1}, s{sT1}, s{sW}")
            A(f"s_lshl_b32 s{sT1}, s{sT1}, 6")
            A(f"s_add_u32 s{sT1}, s{sT1}, {WS_TS}")
            A(f"v_lshlrev_b32 v{vA}, 2, v{vLane}")
            A("s_mov_b64 exec, 0xffff")
            A(f"buffer_store_dword v59, v{vA}, {srd(sWS)}, s{sT1} offen")
            if self.dbgts:
                A(f"s_and_b32 s{sT1}, s{sW}, 3")
                A(f"s_cmp_lg_u32 s{sT1}, 0")
                A("s_cbranch_scc1 L_end")
                for (src, dst) in ((0, 13), (5, 14), (4, 15)):
                    A(f"v_readlane_b32 s96, v59, {src}")
                    A("s_nop 3")
                    A("s_not_b32 s96, s96")
                    A(f"v_writelane_b32 v59, s96, {dst}")
                A(f"global_atomic_umax v{vA}, v59, s[72:73] sc1")
        A("L_end:")
        A("s_endpgm")
        body = "\n".join(self.L)
        out = HDR + f"; @launch grid=(256,1,1) block=(512,1,1) lds={LDS_BYTES}\n"
        out += '.amdgcn_target "amdgcn-amd-amdhsa--gfx950"\n.text\n'
        out += f".globl {name}\n.p2align 8\n.type {name},@function\n" + body + "\n"
        out += f""".section .rodata,"a"
.p2align 6
.amdhsa_kernel {name}
  .amdhsa_next_free_vgpr 224
  .amdhsa_next_free_sgpr 100
  .amdhsa_accum_offset 224
  .amdhsa_group_segment_fixed_size 0
  .amdhsa_kernarg_size 112
  .amdhsa_user_sgpr_count 2
  .amdhsa_user_sgpr_kernarg_segment_ptr 1
  .amdhsa_system_sgpr_workgroup_id_x 1
.end_amdhsa_kernel
"""
        return out


if __name__ == "__main__":
    ap = argparse.ArgumentParser()
    ap.add_argument("-o", default="k.s")
    ap.add_argument("--D", type=int, default=4)
    ap.add_argument("--NS", type=int, default=12)
    ap.add_argument("--static", action="store_true")
    ap.add_argument("--P1", type=int, default=18)
    ap.add_argument("--F0", type=int, default=4)
    ap.add_argument("--ts", action="store_true")
    ap.add_argument("--dbgts", action="store_true")
    ap.add_argument("--kvpol", default="nt")
    ap.add_argument("--wqpol", default="nt")
    ap.add_argument("--wopol", default="nt")
    a = ap.parse_args()
    g = Gen(D=a.D, NS=16 if a.static else a.NS, dyn=not a.static, P1=a.P1, F0=a.F0, ts=a.ts or a.dbgts, dbgts=a.dbgts,
            kvpol=a.kvpol, wqpol=a.wqpol, wopol=a.wopol)
    open(a.o, "w").write(g.gen())
```

```python
import sys, struct, argparse

NAME = "gated_mix__sliding_block_cached__gqa_block_cached__decode_kernel"

HDR = """; Kernarg layout for this problem (112 bytes, ptrs only, base s[0:1]):
"""

def f2u(x):
    return struct.unpack("<I", struct.pack("<f", x))[0]

WS_EPOCH = 0
WS_CNT = 4096
WS_Q = 0x10000
WS_PML = 0x20000
WS_PO = 0x100000
WS_C = 0x200000
WS_TS = 0x300000
WS_SIZE = 0x400000

L_O = 0
L_ML = 32768
L_Q = 33280
L_OF = 35328
L_R = 35584
L_G = 36608
LDS_BYTES = 36864

class Gen:
    def __init__(self, D=4, NS=12, dyn=True, P1=18, F0=4, ts=False, kvpol="nt", wqpol="nt", wopol="nt",
                 name=NAME, spin=1 << 20, dbgts=False, echo=None):
        self.echo = echo
        self.dbgts = dbgts
        self.L = []
        self.D, self.NS, self.dyn, self.P1, self.F0, self.ts = D, NS, dyn, P1, F0, ts
        self.kvpol, self.wqpol, self.wopol = kvpol, wqpol, wopol
        self.name = name
        self.spin = spin
        self.uid = 0
        self.nts = 0

    def A(self, s):
        for line in s.split("\n"):
            self.L.append("    " + line.strip() if not line.strip().endswith(":") else line.strip())

    def lab(self, base):
        self.uid += 1
        return f"L{base}_{self.uid}"

    def TS(self, k):
        if not self.ts:
            return
        A = self.A
        A("s_memrealtime s[96:97]")
        A("s_waitcnt lgkmcnt(0)")
        A(f"v_writelane_b32 v59, s96, {k}")

    def gen(self):
        A = self.A
        D, NS, P1, F0 = self.D, self.NS, self.P1, self.F0
        name = self.name
        sKA, sVA, sKB, sVB, sWQ, sWO, sWS, sX, sOUT = 8, 12, 16, 20, 24, 28, 32, 36, 40
        sW, sBH, sS, sB, sH = 44, 45, 46, 47, 76
        sC, sJ, sLast, sStat, sOff, sTk, sT, sSpin = 77, 78, 79, 80, 81, 82, 83, 84
        sT0, sT1, sT2, sT3 = 85, 86, 87, 88
        sSelx, sSely, sMaskHi = 89, 90, 91
        sIdx = 92
        sAoff = 93
        vKoff, vVoff, vLane = 1, 2, 3
        vQ, vQB, vO1, vO2 = 4, 8, 12, 16
        vM, vL, vMC, vmX, vmY, vA, vB, vAl = 20, 21, 22, 23, 24, 25, 26, 27
        vD, vt, vXY = 28, 44, 48
        vTk, vOne, vT = 56, 57, 58
        vCnt = 60
        vtb = 61
        RING, vWO = 64, 192

        def srd(s):
            return f"s[{s}:{s+3}]"

        def vr(r, n):
            return f"v[{r}:{r+n-1}]"

        def slotK(p, b):
            return RING + (p * 8 + b) * 4

        def slotV(p, b):
            return RING + (p * 8 + 4 + b) * 4

        self.L.append(f"{name}:")
        A("s_cmp_ge_u32 s2, 256")
        A("s_cbranch_scc1 L_end")
        A("s_load_dwordx16 s[48:63], s[0:1], 0")
        A("s_load_dwordx8 s[64:71], s[0:1], 64")
        A("s_load_dwordx4 s[72:75], s[0:1], 96")
        if self.ts:
            A("v_mov_b32 v59, 0")
            A("s_memrealtime s[96:97]")
        A(f"v_lshrrev_b32 v{vA}, 6, v0")
        A(f"v_and_b32 v{vLane}, 63, v0")
        A(f"s_lshr_b32 s{sBH}, s2, 4")
        A(f"v_readfirstlane_b32 s{sW}, v{vA}")
        A(f"s_and_b32 s{sS}, s2, 15")
        A(f"s_lshr_b32 s{sB}, s{sBH}, 3")
        A(f"s_and_b32 s{sH}, s{sBH}, 7")
        A(f"v_lshrrev_b32 v{vA}, 2, v{vLane}")
        A(f"v_lshlrev_b32 v{vB}, 15, v{vA}")
        A(f"v_and_b32 v{vAl}, 3, v{vLane}")
        A(f"v_lshl_add_u32 v{vB}, v{vAl}, 4, v{vB}")
        A(f"v_lshlrev_b32 v{vA}, 3, v{vA}")
        A(f"s_and_b32 s{sT0}, s{sS}, 7")
        A(f"s_lshl_b32 s{sT0}, s{sT0}, 7")
        A(f"s_lshr_b32 s{sT1}, s{sS}, 3")
        A(f"s_lshl_b32 s{sT1}, s{sT1}, 6")
        A(f"s_add_u32 s{sT0}, s{sT0}, s{sT1}")
        A(f"s_lshl_b32 s{sT1}, s{sH}, 10")
        A(f"s_add_u32 s{sT1}, s{sT1}, s{sT0}")
        A(f"s_lshl_b32 s{sT2}, s{sW}, 19")
        A(f"s_add_u32 s{sT1}, s{sT1}, s{sT2}")
        A(f"s_lshl_b32 s{sT2}, s{sW}, 7")
        A(f"v_lshlrev_b32 v{vVoff}, 4, v{vLane}")
        A(f"s_cmp_eq_u32 s{sB}, 0")
        A("s_waitcnt lgkmcnt(0)")
        if self.ts:
            A("v_writelane_b32 v59, s96, 0")
        A(f"s_cselect_b32 s{sWQ}, s54, s64")
        A(f"s_cselect_b32 s{sWQ+1}, s55, s65")
        A(f"s_cselect_b32 s{sWO}, s56, s66")
        A(f"s_cselect_b32 s{sWO+1}, s57, s67")
        A(f"s_mov_b32 s{sWQ+2}, 0x400000")
        A(f"s_mov_b32 s{sWQ+3}, 0x20000")
        A(f"s_mov_b32 s{sX}, s48")
        A(f"s_mov_b32 s{sX+1}, s49")
        A(f"s_mov_b32 s{sX+2}, 2048")
        A(f"s_mov_b32 s{sX+3}, 0x20000")
        A(f"s_mov_b32 s{sWS}, s74")
        A(f"s_mov_b32 s{sWS+1}, s75")
        A(f"s_mov_b32 s{sWS+2}, {WS_SIZE}")
        A(f"s_mov_b32 s{sWS+3}, 0x20000")
        A(f"s_load_dword s{sT}, s[74:75], {WS_EPOCH}")
        A(f"s_lshl_b32 s{sT3}, s{sBH}, 3")
        A(f"s_add_u32 s{sT3}, s{sT3}, s{sW}")
        A(f"s_lshl_b32 s{sT3}, s{sT3}, 8")
        A(f"s_add_u32 s{sT3}, s{sT3}, {WS_CNT}")
        A(f"v_mov_b32 v{vCnt}, s{sT3}")
        if self.dyn:
            l = self.lab("noinit")
            A(f"s_cmp_lg_u32 s{sS}, 0")
            A(f"s_cbranch_scc1 {l}")
            A(f"v_mov_b32 v{vOne}, 0")
            A("s_mov_b64 exec, 1")
            A(f"buffer_store_dword v{vOne}, v{vCnt}, {srd(sWS)}, 0 offen sc1")
            A("s_mov_b64 exec, -1")
            A(f"{l}:")
        vXd, vWd = 208, 192
        A(f"buffer_load_dwordx2 {vr(vXd,2)}, v{vA}, {srd(sX)}, s{sT2} offen")
        A(f"buffer_load_dwordx2 {vr(vXd+2,2)}, v{vA}, {srd(sX)}, s{sT2} offen offset:1024")
        for i in range(4):
            A(f"buffer_load_dwordx4 {vr(vWd+4*i,4)}, v{vB}, {srd(sWQ)}, s{sT1} offen {self.wqpol}")
            if i < 3:
                A(f"s_add_u32 s{sT1}, s{sT1}, 8192")
        A(f"s_lshl_b32 s{sT1}, s{sBH}, 23")
        A(f"s_lshl_b32 s{sT2}, s{sS}, 16")
        A(f"s_add_u32 s{sT2}, s{sT2}, {(32768-4096)*256}")
        A(f"s_add_u32 s{sT2}, s{sT2}, s{sT1}")
        for (d, src, off, n) in ((sKA, 50, sT2, 65536), (sVA, 52, sT2, 65536), (sKB, 60, sT1, 0x800000), (sVB, 62, sT1, 0x800000)):
            A(f"s_add_u32 s{d}, s{src}, s{off}")
            A(f"s_addc_u32 s{d+1}, s{src+1}, 0")
            A(f"s_mov_b32 s{d+2}, {n}")
            A(f"s_mov_b32 s{d+3}, 0x20000")
        A(f"v_lshrrev_b32 v{vKoff}, 4, v{vLane}")
        A(f"v_lshlrev_b32 v{vKoff}, 6, v{vKoff}")
        A(f"v_lshl_add_u32 v{vKoff}, v{vAl}, 4, v{vKoff}")
        A(f"v_bfe_u32 v{vA}, v{vLane}, 2, 2")
        A(f"v_lshl_add_u32 v{vKoff}, v{vA}, 8, v{vKoff}")
        A(f"s_lshl_b32 s{sAoff}, s{sW}, 12")
        A(f"s_mul_i32 s{sStat}, s{sS}, {8*NS*4096}")
        A(f"s_add_u32 s{sStat}, s{sStat}, s{sAoff}")

        fill = []
        for t in range(4):
            for kv in range(2):
                for b in range(4):
                    fill.append((t, kv, b))
        self.fill_pos = 0

        def issue_fill(paced):
            t, kv, b = fill[self.fill_pos]
            if paced:
                A(f"s_waitcnt vmcnt({D-1})")
            if kv == 0 and b == 0:
                if t == 0:
                    A(f"s_mov_b32 s{sOff}, s{sAoff}")
                elif t == 1:
                    A(f"s_add_u32 s{sOff}, s{sAoff}, 32768")
                else:
                    A(f"s_mov_b32 s{sOff}, s{sStat}")
                    A(f"s_add_u32 s{sStat}, s{sStat}, 32768")
            sr = (sKA, sVA)[kv] if t < 2 else (sKB, sVB)[kv]
            r = slotK(t, b) if kv == 0 else slotV(t, b)
            vo = vKoff if kv == 0 else vVoff
            A(f"buffer_load_dwordx4 {vr(r,4)}, v{vo}, {srd(sr)}, s{sOff} offen offset:{b*1024} {self.kvpol}")
            self.fill_pos += 1

        for _ in range(F0):
            issue_fill(False)
        l = self.lab("nopf")
        A(f"s_cmp_lg_u32 s{sW}, 7")
        A(f"s_cbranch_scc1 {l}")
        A("s_getpc_b64 s[94:95]")
        A("L_pc:")
        A(f"v_lshlrev_b32 v{vA}, 7, v{vLane}")
        A(f"v_min_u32 v{vA}, L_end-L_pc, v{vA}")
        A(f"global_load_dword v{vtb}, v{vA}, s[94:95]")
        A(f"{l}:")
        A(f"s_mov_b32 s{sC}, {f2u(128 ** -0.5 * 1.4426950408889634):#x}")
        A(f"s_mov_b32 s{sWO+2}, 0x400000")
        A(f"s_mov_b32 s{sWO+3}, 0x20000")
        A(f"s_mov_b32 s{sOUT}, s70")
        A(f"s_mov_b32 s{sOUT+1}, s71")
        A(f"s_mov_b32 s{sOUT+2}, 2048")
        A(f"s_mov_b32 s{sOUT+3}, 0x20000")
        A(f"s_mov_b32 s{sSelx}, 0x0c0c0400")
        A(f"s_mov_b32 s{sSely}, 0x04000c0c")
        A(f"s_mov_b32 s{sMaskHi}, 0xffffff00")
        A(f"s_mov_b32 s{sJ}, 0")
        A(f"s_mov_b32 s{sLast}, 0x7fffffff")
        A(f"s_mov_b32 s{sSpin}, {self.spin}")
        A(f"v_and_b32 v{vA}, 1, v{vLane}")
        A(f"v_lshlrev_b32 v{vA}, 4, v{vA}")
        A(f"v_mov_b32 v{vmX}, 0xffff")
        A(f"v_lshlrev_b32 v{vmX}, v{vA}, v{vmX}")
        A(f"v_and_b32 v{vA}, 2, v{vLane}")
        A(f"v_cmp_eq_u32 vcc, 0, v{vA}")
        A(f"v_mov_b32 v{vOne}, 1")
        A(f"v_mov_b32 v{vL}, 0")
        A(f"v_cndmask_b32 v{vmY}, v{vmX}, 0, vcc")
        A(f"v_cndmask_b32 v{vmX}, 0, v{vmX}, vcc")
        A(f"v_mov_b32 v{vM}, 0xff7fffff")
        A(f"v_mov_b32 v{vMC}, 0xff7fffff")
        for i in range(8):
            A(f"v_mov_b32 v{vO1+i}, 0")
        A("s_waitcnt lgkmcnt(0)")
        A(f"s_mul_i32 s{sT}, s{sT}, 0x9e3779b1")
        A(f"s_add_u32 s{sT}, s{sT}, 0x7f4a7c15")
        A(f"v_mov_b32 v{vT}, s{sT}")
        A(f"s_waitcnt vmcnt({F0})")
        self.TS(1)
        acc = vD
        xs = vt
        tw = 52
        for b in range(2):
            for j in range(2):
                A(f"v_lshlrev_b32 v{xs+b*4+2*j}, 16, v{vXd+2*b+j}")
                A(f"v_and_b32 v{xs+b*4+2*j+1}, 0xffff0000, v{vXd+2*b+j}")
        for i in range(4):
            for j in range(4):
                w = vWd + 4 * i + j
                lo, hi = tw + (j & 1) * 2, tw + (j & 1) * 2 + 1
                A(f"v_lshlrev_b32 v{lo}, 16, v{w}")
                A(f"v_and_b32 v{hi}, 0xffff0000, v{w}")
                for b in range(2):
                    op = "v_mul_f32" if i == 0 else "v_fmac_f32"
                    A(f"{op} v{acc+8*b+2*j}, v{lo}, v{xs+4*b+i}")
                    A(f"{op} v{acc+8*b+2*j+1}, v{hi}, v{xs+4*b+i}")
            issue_fill(False)
        A("s_nop 1")
        for i in range(8):
            A(f"v_permlane32_swap_b32 v{acc+i}, v{acc+i+8}")
        for i in range(8):
            A(f"v_add_f32 v{acc+i}, v{acc+i}, v{acc+i+8}")
        A("s_nop 1")
        for i in range(4):
            A(f"v_permlane16_swap_b32 v{acc+i}, v{acc+i+4}")
        for i in range(4):
            A(f"v_add_f32 v{acc+i}, v{acc+i}, v{acc+i+4}")
        A("s_nop 1")
        for i in range(4):
            A(f"v_add_f32_dpp v{acc+i}, v{acc+i}, v{acc+i} row_ror:8 row_mask:0xf bank_mask:0xf")
        A("s_nop 1")
        for i in range(4):
            A(f"v_add_f32_dpp v{acc+i}, v{acc+i}, v{acc+i} row_ror:4 row_mask:0xf bank_mask:0xf")
        A(f"v_lshrrev_b32 v{vA}, 5, v{vLane}")
        A(f"v_lshlrev_b32 v{vA}, 7, v{vA}")
        A(f"v_and_b32 v{vB}, 3, v{vLane}")
        A(f"v_lshl_add_u32 v{vA}, v{vB}, 5, v{vA}")
        A(f"v_and_b32 v{vB}, 16, v{vLane}")
        A(f"v_add_u32 v{vA}, v{vA}, v{vB}")
        A(f"s_lshl_b32 s{sT1}, s{sW}, 8")
        A(f"v_add_u32 v{vA}, s{sT1}, v{vA}")
        A("s_mov_b32 exec_lo, 0x000f000f")
        A("s_mov_b32 exec_hi, 0x000f000f")
        A(f"ds_write_b128 v{vA}, {vr(acc,4)} offset:{L_Q}")
        A("s_mov_b64 exec, -1")
        A("s_waitcnt lgkmcnt(0)")
        A("s_barrier")
        l = self.lab("nosvc")
        A(f"s_and_b32 s{sT1}, s{sS}, 7")
        A(f"s_cmp_lg_u32 s{sT1}, s{sW}")
        A(f"s_cbranch_scc1 {l}")
        A(f"v_lshlrev_b32 v{vA}, 2, v{vLane}")
        for w in range(8):
            A(f"ds_read_b32 v{acc+w}, v{vA} offset:{L_Q+w*256}")
        A(f"s_lshl_b32 s{sT1}, s{sB}, 4")
        A(f"s_add_u32 s{sT1}, s{sT1}, s{sH}")
        A(f"s_lshl_b32 s{sT1}, s{sT1}, 11")
        A(f"s_lshl_b32 s{sT2}, s{sT0}, 1")
        A(f"s_add_u32 s{sT1}, s{sT1}, s{sT2}")
        A(f"s_add_u32 s{sT1}, s{sT1}, {WS_Q}")
        A(f"v_lshrrev_b32 v{vB}, 5, v{vLane}")
        A(f"v_lshlrev_b32 v{vB}, 14, v{vB}")
        A(f"v_and_b32 v{vA}, 31, v{vLane}")
        A(f"v_lshl_add_u32 v{vB}, v{vA}, 2, v{vB}")
        A("s_waitcnt lgkmcnt(0)")
        A(f"v_add_f32 v{acc}, v{acc}, v{acc+1}")
        A(f"v_add_f32 v{acc+2}, v{acc+2}, v{acc+3}")
        A(f"v_add_f32 v{acc+4}, v{acc+4}, v{acc+5}")
        A(f"v_add_f32 v{acc+6}, v{acc+6}, v{acc+7}")
        A(f"v_add_f32 v{acc}, v{acc}, v{acc+2}")
        A(f"v_add_f32 v{acc+4}, v{acc+4}, v{acc+6}")
        A(f"v_add_f32 v{acc}, v{acc}, v{acc+4}")
        A(f"v_mov_b32 v{acc+9}, v{vT}")
        A(f"v_mov_b32 v{acc+11}, v{vT}")
        A(f"v_mov_b32_dpp v{acc+1}, v{acc} quad_perm:[1,1,3,3] row_mask:0xf bank_mask:0xf")
        A("s_nop 0")
        A(f"v_cvt_pk_bf16_f32 v{acc+8}, v{acc}, v{acc+1}")
        A("s_nop 1")
        A(f"v_mov_b32_dpp v{acc+10}, v{acc+8} quad_perm:[2,2,2,2] row_mask:0xf bank_mask:0xf")
        A("s_mov_b32 exec_lo, 0x11111111")
        A("s_mov_b32 exec_hi, 0x11111111")
        A(f"buffer_store_dwordx4 {vr(acc+8,4)}, v{vB}, {srd(sWS)}, s{sT1} offen sc1")
        A("s_mov_b64 exec, -1")
        self.TS(2)
        A(f"{l}:")
        vQg = 208
        vQoff = vtb + 1
        A(f"v_lshlrev_b32 v{vQoff}, 1, v{vKoff}")
        A(f"s_lshl_b32 s{sT1}, s{sBH}, 11")
        A(f"s_add_u32 s{sT1}, s{sT1}, {WS_Q}")
        A(f"s_add_u32 s{sT2}, s{sT1}, 32768")

        def q_loads():
            A(f"buffer_load_dwordx4 {vr(vQg,4)}, v{vQoff}, {srd(sWS)}, s{sT1} offen sc1")
            A(f"buffer_load_dwordx4 {vr(vQg+4,4)}, v{vQoff}, {srd(sWS)}, s{sT1} offen offset:16 sc1")
            A(f"buffer_load_dwordx4 {vr(vQg+8,4)}, v{vQoff}, {srd(sWS)}, s{sT2} offen sc1")
            A(f"buffer_load_dwordx4 {vr(vQg+12,4)}, v{vQoff}, {srd(sWS)}, s{sT2} offen offset:16 sc1")

        while self.fill_pos < 32:
            if self.fill_pos == P1:
                q_loads()
            issue_fill(True)
        assert 32 - P1 >= D
        self.TS(3)
        lchk, lok = self.lab("qchk"), self.lab("qok")
        A(f"{lchk}:")
        A(f"v_xor_b32 v{vA}, v{vQg+1}, v{vT}")
        for i in range(1, 8):
            A(f"v_xor_b32 v{vB}, v{vQg+2*i+1}, v{vT}")
            A(f"v_or_b32 v{vA}, v{vA}, v{vB}")
        A(f"v_cmp_ne_u32 vcc, 0, v{vA}")
        A(f"s_cbranch_vccz {lok}")
        A(f"s_sub_u32 s{sSpin}, s{sSpin}, 1")
        A("s_cbranch_scc1 L_end")
        q_loads()
        A("s_waitcnt vmcnt(0)")
        A(f"s_branch {lchk}")
        A(f"{lok}:")
        for i in range(4):
            A(f"v_mov_b32 v{vQ+i}, v{vQg+2*i}")
        for i in range(4):
            A(f"v_mov_b32 v{vQB+i}, v{vQg+8+2*i}")
        A("s_mov_b64 vcc, 0")
        self.TS(4)

        DYN = 16 * (16 - NS)
        DYNBASE = 128 * NS * 4096
        A(".p2align 6")
        A("L_loop:")
        for p in range(4):
            lskip, ldyn, lreq, lnw = self.lab("skip"), self.lab("dyn"), self.lab("req"), self.lab("nw")
            A(f"s_cmp_gt_u32 s{sJ}, s{sLast}")
            A("s_cbranch_scc1 L_exit")
            A(f"s_cbranch_vccz {lnw}")
            A(f"s_cmp_lg_u32 s{sJ}, s{sLast}")
            A(f"s_cbranch_scc1 {lskip}")
            A("s_waitcnt vmcnt(0)")
            A(f"s_branch {lskip}")
            A(f"{lnw}:")
            A(f"s_cmp_lt_u32 s{sJ}, {NS-2}")
            A(f"s_cbranch_scc0 {ldyn}")
            A(f"s_mov_b32 s{sOff}, s{sStat}")
            A(f"s_add_u32 s{sStat}, s{sStat}, 32768")
            if self.dyn:
                A(f"s_cmp_lt_u32 s{sJ}, {NS-3}")
                A(f"s_cbranch_scc1 {lskip}")
                A(f"s_branch {lreq}")
            else:
                A(f"s_branch {lskip}")
            A(f"{ldyn}:")
            if self.dyn:
                A(f"v_readfirstlane_b32 s{sTk}, v{vTk}")
                A("s_nop 3")
                A(f"s_lshl_b32 s{sOff}, s{sTk}, 15")
                A(f"s_add_u32 s{sOff}, s{sOff}, s{sAoff}")
                A(f"s_add_u32 s{sOff}, s{sOff}, {DYNBASE}")
                A(f"s_cmp_lt_u32 s{sTk}, {DYN}")
                A(f"s_cbranch_scc1 {lreq}")
            A(f"s_add_u32 s{sLast}, s{sJ}, 3")
            A("s_mov_b64 vcc, -1")
            if self.dyn:
                A(f"s_branch {lskip}")
                A(f"{lreq}:")
                A(f"v_mov_b32 v{vTk}, 1")
                A("s_mov_b64 exec, 1")
                A(f"buffer_atomic_add v{vTk}, v{vCnt}, {srd(sWS)}, 0 offen sc0 sc1")
                A("s_mov_b64 exec, -1")
            A(f"{lskip}:")

            def IP(kv, b):
                l = self.lab("ip")
                A(f"s_cbranch_vccnz {l}")
                A(f"s_waitcnt vmcnt({D-1})")
                r = slotK(p, b) if kv == 0 else slotV(p, b)
                A(f"buffer_load_dwordx4 {vr(r,4)}, v{(vKoff, vVoff)[kv]}, {srd((sKB, sVB)[kv])}, s{sOff} offen offset:{b*1024} {self.kvpol}")
                A(f"{l}:")

            for b in range(4):
                A(f"v_mfma_f32_16x16x32_bf16 {vr(vD+4*b,4)}, {vr(slotK(p,b),4)}, {vr(vQ,4)}, 0")
            IP(0, 0)
            A("s_nop 3")
            for b in range(4):
                d = vD + 4 * b
                A(f"v_mov_b32_dpp v{vt+b}, v{d} quad_perm:[0,0,0,0] row_mask:0xf bank_mask:0xf")
                for q in range(1, 4):
                    A(f"v_add_f32_dpp v{vt+b}, v{d+q}, v{vt+b} quad_perm:[{q},{q},{q},{q}] row_mask:0xf bank_mask:0xf")
            IP(0, 1)
            A(f"v_max3_f32 v{vA}, v{vt}, v{vt+1}, v{vt+2}")
            A(f"v_max3_f32 v{vA}, v{vA}, v{vt+3}, v{vM}")
            A(f"v_mov_b32 v{vB}, v{vA}")
            A("s_nop 1")
            A(f"v_permlane16_swap_b32 v{vA}, v{vB}")
            A(f"v_max_f32 v{vA}, v{vA}, v{vB}")
            A(f"v_mov_b32 v{vB}, v{vA}")
            A("s_nop 1")
            A(f"v_permlane32_swap_b32 v{vA}, v{vB}")
            A(f"v_max_f32 v{vM}, v{vA}, v{vB}")
            IP(0, 2)
            A(f"v_mul_f32 v{vA}, s{sC}, v{vM}")
            A(f"v_sub_f32 v{vAl}, v{vMC}, v{vA}")
            A(f"v_mov_b32 v{vMC}, v{vA}")
            A(f"v_exp_f32 v{vAl}, v{vAl}")
            for b in range(4):
                A(f"v_fma_f32 v{vt+b}, v{vt+b}, s{sC}, -v{vA}")
            for b in range(4):
                A(f"v_exp_f32 v{vt+b}, v{vt+b}")
            IP(0, 3)
            for i in range(8):
                A(f"v_mul_f32 v{vO1+i}, v{vO1+i}, v{vAl}")
            for b in range(4):
                A(f"v_cvt_pk_bf16_f32 v{vD+b}, v{vt+b}, v{vt+b}")
            A(f"v_fma_f32 v{vL}, v{vL}, v{vAl}, v{vt}")
            A(f"v_add_f32 v{vA}, v{vt+1}, v{vt+2}")
            for b in range(4):
                A(f"v_and_b32 v{vXY+2*b}, v{vD+b}, v{vmX}")
                A(f"v_and_b32 v{vXY+2*b+1}, v{vD+b}, v{vmY}")
            A(f"v_add_f32 v{vL}, v{vL}, v{vt+3}")
            A(f"v_add_f32 v{vL}, v{vL}, v{vA}")
            for b in range(4):
                r = slotV(p, b)
                A(f"v_mfma_f32_16x16x16_bf16 {vr(vO1,4)}, {vr(r,2)}, {vr(vXY+2*b,2)}, {vr(vO1,4)}")
                A(f"v_mfma_f32_16x16x16_bf16 {vr(vO2,4)}, {vr(r+2,2)}, {vr(vXY+2*b,2)}, {vr(vO2,4)}")
                IP(1, b)
            if p == 1:
                A(f"s_cmp_eq_u32 s{sJ}, 1")
                A("s_cbranch_scc1 L_flushA")
                A("L_flushA_ret:")
            A(f"s_add_u32 s{sJ}, s{sJ}, 1")
        A("s_branch L_loop")

        def state_to_lds(br):
            A(f"v_mov_b32 v{vB}, v{vL}")
            A(f"s_lshl_b32 s{sT1}, s{sW}, 11")
            A(f"v_add_u32 v{vA}, s{sT1}, v{vVoff}")
            A(f"v_permlane16_swap_b32 v{vL}, v{vB}")
            A(f"v_add_f32 v{vL}, v{vL}, v{vB}")
            A(f"v_mov_b32 v{vB}, v{vL}")
            A(f"s_lshl_b32 s{sT1}, s{sW}, 3")
            A("s_nop 0")
            A(f"v_permlane32_swap_b32 v{vL}, v{vB}")
            A(f"v_add_f32 v{vL}, v{vL}, v{vB}")
            A(f"v_bfe_u32 v{vB}, v{vLane}, 2, 2")
            A(f"v_lshlrev_b32 v{vB}, 6, v{vB}")
            A(f"v_add_u32 v{vB}, s{sT1}, v{vB}")
            A(f"ds_write_b128 v{vA}, {vr(vO1,4)} offset:{L_O+br*16384}")
            A(f"ds_write_b128 v{vA}, {vr(vO2,4)} offset:{L_O+br*16384+1024}")
            A("s_mov_b64 exec, 0x1111")
            A(f"ds_write_b64 v{vB}, {vr(vM,2)} offset:{L_ML+br*256}")
            A("s_mov_b64 exec, -1")

        A("L_flushA:")
        A("s_nop 7")
        state_to_lds(0)
        A("s_waitcnt lgkmcnt(0)")
        A(f"v_mov_b32 v{vM}, 0xff7fffff")
        A(f"v_mov_b32 v{vMC}, 0xff7fffff")
        A(f"v_mov_b32 v{vL}, 0")
        for i in range(8):
            A(f"v_mov_b32 v{vO1+i}, 0")
        for i in range(4):
            A(f"v_mov_b32 v{vQ+i}, v{vQB+i}")
        A("s_branch L_flushA_ret")

        A("L_exit:")
        self.TS(5)
        l = self.lab("nowo")
        A(f"s_cmp_ge_u32 s{sW}, 4")
        A(f"s_cbranch_scc1 {l}")
        A(f"s_lshl_b32 s{sT1}, s{sH}, 19")
        A(f"s_lshl_b32 s{sT2}, s{sS}, 15")
        A(f"s_add_u32 s{sT1}, s{sT1}, s{sT2}")
        A(f"s_lshl_b32 s{sT2}, s{sW}, 8")
        A(f"s_add_u32 s{sT1}, s{sT1}, s{sT2}")
        A(f"s_add_u32 s{sT2}, s{sT1}, 4096")
        A(f"v_lshrrev_b32 v{vA}, 4, v{vLane}")
        A(f"v_lshlrev_b32 v{vA}, 13, v{vA}")
        A(f"v_and_b32 v{vB}, 15, v{vLane}")
        A(f"v_lshl_add_u32 v{vA}, v{vB}, 4, v{vA}")
        for i in range(8):
            A(f"buffer_load_dwordx4 {vr(vWO+4*i,4)}, v{vA}, {srd(sWO)}, s{(sT1, sT2)[i>>2]} offen offset:{(i&3)*1024} {self.wopol}")
        A(f"{l}:")
        l = self.lab("nogate")
        A(f"s_and_b32 s{sT1}, s{sS}, 3")
        A(f"s_lshl_b32 s{sT1}, s{sT1}, 3")
        A(f"s_or_b32 s{sT1}, s{sT1}, s{sW}")
        A(f"s_cmp_lg_u32 s{sT1}, 7")
        A(f"s_cbranch_scc1 {l}")
        A(f"s_lshl_b32 s{sT1}, s{sS}, 7")
        A(f"s_and_b32 s{sT1}, s{sT1}, 1024")
        A(f"buffer_load_dwordx4 {vr(vWO,4)}, v{vVoff}, {srd(sX)}, s{sT1} offen")
        A(f"global_load_dwordx4 {vr(vWO+4,4)}, v{vVoff}, s[68:69]")
        A(f"{l}:")
        state_to_lds(1)
        A("s_waitcnt lgkmcnt(0)")
        A("s_barrier")
        self.TS(6)
        A(f"s_cmp_ge_u32 s{sW}, 4")
        A("s_cbranch_scc1 L_t2")
        ml = RING
        od = RING + 16
        A(f"s_lshr_b32 s{sT1}, s{sW}, 1")
        A(f"s_and_b32 s{sT2}, s{sW}, 1")
        A(f"s_lshl_b32 s{sT3}, s{sT1}, 8")
        A(f"v_bfe_u32 v{vB}, v{vLane}, 2, 2")
        A(f"v_lshlrev_b32 v{vA}, 6, v{vB}")
        A(f"v_add_u32 v{vA}, s{sT3}, v{vA}")
        for i in range(4):
            A(f"ds_read_b128 {vr(ml+4*i,4)}, v{vA} offset:{L_ML+16*i}")
        A(f"s_lshl_b32 s{sT3}, s{sT1}, 14")
        A(f"s_lshl_b32 s{sT0}, s{sT2}, 10")
        A(f"s_add_u32 s{sT3}, s{sT3}, s{sT0}")
        A(f"v_add_u32 v{vA}, s{sT3}, v{vVoff}")
        for w in range(8):
            A(f"ds_read_b128 {vr(od+4*w,4)}, v{vA} offset:{L_O+2048*w}")
        A(f"s_lshl_b32 s{sIdx}, s{sT1}, 8")
        A(f"s_add_u32 s{sIdx}, s{sIdx}, s2")
        A(f"v_lshrrev_b32 v{vA}, 2, v{vLane}")
        A(f"v_lshlrev_b32 v{vA}, 7, v{vA}")
        A(f"v_and_b32 v{vAl}, 3, v{vLane}")
        A(f"v_lshl_add_u32 v{vA}, v{vAl}, 4, v{vA}")
        A(f"s_lshl_b32 s{sT3}, s{sIdx}, 11")
        A(f"s_lshl_b32 s{sT0}, s{sT2}, 6")
        A(f"s_add_u32 s{sT3}, s{sT3}, s{sT0}")
        A(f"s_add_u32 s{sT3}, s{sT3}, {WS_PO}")
        tb = vD
        A(f"v_and_b32 v{tb}, 0xff, v{vT}")
        A(f"v_bfe_u32 v{tb+1}, v{vT}, 8, 8")
        A(f"v_bfe_u32 v{tb+2}, v{vT}, 16, 8")
        A(f"v_lshrrev_b32 v{tb+3}, 24, v{vT}")
        A("s_waitcnt lgkmcnt(8)")
        Mx, Ls = vD + 4, vD + 5
        A(f"v_max3_f32 v{Mx}, v{ml}, v{ml+2}, v{ml+4}")
        A(f"v_max3_f32 v{Mx}, v{Mx}, v{ml+6}, v{ml+8}")
        A(f"v_max3_f32 v{Mx}, v{Mx}, v{ml+10}, v{ml+12}")
        A(f"v_max_f32 v{Mx}, v{Mx}, v{ml+14}")
        for w in range(8):
            A(f"v_sub_f32 v{ml+2*w}, v{ml+2*w}, v{Mx}")
        for w in range(8):
            A(f"v_mul_f32 v{ml+2*w}, s{sC}, v{ml+2*w}")
        for w in range(8):
            A(f"v_exp_f32 v{ml+2*w}, v{ml+2*w}")
        A(f"v_mov_b32 v{vD+6}, v{vT}")
        A(f"v_mov_b32 v{vD+7}, v{vT}")
        A(f"v_mul_f32 v{Ls}, v{ml}, v{ml+1}")
        for w in range(1, 8):
            A(f"v_fmac_f32 v{Ls}, v{ml+2*w}, v{ml+2*w+1}")
        A("s_waitcnt lgkmcnt(0)")
        res = vD + 8
        for i in range(4):
            A(f"v_mul_f32 v{res+i}, v{ml}, v{od+i}")
        for w in range(1, 8):
            for i in range(4):
                A(f"v_fmac_f32 v{res+i}, v{ml+2*w}, v{od+4*w+i}")
        for i in range(4):
            A(f"v_and_or_b32 v{res+i}, v{res+i}, s{sMaskHi}, v{tb+i}")
        A(f"buffer_store_dwordx4 {vr(res,4)}, v{vA}, {srd(sWS)}, s{sT3} offen sc1")
        l = self.lab("noml")
        A(f"s_cmp_lg_u32 s{sT2}, 0")
        A(f"s_cbranch_scc1 {l}")
        A(f"s_lshl_b32 s{sT3}, s{sIdx}, 6")
        A(f"s_add_u32 s{sT3}, s{sT3}, {WS_PML}")
        A(f"v_lshlrev_b32 v{vB}, 4, v{vB}")
        A("s_mov_b64 exec, 0x1111")
        A(f"buffer_store_dwordx4 {vr(Mx,4)}, v{vB}, {srd(sWS)}, s{sT3} offen sc1")
        A("s_mov_b64 exec, -1")
        A(f"{l}:")
        self.TS(7)
        mk = vXY
        A(f"v_and_b32 v{vA}, 1, v{vLane}")
        A(f"v_lshlrev_b32 v{vA}, 4, v{vA}")
        A(f"v_mov_b32 v{vB}, 0xffff")
        A(f"v_lshlrev_b32 v{vB}, v{vA}, v{vB}")
        A(f"v_bfe_u32 v{vA}, v{vLane}, 1, 2")
        for j in range(4):
            A(f"v_cmp_eq_u32 vcc, {j}, v{vA}")
            A("s_nop 1")
            A(f"v_cndmask_b32 v{mk+j}, 0, v{vB}, vcc")
        A(f"v_bfe_u32 v{vA}, v{vLane}, 3, 1")
        A(f"v_lshlrev_b32 v{vA}, 7, v{vA}")
        A(f"v_lshrrev_b32 v{vB}, 4, v{vLane}")
        A(f"v_lshl_add_u32 v{vA}, v{vB}, 5, v{vA}")
        A(f"v_lshrrev_b32 v{vB}, 2, v{vLane}")
        A(f"v_lshlrev_b32 v{vB}, 14, v{vB}")
        A(f"v_lshl_add_u32 v{vB}, v{vAl}, 4, v{vB}")
        A(f"s_lshl_b32 s{sT3}, s{sW}, 18")
        A(f"s_lshl_b32 s{sT0}, s2, 6")
        A(f"s_add_u32 s{sT3}, s{sT3}, s{sT0}")
        A(f"s_add_u32 s{sT3}, s{sT3}, {WS_C}")
        A("s_barrier")
        ob = RING
        bo = RING + 8
        A(f"ds_read_b128 {vr(ob,4)}, v{vA} offset:{L_OF}")
        A(f"ds_read_b128 {vr(ob+4,4)}, v{vA} offset:{L_OF+16}")
        A("s_waitcnt lgkmcnt(0)")
        for i in range(8):
            for j in range(4):
                A(f"v_and_b32 v{bo+4*i+j}, v{ob+i}, v{mk+j}")
        A("s_waitcnt vmcnt(0)")
        for i in range(8):
            c = "0" if i == 0 else vr(res, 4)
            A(f"v_mfma_f32_16x16x32_bf16 {vr(res,4)}, {vr(vWO+4*i,4)}, {vr(bo+4*i,4)}, {c}")
        A("s_nop 7")
        for i in range(4):
            A(f"v_and_or_b32 v{res+i}, v{res+i}, s{sMaskHi}, v{tb+i}")
        A(f"buffer_store_dwordx4 {vr(res,4)}, v{vB}, {srd(sWS)}, s{sT3} offen sc1")
        self.TS(9)
        A("s_branch L_t4")

        A("L_t2:")
        A(f"s_cmp_ge_u32 s{sW}, 6")
        A("s_cbranch_scc1 L_t2b")
        oa, obb, mla, mlb = RING, RING + 4, RING + 8, RING + 12
        A(f"s_and_b32 s{sT1}, s{sW}, 1")
        A(f"s_lshl_b32 s{sT1}, s{sT1}, 7")
        A(f"s_lshl_b32 s{sT2}, s{sB}, 8")
        A(f"s_add_u32 s{sT1}, s{sT1}, s{sT2}")
        A(f"s_lshl_b32 s{sT2}, s{sH}, 4")
        A(f"s_add_u32 s{sT1}, s{sT1}, s{sT2}")
        A(f"s_and_b32 s{sT2}, s{sS}, 3")
        A(f"s_lshl_b32 s{sT2}, s{sT2}, 9")
        A(f"s_lshr_b32 s{sT3}, s{sS}, 2")
        A(f"s_lshl_b32 s{sT0}, s{sT3}, 7")
        A(f"s_add_u32 s{sT2}, s{sT2}, s{sT0}")
        A(f"s_lshl_b32 s{sT0}, s{sT1}, 11")
        A(f"s_add_u32 s{sT2}, s{sT2}, s{sT0}")
        A(f"s_add_u32 s{sT2}, s{sT2}, {WS_PO}")
        A(f"s_add_u32 s{sIdx}, s{sT2}, 16384")
        A(f"s_lshl_b32 s{sT1}, s{sT1}, 6")
        A(f"s_lshl_b32 s{sT3}, s{sT3}, 4")
        A(f"s_add_u32 s{sT1}, s{sT1}, s{sT3}")
        A(f"s_add_u32 s{sT1}, s{sT1}, {WS_PML}")
        A(f"v_lshrrev_b32 v{vB}, 3, v{vLane}")
        A(f"v_lshlrev_b32 v{vA}, 11, v{vB}")
        A(f"v_and_b32 v{vAl}, 7, v{vLane}")
        A(f"v_lshl_add_u32 v{vA}, v{vAl}, 4, v{vA}")
        A(f"v_lshlrev_b32 v{vB}, 6, v{vB}")
        lp = self.lab("h1")
        A(f"{lp}:")
        A(f"buffer_load_dwordx4 {vr(mla,4)}, v{vB}, {srd(sWS)}, s{sT1} offen sc1")
        A(f"buffer_load_dwordx4 {vr(mlb,4)}, v{vB}, {srd(sWS)}, s{sT1} offen offset:512 sc1")
        A(f"buffer_load_dwordx4 {vr(oa,4)}, v{vA}, {srd(sWS)}, s{sT2} offen sc1")
        A(f"buffer_load_dwordx4 {vr(obb,4)}, v{vA}, {srd(sWS)}, s{sIdx} offen sc1")
        A(f"s_sub_u32 s{sSpin}, s{sSpin}, 1")
        A("s_cbranch_scc1 L_end")
        A("s_waitcnt vmcnt(0)")

        def tagcheck(regs, extra):
            n = 0
            for r in regs:
                A(f"v_perm_b32 v{vD+n}, v{r+1}, v{r}, s{sSelx}")
                A(f"v_perm_b32 v{vD+n+1}, v{r+3}, v{r+2}, s{sSely}")
                A(f"v_or_b32 v{vD+n}, v{vD+n}, v{vD+n+1}")
                A(f"v_xor_b32 v{vD+n}, v{vD+n}, v{vT}")
                n += 1
            for r in extra:
                A(f"v_xor_b32 v{vD+n}, v{r}, v{vT}")
                n += 1
            for i in range(1, n):
                A(f"v_or_b32 v{vD}, v{vD}, v{vD+i}")
            A(f"v_cmp_ne_u32 vcc, 0, v{vD}")

        tagcheck([oa, obb], [mla + 2, mlb + 2])
        A(f"s_cbranch_vccnz {lp}")
        self.TS(8)

        def xreduce(regs, op, tmp):
            A("s_nop 1")
            for r in regs:
                A(f"{op}_dpp v{r}, v{r}, v{r} row_ror:8 row_mask:0xf bank_mask:0xf")
            for sw in ("v_permlane16_swap_b32", "v_permlane32_swap_b32"):
                for i, r in enumerate(regs):
                    A(f"v_mov_b32 v{tmp+i}, v{r}")
                A("s_nop 1")
                for i, r in enumerate(regs):
                    A(f"{sw} v{r}, v{tmp+i}")
                for i, r in enumerate(regs):
                    A(f"{op} v{r}, v{r}, v{tmp+i}")

        Mg = vD
        A(f"v_max_f32 v{Mg}, v{mla}, v{mlb}")
        xreduce([Mg], "v_max_f32", vD + 8)
        A(f"v_sub_f32 v{mla}, v{mla}, v{Mg}")
        A(f"v_sub_f32 v{mlb}, v{mlb}, v{Mg}")
        A(f"v_mul_f32 v{mla}, s{sC}, v{mla}")
        A(f"v_mul_f32 v{mlb}, s{sC}, v{mlb}")
        A(f"v_exp_f32 v{mla}, v{mla}")
        A(f"v_exp_f32 v{mlb}, v{mlb}")
        A("s_nop 0")
        A(f"v_mul_f32 v{vD+1}, v{mla}, v{mla+1}")
        A(f"v_fmac_f32 v{vD+1}, v{mlb}, v{mlb+1}")
        for i in range(4):
            A(f"v_mul_f32 v{vD+2+i}, v{mla}, v{oa+i}")
        for i in range(4):
            A(f"v_fmac_f32 v{vD+2+i}, v{mlb}, v{obb+i}")
        xreduce([vD + 1 + i for i in range(5)], "v_add_f32", vD + 8)
        A(f"v_rcp_f32 v{vD+1}, v{vD+1}")
        A(f"s_and_b32 s{sT1}, s{sW}, 1")
        A(f"s_lshl_b32 s{sT1}, s{sT1}, 7")
        A(f"v_lshlrev_b32 v{vA}, 2, v{vAl}")
        A(f"v_add_u32 v{vA}, s{sT1}, v{vA}")
        for i in range(4):
            A(f"v_mul_f32 v{vD+2+i}, v{vD+2+i}, v{vD+1}")
        for i in range(4):
            A(f"v_cvt_pk_bf16_f32 v{vD+2+i}, v{vD+2+i}, v{vD+2+i}")
        A("s_mov_b64 exec, 0xff")
        for i in range(4):
            A(f"ds_write_b32 v{vA}, v{vD+2+i} offset:{L_OF+32*i}")
        A("s_mov_b64 exec, -1")
        A("s_waitcnt lgkmcnt(0)")
        A("s_barrier")
        A("s_branch L_t4")

        A("L_t2b:")
        l = self.lab("nog2")
        A(f"s_and_b32 s{sT1}, s{sS}, 3")
        A(f"s_lshl_b32 s{sT1}, s{sT1}, 3")
        A(f"s_or_b32 s{sT1}, s{sT1}, s{sW}")
        A(f"s_cmp_lg_u32 s{sT1}, 7")
        A(f"s_cbranch_scc1 {l}")
        A("s_waitcnt vmcnt(0)")
        g0 = RING
        for j in range(4):
            A(f"v_lshlrev_b32 v{g0+4*j}, 16, v{vWO+j}")
            A(f"v_and_b32 v{g0+4*j+1}, 0xffff0000, v{vWO+j}")
            A(f"v_lshlrev_b32 v{g0+4*j+2}, 16, v{vWO+4+j}")
            A(f"v_and_b32 v{g0+4*j+3}, 0xffff0000, v{vWO+4+j}")
        for j in range(4):
            A(f"v_mul_f32 v{g0+4*j}, v{g0+4*j}, v{g0+4*j+2}")
            A(f"v_mul_f32 v{g0+4*j+1}, v{g0+4*j+1}, v{g0+4*j+3}")
        for j in range(4):
            A(f"v_cvt_pk_bf16_f32 v{g0+4*j}, v{g0+4*j}, v{g0+4*j+1}")
        for j in range(4):
            A(f"v_and_b32 v{g0+4*j+1}, 0xffff0000, v{g0+4*j}")
            A(f"v_lshlrev_b32 v{g0+4*j}, 16, v{g0+4*j}")
        for j in range(4):
            A(f"v_add_f32 v{g0+4*j}, v{g0+4*j}, v{g0+4*j+1}")
        A(f"v_add_f32 v{g0}, v{g0}, v{g0+4}")
        A(f"v_add_f32 v{g0+8}, v{g0+8}, v{g0+12}")
        A(f"v_add_f32 v{g0}, v{g0}, v{g0+8}")
        for ror in (1, 2, 4):
            A("s_nop 1")
            A(f"v_add_f32_dpp v{g0}, v{g0}, v{g0} row_ror:{ror} row_mask:0xf bank_mask:0xf")
        xreduce([g0], "v_add_f32", g0 + 1)
        A(f"v_cvt_pk_bf16_f32 v{g0}, v{g0}, v{g0}")
        A(f"v_and_b32 v{g0}, 0xffff0000, v{g0}")
        A(f"v_mul_f32 v{g0}, {f2u(-1.4426950408889634):#x}, v{g0}")
        A(f"v_exp_f32 v{g0}, v{g0}")
        A("s_nop 0")
        A(f"v_add_f32 v{g0}, 1.0, v{g0}")
        A(f"v_rcp_f32 v{g0}, v{g0}")
        A("s_nop 0")
        A(f"v_cvt_pk_bf16_f32 v{g0}, v{g0}, v{g0}")
        A(f"v_and_b32 v{g0}, 0xffff0000, v{g0}")
        A(f"v_mov_b32 v{g0+1}, {L_G}")
        A("s_mov_b64 exec, 1")
        A(f"ds_write_b32 v{g0+1}, v{g0}")
        A("s_mov_b64 exec, -1")
        A("s_waitcnt lgkmcnt(0)")
        A(f"{l}:")
        A("s_barrier")

        A("L_t4:")
        A(f"s_and_b32 s{sT1}, s{sS}, 3")
        A(f"s_cmp_lg_u32 s{sT1}, 0")
        A("s_cbranch_scc1 L_fin")
        ca, cb = RING, RING + 4
        A(f"s_lshr_b32 s{sT1}, s2, 2")
        A(f"s_lshl_b32 s{sT2}, s{sT1}, 14")
        A(f"s_lshl_b32 s{sT3}, s{sW}, 10")
        A(f"s_add_u32 s{sT2}, s{sT2}, s{sT3}")
        A(f"s_add_u32 s{sT2}, s{sT2}, {WS_C}")
        A(f"s_add_u32 s{sT3}, s{sT2}, 8192")
        lp = self.lab("h2")
        A(f"{lp}:")
        A(f"buffer_load_dwordx4 {vr(ca,4)}, v{vVoff}, {srd(sWS)}, s{sT2} offen sc1")
        A(f"buffer_load_dwordx4 {vr(cb,4)}, v{vVoff}, {srd(sWS)}, s{sT3} offen sc1")
        A(f"s_sub_u32 s{sSpin}, s{sSpin}, 1")
        A("s_cbranch_scc1 L_end")
        A("s_waitcnt vmcnt(0)")
        tagcheck([ca, cb], [])
        A(f"s_cbranch_vccnz {lp}")
        self.TS(10)
        for i in range(4):
            A(f"v_permlane32_swap_b32 v{ca+i}, v{cb+i}")
        for i in range(4):
            A(f"v_add_f32 v{ca+i}, v{ca+i}, v{cb+i}")
        for i in range(4):
            A(f"v_mov_b32 v{cb+i}, v{ca+i}")
        A("s_nop 1")
        for i in range(4):
            A(f"v_permlane16_swap_b32 v{ca+i}, v{cb+i}")
        for i in range(4):
            A(f"v_add_f32 v{ca+i}, v{ca+i}, v{cb+i}")
        for ror in (8, 4):
            A("s_nop 1")
            for i in range(4):
                A(f"v_add_f32_dpp v{ca+i}, v{ca+i}, v{ca+i} row_ror:{ror} row_mask:0xf bank_mask:0xf")
        A(f"v_lshrrev_b32 v{vA}, 5, v{vLane}")
        A(f"v_lshlrev_b32 v{vA}, 6, v{vA}")
        A(f"v_and_b32 v{vB}, 3, v{vLane}")
        A(f"v_lshl_add_u32 v{vA}, v{vB}, 4, v{vA}")
        A(f"s_lshl_b32 s{sT2}, s{sW}, 7")
        A(f"v_add_u32 v{vA}, s{sT2}, v{vA}")
        A("s_mov_b32 exec_lo, 0xf")
        A("s_mov_b32 exec_hi, 0xf")
        A(f"ds_write_b128 v{vA}, {vr(ca,4)} offset:{L_R}")
        A("s_mov_b64 exec, -1")
        A("s_waitcnt lgkmcnt(0)")
        A("s_barrier")
        A(f"s_cmp_lg_u32 s{sW}, 0")
        A("s_cbranch_scc1 L_fin")
        A(f"v_and_b32 v{vB}, 15, v{vLane}")
        A(f"v_lshlrev_b32 v{vA}, 2, v{vB}")
        A(f"v_add_u32 v{vAl}, {L_R}, v{vA}")
        fa = RING
        for w in range(8):
            A(f"ds_read2_b32 {vr(fa+2*w,2)}, v{vAl} offset0:{w*32} offset1:{w*32+16}")
        A(f"v_mov_b32 v{vD}, {L_G}")
        A(f"ds_read_b32 v{vD}, v{vD}")
        A(f"s_lshr_b32 s{sT2}, s{sT1}, 2")
        A(f"s_lshl_b32 s{sT2}, s{sT2}, 6")
        A(f"s_and_b32 s{sT3}, s{sT1}, 1")
        A(f"s_lshl_b32 s{sT3}, s{sT3}, 3")
        A(f"s_add_u32 s{sT2}, s{sT2}, s{sT3}")
        A(f"s_and_b32 s{sT3}, s{sT1}, 2")
        A(f"s_lshl_b32 s{sT3}, s{sT3}, 9")
        A(f"s_add_u32 s{sT2}, s{sT2}, s{sT3}")
        A(f"v_and_b32 v{vA}, 3, v{vB}")
        A(f"v_lshlrev_b32 v{vA}, 4, v{vA}")
        A(f"v_lshrrev_b32 v{vB}, 2, v{vB}")
        A(f"v_lshl_add_u32 v{vA}, v{vB}, 1, v{vA}")
        A("s_waitcnt lgkmcnt(0)")
        for st in (2, 4, 8):
            for w in range(0, 16, 2 * st):
                A(f"v_add_f32 v{fa+w}, v{fa+w}, v{fa+w+st}")
                A(f"v_add_f32 v{fa+w+1}, v{fa+w+1}, v{fa+w+st+1}")
        A(f"v_cvt_pk_bf16_f32 v{fa}, v{fa}, v{fa+1}")
        A(f"v_sub_f32 v{vD+1}, 1.0, v{vD}")
        A(f"v_and_b32 v{fa+1}, 0xffff0000, v{fa}")
        A(f"v_lshlrev_b32 v{fa}, 16, v{fa}")
        A(f"v_cvt_pk_bf16_f32 v{vD+1}, v{vD+1}, v{vD+1}")
        A(f"v_and_b32 v{vD+1}, 0xffff0000, v{vD+1}")
        A(f"v_mul_f32 v{fa}, v{fa}, v{vD}")
        A(f"v_mul_f32 v{fa+1}, v{fa+1}, v{vD+1}")
        A(f"v_cvt_pk_bf16_f32 v{fa}, v{fa}, v{fa+1}")
        A(f"v_and_b32 v{fa+1}, 0xffff0000, v{fa}")
        A(f"v_lshlrev_b32 v{fa}, 16, v{fa}")
        A(f"v_add_f32 v{fa}, v{fa}, v{fa+1}")
        A(f"v_cvt_pk_bf16_f32 v{fa}, v{fa}, v{fa}")
        A("s_mov_b64 exec, 0xffff")
        A(f"buffer_store_short v{fa}, v{vA}, {srd(sOUT)}, s{sT2} offen")
        A("s_cmp_lg_u32 s2, 0")
        A("s_cbranch_scc1 L_fin")
        A("s_mov_b64 exec, 1")
        A(f"v_mov_b32 v{vA}, {WS_EPOCH}")
        A(f"buffer_store_dword v{vT}, v{vA}, {srd(sWS)}, 0 offen sc1")
        A("L_fin:")
        if self.ts:
            A("s_mov_b64 exec, -1")
            self.TS(11)
            A(f"v_writelane_b32 v59, s{sJ}, 12")
            A("s_getreg_b32 s96, hwreg(HW_REG_XCC_ID)")
            A("s_nop 0")
            A("v_writelane_b32 v59, s96, 13")
            A(f"s_lshl_b32 s{sT1}, s2, 3")
            A(f"s_add_u32 s{sT1}, s{sT1}, s{sW}")
            A(f"s_lshl_b32 s{sT1}, s{sT1}, 6")
            A(f"s_add_u32 s{sT1}, s{sT1}, {WS_TS}")
            A(f"v_lshlrev_b32 v{vA}, 2, v{vLane}")
            A("s_mov_b64 exec, 0xffff")
            A(f"buffer_store_dword v59, v{vA}, {srd(sWS)}, s{sT1} offen")
            if self.echo is not None:
                A(f"s_or_b32 s{sT1}, s{sW}, s2")
                A(f"s_cmp_lg_u32 s{sT1}, 0")
                A("s_cbranch_scc1 L_end")
                A("s_nop 1")
                A(f"v_readlane_b32 s{sT1}, v59, {self.echo}")
                A(f"v_readlane_b32 s{sT2}, v59, 0")
                A(f"v_readlane_b32 s{sT3}, v59, 11")
                A("s_nop 3")
                A(f"s_sub_u32 s{sT1}, s{sT1}, s{sT2}")
                A(f"s_min_u32 s{sT1}, s{sT1}, 20000")
                A("L_echo:")
                A("s_memrealtime s[96:97]")
                A("s_waitcnt lgkmcnt(0)")
                A(f"s_sub_u32 s96, s96, s{sT3}")
                A(f"s_cmp_lt_u32 s96, s{sT1}")
                A("s_cbranch_scc1 L_echo")
            if self.dbgts:
                A(f"s_and_b32 s{sT1}, s{sW}, 3")
                A(f"s_cmp_lg_u32 s{sT1}, 0")
                A("s_cbranch_scc1 L_end")
                for (src, dst) in ((0, 13), (5, 14), (4, 15)):
                    A("s_nop 0")
                    A(f"v_readlane_b32 s96, v59, {src}")
                    A("s_nop 3")
                    A("s_not_b32 s96, s96")
                    A(f"v_writelane_b32 v59, s96, {dst}")
                A(f"global_atomic_umax v{vA}, v59, s[72:73] sc1")
        A("L_end:")
        A("s_endpgm")
        body = "\n".join(self.L)
        out = HDR + f"; @launch grid=(256,1,1) block=(512,1,1) lds={LDS_BYTES}\n"
        out += '.amdgcn_target "amdgcn-amd-amdhsa--gfx950"\n.text\n'
        out += f".globl {name}\n.p2align 8\n.type {name},@function\n" + body + "\n"
        out += f""".section .rodata,"a"
.p2align 6
.amdhsa_kernel {name}
  .amdhsa_next_free_vgpr 224
  .amdhsa_next_free_sgpr 100
  .amdhsa_accum_offset 224
  .amdhsa_group_segment_fixed_size 0
  .amdhsa_kernarg_size 112
  .amdhsa_user_sgpr_count 2
  .amdhsa_user_sgpr_kernarg_segment_ptr 1
  .amdhsa_system_sgpr_workgroup_id_x 1
.end_amdhsa_kernel
"""
        return out


if __name__ == "__main__":
    ap = argparse.ArgumentParser()
    ap.add_argument("-o", default="k.s")
    ap.add_argument("--D", type=int, default=4)
    ap.add_argument("--NS", type=int, default=12)
    ap.add_argument("--static", action="store_true")
    ap.add_argument("--P1", type=int, default=18)
    ap.add_argument("--F0", type=int, default=4)
    ap.add_argument("--ts", action="store_true")
    ap.add_argument("--echo", type=int, default=None)
    ap.add_argument("--dbgts", action="store_true")
    ap.add_argument("--kvpol", default="nt")
    ap.add_argument("--wqpol", default="nt")
    ap.add_argument("--wopol", default="nt")
    a = ap.parse_args()
    g = Gen(D=a.D, NS=16 if a.static else a.NS, dyn=not a.static, P1=a.P1, F0=a.F0, ts=a.ts or a.dbgts or a.echo is not None, echo=a.echo, dbgts=a.dbgts,
            kvpol=a.kvpol, wqpol=a.wqpol, wopol=a.wopol)
    open(a.o, "w").write(g.gen())
```

```python
import sys, struct

NAME = "gated_mix__sliding_block_cached__gqa_block_cached__decode_kernel"

HDR = """; Kernarg layout for this problem (112 bytes, ptrs only, base s[0:1]):
"""

def f2u(x):
    return struct.unpack("<I", struct.pack("<f", x))[0]

WS_EPOCH = 0
WS_CNT = 4096
WS_Q = 0x10000
WS_PML = 0x20000
WS_PO = 0x40000
WS_C = 0x140000
WS_TS = 0x300000
WS_SIZE = 0x400000

NW = 4
U_STR = 1024 + 64
W_STR = 2 * U_STR
L_O = 0
L_ML = 2 * NW * W_STR
L_Q = L_ML + 256
L_OF = L_Q + 1024
L_R = L_OF + 256
L_G = L_R + 512
L_C = L_G + 16
LDS_BYTES = L_C + 48

DEFAULTS = dict(D=8, DF=12, R=5, NS=26, dyn=1, P1=26, F0=0, U=16, d1=0, d2=0, ts=0, dbgts=0, echo=-1,
                kvpol="nt", wqpol="nt", wopol="nt", pf2=1, smap=0, dmap=0, tkm=0)

class Gen:
    def __init__(self, **kw):
        self.o = dict(DEFAULTS)
        self.o.update(kw)
        for k, v in self.o.items():
            setattr(self, k, v)
        if not self.dyn:
            self.NS = 32
        if self.dbgts or self.echo >= 0:
            self.ts = 1
        self.L = []
        self.name = NAME
        self.spin = 1 << 20
        self.uid = 0

    def A(self, s):
        for line in s.split("\n"):
            line = line.strip()
            self.L.append(line if line.endswith(":") else "    " + line)

    def lab(self, base):
        self.uid += 1
        return f"L{base}_{self.uid}"

    def TS(self, k):
        if not self.ts:
            return
        A = self.A
        A("s_memrealtime s[96:97]")
        A("s_waitcnt lgkmcnt(0)")
        A(f"v_writelane_b32 v69, s96, {k}")

    def gen(self):
        A = self.A
        D, DF, R, NS, P1, F0, U = self.D, self.DF, self.R, self.NS, self.P1, self.F0, self.U
        name = self.name
        DPPM = "row_mask:0xf bank_mask:0xf"
        NA = 16 // NW
        sKA, sVA, sKB, sVB, sWQ, sWO, sWS, sX, sOUT = 8, 12, 16, 20, 24, 28, 32, 36, 40
        sW, sBH, sS, sB, sH = 44, 45, 46, 47, 76
        sC, sJ, sStat, sOff, sTk, sT, sSpin = 77, 78, 80, 81, 82, 83, 84
        sT0, sT1, sT2, sT3 = 85, 86, 87, 88
        sSelx, sSely, sMaskHi = 89, 90, 91
        sIdx, sAoff = 92, 93
        sPC = 94
        sRet = 4
        sPool, sCnt, sTkN = 3, 98, 58
        sDrain, sRed = 6, 7
        vKoff, vLin, vLane = 1, 2, 3
        vQ, vQB, DD = 4, 8, 12
        vM, vL, vMC, vmX, vmY, vA, vB, vAl = 28, 29, 30, 31, 32, 33, 34, 35
        vS, vt, vpd, vXY = 36, 40, 44, 48
        vO1, vO2 = 56, 60
        vT, vTS, vx0, vx1 = 68, 69, 70, 71
        RING = 72
        NV = RING + 32 * R
        vD = 36

        def srd(s):
            return f"s[{s}:{s+3}]"

        def vr(r, n):
            return f"v[{r}:{r+n-1}]"

        def slot(p, kv, b):
            return RING + (p * 8 + 4 * kv + b) * 4

        def kvload(p, kv, b, sK, sV):
            A(f"buffer_load_dwordx4 {vr(slot(p,kv,b),4)}, v{(vKoff, vLin)[kv]}, {srd((sK, sV)[kv])}, s{sOff} offen offset:{b*1024} {self.kvpol}")

        DYN = 16 * (32 - NS)
        DYNBASE = 64 * NS * 4096
        SSTEP = (NW, 64, 64)[self.smap] * 4096

        self.L.append(f"{name}:")
        A("s_cmp_ge_u32 s2, 256")
        A("s_cbranch_scc1 L_end")
        A("s_load_dwordx16 s[48:63], s[0:1], 0")
        A("s_load_dwordx8 s[64:71], s[0:1], 64")
        A("s_load_dwordx4 s[72:75], s[0:1], 96")
        if self.ts:
            A(f"v_mov_b32 v{vTS}, 0")
            A("s_memrealtime s[96:97]")
        A(f"v_lshrrev_b32 v{vA}, 6, v0")
        A(f"v_and_b32 v{vLane}, 63, v0")
        A(f"s_lshr_b32 s{sBH}, s2, 4")
        A(f"v_readfirstlane_b32 s{sW}, v{vA}")
        A(f"s_and_b32 s{sS}, s2, 15")
        A(f"s_lshr_b32 s{sB}, s{sBH}, 3")
        A(f"s_and_b32 s{sH}, s{sBH}, 7")
        A(f"v_lshrrev_b32 v{vA}, 2, v{vLane}")
        A(f"v_lshlrev_b32 v{vB}, 16, v{vA}")
        A(f"v_and_b32 v{vAl}, 3, v{vLane}")
        A(f"v_lshl_add_u32 v{vB}, v{vAl}, 4, v{vB}")
        A(f"v_lshlrev_b32 v{vA}, 4, v{vA}")
        A(f"s_and_b32 s{sT0}, s{sS}, 7")
        A(f"s_lshl_b32 s{sT0}, s{sT0}, 7")
        A(f"s_lshr_b32 s{sT1}, s{sS}, 3")
        A(f"s_lshl_b32 s{sT1}, s{sT1}, 6")
        A(f"s_add_u32 s{sT0}, s{sT0}, s{sT1}")
        A(f"s_lshl_b32 s{sT1}, s{sH}, 10")
        A(f"s_add_u32 s{sT1}, s{sT1}, s{sT0}")
        A(f"s_lshl_b32 s{sT2}, s{sW}, 20")
        A(f"s_add_u32 s{sT1}, s{sT1}, s{sT2}")
        A(f"s_lshl_b32 s{sT2}, s{sW}, 8")
        A(f"v_lshlrev_b32 v{vLin}, 4, v{vLane}")
        A(f"v_mov_b32 v{vx0}, {L_C}")
        A(f"v_mov_b32 v{vx1}, 0")
        A(f"ds_write_b32 v{vx0}, v{vx1}")
        A(f"s_add_u32 s{sPool}, s{sW}, s{sS}")
        A(f"s_and_b32 s{sPool}, s{sPool}, {NW-1}")
        A(f"s_lshl_b32 s{sT3}, s{sBH}, 2")
        A(f"s_add_u32 s{sT3}, s{sT3}, s{sPool}")
        A(f"s_lshl_b32 s{sT3}, s{sT3}, 8")
        A(f"s_add_u32 s{sT3}, s{sT3}, {WS_CNT}")
        A(f"s_cmp_eq_u32 s{sB}, 0")
        A("s_waitcnt lgkmcnt(0)")
        if self.ts:
            A(f"v_writelane_b32 v{vTS}, s96, 0")
        A(f"s_cselect_b32 s{sWQ}, s54, s64")
        A(f"s_cselect_b32 s{sWQ+1}, s55, s65")
        A(f"s_cselect_b32 s{sWO}, s56, s66")
        A(f"s_cselect_b32 s{sWO+1}, s57, s67")
        A(f"s_mov_b32 s{sWQ+2}, 0x400000")
        A(f"s_mov_b32 s{sWQ+3}, 0x20000")
        A(f"s_mov_b32 s{sX}, s48")
        A(f"s_mov_b32 s{sX+1}, s49")
        A(f"s_mov_b32 s{sX+2}, 2048")
        A(f"s_mov_b32 s{sX+3}, 0x20000")
        A(f"s_mov_b32 s{sWS}, s74")
        A(f"s_mov_b32 s{sWS+1}, s75")
        A(f"s_mov_b32 s{sWS+2}, {WS_SIZE}")
        A(f"s_mov_b32 s{sWS+3}, 0x20000")
        if self.dyn:
            l = self.lab("noinit")
            A(f"s_cmp_lg_u32 s{sS}, 0")
            A(f"s_cbranch_scc1 {l}")
            A("s_mov_b64 exec, 1")
            A(f"buffer_store_dword v{vx1}, v{vx1}, {srd(sWS)}, s{sT3} offen sc1")
            A("s_mov_b64 exec, -1")
            A(f"{l}:")
        vXd, vWd = DD, slot(R - 1, 0, 0)
        A(f"buffer_load_dwordx4 {vr(vXd,4)}, v{vA}, {srd(sX)}, s{sT2} offen")
        A(f"buffer_load_dwordx4 {vr(vXd+4,4)}, v{vA}, {srd(sX)}, s{sT2} offen offset:1024")
        for i in range(8):
            A(f"buffer_load_dwordx4 {vr(vWd+4*i,4)}, v{vB}, {srd(sWQ)}, s{sT1} offen {self.wqpol}")
            if i < 7:
                A(f"s_add_u32 s{sT1}, s{sT1}, 8192")
        A(f"s_load_dword s{sT}, s[74:75], {WS_EPOCH}")
        A(f"s_add_u32 s{sCnt}, s74, s{sT3}")
        A(f"s_addc_u32 s{sCnt+1}, s75, 0")
        if self.dmap == 0:
            A(f"s_lshl_b32 s{sPool}, s{sPool}, 12")
        else:
            A(f"s_mul_i32 s{sPool}, s{sPool}, {DYN*4096}")
        A(f"s_add_u32 s{sPool}, s{sPool}, {DYNBASE}")
        A(f"s_lshl_b32 s{sT1}, s{sBH}, 23")
        A(f"s_lshl_b32 s{sT2}, s{sS}, 16")
        A(f"s_add_u32 s{sT2}, s{sT2}, {(32768-4096)*256}")
        A(f"s_add_u32 s{sT2}, s{sT2}, s{sT1}")
        for (d, src, off, n) in ((sKA, 50, sT2, 65536), (sVA, 52, sT2, 65536), (sKB, 60, sT1, 0x800000), (sVB, 62, sT1, 0x800000)):
            A(f"s_add_u32 s{d}, s{src}, s{off}")
            A(f"s_addc_u32 s{d+1}, s{src+1}, 0")
            A(f"s_mov_b32 s{d+2}, {n}")
            A(f"s_mov_b32 s{d+3}, 0x20000")
        A(f"v_lshrrev_b32 v{vKoff}, 4, v{vLane}")
        A(f"v_lshlrev_b32 v{vKoff}, 6, v{vKoff}")
        A(f"v_lshl_add_u32 v{vKoff}, v{vAl}, 4, v{vKoff}")
        A(f"v_bfe_u32 v{vA}, v{vLane}, 2, 2")
        A(f"v_lshl_add_u32 v{vKoff}, v{vA}, 8, v{vKoff}")
        A(f"s_lshl_b32 s{sAoff}, s{sW}, 12")
        if self.smap == 0:
            A(f"s_mul_i32 s{sStat}, s{sS}, {NW*NS*4096}")
            A(f"s_add_u32 s{sStat}, s{sStat}, s{sAoff}")
        elif self.smap == 1:
            A(f"s_lshl_b32 s{sStat}, s{sS}, 14")
            A(f"s_add_u32 s{sStat}, s{sStat}, s{sAoff}")
        else:
            A(f"s_lshl_b32 s{sStat}, s{sAoff}, 4")
            A(f"s_lshl_b32 s{sT1}, s{sS}, 12")
            A(f"s_add_u32 s{sStat}, s{sStat}, s{sT1}")

        fill = [(t, kv, b) for t in range(R) for kv in range(2) for b in range(4)]
        self.fill_pos = 0

        def issue_fill(paced):
            t, kv, b = fill[self.fill_pos]
            if paced:
                A(f"s_waitcnt vmcnt({D-1})")
            if kv == 0 and b == 0:
                if t < NA:
                    A(f"s_add_u32 s{sOff}, s{sAoff}, {t*NW*4096}")
                else:
                    A(f"s_mov_b32 s{sOff}, s{sStat}")
                    A(f"s_add_u32 s{sStat}, s{sStat}, {SSTEP}")
            if t < NA:
                kvload(t, kv, b, sKA, sVA)
            else:
                kvload(t, kv, b, sKB, sVB)
            self.fill_pos += 1

        for _ in range(F0):
            issue_fill(False)
        A(f"s_getpc_b64 s[{sPC}:{sPC+1}]")
        A("L_pc:")

        def code_prefetch():
            l = self.lab("nopf")
            A(f"s_cmp_lg_u32 s{sW}, {NW-1}")
            A(f"s_cbranch_scc1 {l}")
            A(f"v_lshlrev_b32 v{vx0}, 7, v{vLane}")
            A(f"v_add_u32 v{vx1}, 8192, v{vx0}")
            A(f"v_min_u32 v{vx1}, L_end-L_pc, v{vx1}")
            A(f"v_min_u32 v{vx0}, L_end-L_pc, v{vx0}")
            A(f"global_load_dword v{vx0}, v{vx0}, s[{sPC}:{sPC+1}]")
            A(f"global_load_dword v{vx1}, v{vx1}, s[{sPC}:{sPC+1}]")
            A(f"{l}:")
        A(f"s_mov_b32 s{sC}, {f2u(128 ** -0.5 * 1.4426950408889634):#x}")
        A(f"s_mov_b32 s{sWO+2}, 0x400000")
        A(f"s_mov_b32 s{sWO+3}, 0x20000")
        A(f"s_mov_b32 s{sOUT}, s70")
        A(f"s_mov_b32 s{sOUT+1}, s71")
        A(f"s_mov_b32 s{sOUT+2}, 2048")
        A(f"s_mov_b32 s{sOUT+3}, 0x20000")
        A(f"s_mov_b32 s{sSelx}, 0x0c0c0400")
        A(f"s_mov_b32 s{sSely}, 0x04000c0c")
        A(f"s_mov_b32 s{sMaskHi}, 0xffffff00")
        A(f"s_mov_b32 s{sJ}, 0")
        A(f"s_mov_b32 s{sSpin}, {self.spin}")
        A(f"s_lshr_b32 s{sRed}, s2, 3")
        A(f"s_xor_b32 s{sRed}, s{sRed}, s2")
        A(f"s_and_b32 s{sRed}, s{sRed}, 7")
        A(f"v_and_b32 v{vA}, 1, v{vLane}")
        A(f"v_lshlrev_b32 v{vA}, 4, v{vA}")
        A(f"v_mov_b32 v{vmX}, 0xffff")
        A(f"v_lshlrev_b32 v{vmX}, v{vA}, v{vmX}")
        A(f"v_and_b32 v{vA}, 2, v{vLane}")
        A(f"v_cmp_eq_u32 vcc, 0, v{vA}")
        A(f"v_mov_b32 v{vM}, 0xff7fffff")
        A(f"v_mov_b32 v{vL}, 0")
        A(f"v_cndmask_b32 v{vmY}, v{vmX}, 0, vcc")
        A(f"v_cndmask_b32 v{vmX}, 0, v{vmX}, vcc")
        A(f"v_mov_b32 v{vMC}, 0xff7fffff")
        A(f"v_lshrrev_b32 v{vA}, 5, v{vLane}")
        A(f"v_lshlrev_b32 v{vA}, 7, v{vA}")
        A(f"v_lshl_add_u32 v{vA}, v{vAl}, 5, v{vA}")
        A(f"v_and_b32 v{vB}, 16, v{vLane}")
        A(f"s_lshl_b32 s{sT1}, s{sW}, 8")
        A(f"v_add3_u32 v{vA}, v{vA}, v{vB}, s{sT1}")
        A("s_waitcnt lgkmcnt(0)")
        A("s_barrier")
        A(f"s_mul_i32 s{sT}, s{sT}, 0x9e3779b1")
        A(f"s_add_u32 s{sT}, s{sT}, 0x7f4a7c15")
        A(f"v_mov_b32 v{vT}, s{sT}")
        A(f"s_waitcnt vmcnt({F0+7})")
        self.TS(1)
        acc = 52
        xs = 36
        tw = 20
        for b in range(2):
            for j in range(4):
                A(f"v_lshlrev_b32 v{xs+b*8+2*j}, 16, v{vXd+4*b+j}")
                A(f"v_and_b32 v{xs+b*8+2*j+1}, 0xffff0000, v{vXd+4*b+j}")
        for i in range(8):
            if i > 0:
                A(f"s_waitcnt vmcnt({F0+7})")
            issue_fill(False)
            for j in range(4):
                w = vWd + 4 * i + j
                lo, hi = tw + (j & 1) * 2, tw + (j & 1) * 2 + 1
                A(f"v_lshlrev_b32 v{lo}, 16, v{w}")
                A(f"v_and_b32 v{hi}, 0xffff0000, v{w}")
                for b in range(2):
                    op = "v_mul_f32" if i == 0 else "v_fmac_f32"
                    A(f"{op} v{acc+8*b+2*j}, v{lo}, v{xs+8*b+i}")
                    A(f"{op} v{acc+8*b+2*j+1}, v{hi}, v{xs+8*b+i}")
        A("s_nop 1")
        for i in range(8):
            A(f"v_permlane32_swap_b32 v{acc+i}, v{acc+i+8}")
        for i in range(8):
            A(f"v_add_f32 v{acc+i}, v{acc+i}, v{acc+i+8}")
        A("s_nop 1")
        for i in range(4):
            A(f"v_permlane16_swap_b32 v{acc+i}, v{acc+i+4}")
        for i in range(4):
            A(f"v_add_f32 v{acc+i}, v{acc+i}, v{acc+i+4}")
        A("s_nop 1")
        for i in range(4):
            A(f"v_add_f32_dpp v{acc+i}, v{acc+i}, v{acc+i} row_ror:8 {DPPM}")
        A("s_nop 1")
        for i in range(4):
            A(f"v_add_f32_dpp v{acc+i}, v{acc+i}, v{acc+i} row_ror:4 {DPPM}")
        A("s_mov_b32 exec_lo, 0x000f000f")
        A("s_mov_b32 exec_hi, 0x000f000f")
        A(f"ds_write_b128 v{vA}, {vr(acc,4)} offset:{L_Q}")
        A("s_mov_b64 exec, 1")
        A(f"v_mov_b32 v{vA}, {L_C}")
        A(f"v_mov_b32 v{vB}, 1")
        A("s_waitcnt lgkmcnt(0)")
        A(f"ds_add_rtn_u32 v{vB}, v{vA}, v{vB}")
        A("s_mov_b64 exec, -1")
        code_prefetch()
        A("s_waitcnt lgkmcnt(0)")
        A(f"v_readfirstlane_b32 s{sT1}, v{vB}")
        l = self.lab("nosvc")
        A(f"v_lshlrev_b32 v{vA}, 2, v{vLane}")
        A("s_nop 2")
        A(f"s_cmp_lg_u32 s{sT1}, {NW-1}")
        A(f"s_cbranch_scc1 {l}")
        for w in range(NW):
            A(f"ds_read_b32 v{acc+w}, v{vA} offset:{L_Q+w*256}")
        A(f"s_lshl_b32 s{sT1}, s{sB}, 4")
        A(f"s_add_u32 s{sT1}, s{sT1}, s{sH}")
        A(f"s_lshl_b32 s{sT1}, s{sT1}, 11")
        A(f"s_lshl_b32 s{sT2}, s{sT0}, 1")
        A(f"s_add_u32 s{sT1}, s{sT1}, s{sT2}")
        A(f"s_add_u32 s{sT1}, s{sT1}, {WS_Q}")
        A(f"v_lshrrev_b32 v{vB}, 5, v{vLane}")
        A(f"v_lshlrev_b32 v{vB}, 14, v{vB}")
        A(f"v_and_b32 v{vA}, 31, v{vLane}")
        A(f"v_lshl_add_u32 v{vB}, v{vA}, 2, v{vB}")
        A("s_waitcnt lgkmcnt(0)")
        A(f"v_add_f32 v{acc}, v{acc}, v{acc+1}")
        A(f"v_add_f32 v{acc+2}, v{acc+2}, v{acc+3}")
        A(f"v_add_f32 v{acc}, v{acc}, v{acc+2}")
        A(f"v_mov_b32 v{acc+9}, v{vT}")
        A(f"v_mov_b32 v{acc+11}, v{vT}")
        A(f"v_mov_b32_dpp v{acc+1}, v{acc} quad_perm:[1,1,3,3] {DPPM}")
        A("s_nop 0")
        A(f"v_cvt_pk_bf16_f32 v{acc+8}, v{acc}, v{acc+1}")
        A("s_nop 1")
        A(f"v_mov_b32_dpp v{acc+10}, v{acc+8} quad_perm:[2,2,2,2] {DPPM}")
        A("s_mov_b32 exec_lo, 0x11111111")
        A("s_mov_b32 exec_hi, 0x11111111")
        A(f"buffer_store_dwordx4 {vr(acc+8,4)}, v{vB}, {srd(sWS)}, s{sT1} offen sc1")
        A("s_mov_b64 exec, -1")
        self.TS(2)
        A(f"{l}:")
        vQg = DD
        A(f"v_lshlrev_b32 v{vA}, 1, v{vKoff}")
        A(f"s_lshl_b32 s{sT1}, s{sBH}, 11")
        A(f"s_add_u32 s{sT1}, s{sT1}, {WS_Q}")
        A(f"s_add_u32 s{sT2}, s{sT1}, 32768")

        def q_loads():
            A(f"buffer_load_dwordx4 {vr(vQg,4)}, v{vA}, {srd(sWS)}, s{sT1} offen sc1")
            A(f"buffer_load_dwordx4 {vr(vQg+4,4)}, v{vA}, {srd(sWS)}, s{sT1} offen offset:16 sc1")
            A(f"buffer_load_dwordx4 {vr(vQg+8,4)}, v{vA}, {srd(sWS)}, s{sT2} offen sc1")
            A(f"buffer_load_dwordx4 {vr(vQg+12,4)}, v{vA}, {srd(sWS)}, s{sT2} offen offset:16 sc1")

        assert 8 * R - P1 >= D
        first = True
        while self.fill_pos < 8 * R:
            if self.fill_pos == P1:
                q_loads()
            issue_fill(True)
            if first:
                for i in range(8):
                    A(f"v_mov_b32 v{vO1+i}, 0")
                first = False
        self.TS(3)
        lchk, lok = self.lab("qchk"), self.lab("qok")
        A(f"{lchk}:")
        A(f"v_xor_b32 v{vAl}, v{vQg+1}, v{vT}")
        for i in range(1, 8):
            A(f"v_xor_b32 v{vB}, v{vQg+2*i+1}, v{vT}")
            A(f"v_or_b32 v{vAl}, v{vAl}, v{vB}")
        A(f"v_cmp_ne_u32 vcc, 0, v{vAl}")
        A(f"s_cbranch_vccz {lok}")
        A(f"s_sub_u32 s{sSpin}, s{sSpin}, 1")
        A("s_cbranch_scc1 L_end")
        q_loads()
        A("s_waitcnt vmcnt(0)")
        A(f"s_branch {lchk}")
        A(f"{lok}:")
        for i in range(4):
            A(f"v_mov_b32 v{vQ+i}, v{vQg+2*i}")
        for i in range(4):
            A(f"v_mov_b32 v{vQB+i}, v{vQg+8+2*i}")
        self.TS(4)

        stubs = []
        JS = NS - (R - NA)
        if self.tkm:
            A("s_mov_b32 s59, 0\ns_mov_b32 s79, 0\ns_mov_b32 s57, 0")

        def tile_ts():
            if self.ts:
                A("s_memrealtime s[96:97]")
                A(f"s_add_u32 m0, s{sJ}, 16")
                A("s_waitcnt lgkmcnt(0)")
                A(f"v_writelane_b32 v{vTS}, s96, m0")
                if self.tkm:
                    A("s_memrealtime s[100:101]")
                    A("s_waitcnt lgkmcnt(0)")
                    A("s_sub_u32 s100, s100, s96")
                    A(f"s_cmp_lt_u32 s{sJ}, {JS}")
                    A("s_cselect_b32 s96, 0, s100")
                    A("s_cselect_b32 s97, s100, 0")
                    A("s_cselect_b32 s100, 0, 1")
                    A("s_add_u32 s59, s59, s96")
                    A("s_add_u32 s79, s79, s97")
                    A("s_add_u32 s57, s57, s100")

        def request_ticket():
            A(f"s_mov_b32 s{sTkN}, 1")
            A(f"s_atomic_add s{sTkN}, s[{sCnt}:{sCnt+1}], 0 glc")

        def read_ticket():
            A("s_waitcnt lgkmcnt(0)")
            A(f"s_mov_b32 s{sTk}, s{sTkN}")
            A(f"s_lshl_b32 s{sOff}, s{sTk}, {14 if self.dmap == 0 else 12}")
            A(f"s_add_u32 s{sOff}, s{sOff}, s{sPool}")

        def body(p, pace):
            def IP(kv, b):
                if pace is None:
                    if kv == 0 and b == 0:
                        A("s_nop 0")
                    return
                A(f"s_waitcnt vmcnt({pace-1})")
                kvload(p, kv, b, sKB, sVB)
            for b in range(4):
                A(f"v_mfma_f32_16x16x32_bf16 {vr(DD+4*b,4)}, {vr(slot(p,0,b),4)}, {vr(vQ,4)}, 0")
            IP(0, 0)
            A("s_nop 3")
            for b in range(4):
                d = DD + 4 * b
                A(f"v_mov_b32_dpp v{vS+b}, v{d} quad_perm:[0,0,0,0] {DPPM}")
                for q in range(1, 4):
                    A(f"v_add_f32_dpp v{vS+b}, v{d+q}, v{vS+b} quad_perm:[{q},{q},{q},{q}] {DPPM}")
                if b < 3:
                    IP(0, b + 1)
            A(f"v_max3_f32 v{vA}, v{vS}, v{vS+1}, v{vS+2}")
            A(f"v_max_f32 v{vA}, v{vA}, v{vS+3}")
            lr, lb = self.lab("rs"), self.lab("rsb")
            A(f"v_cmp_gt_f32 vcc, v{vA}, v{vM}")
            A(f"s_cbranch_vccnz {lr}")
            A(f"{lb}:")
            stubs.append((lr, lb))
            for b in range(4):
                A(f"v_fma_f32 v{vt+b}, v{vS+b}, s{sC}, -v{vMC}")
            for b in range(4):
                A(f"v_exp_f32 v{vt+b}, v{vt+b}")
            for b in range(4):
                A(f"v_cvt_pk_bf16_f32 v{vpd+b}, v{vt+b}, v{vt+b}")
            for b in range(4):
                A(f"v_and_b32 v{vXY+2*b}, v{vpd+b}, v{vmX}")
                A(f"v_and_b32 v{vXY+2*b+1}, v{vpd+b}, v{vmY}")
            A(f"v_add_f32 v{vA}, v{vt}, v{vt+1}")
            A(f"v_add_f32 v{vB}, v{vt+2}, v{vt+3}")
            for b in range(4):
                r = slot(p, 1, b)
                A(f"v_mfma_f32_16x16x16_bf16 {vr(vO1,4)}, {vr(r,2)}, {vr(vXY+2*b,2)}, {vr(vO1,4)}")
                A(f"v_mfma_f32_16x16x16_bf16 {vr(vO2,4)}, {vr(r+2,2)}, {vr(vXY+2*b,2)}, {vr(vO2,4)}")
                if b == 0:
                    A(f"v_add_f32 v{vL}, v{vL}, v{vA}")
                if b == 1:
                    A(f"v_add_f32 v{vL}, v{vL}, v{vB}")
                IP(1, b)

        JS = NS - (R - NA)
        A(".p2align 6")
        A("L_loop:")
        for p in range(R):
            lgo, ldyn, lreq = self.lab("go"), self.lab("dyn"), self.lab("req")
            tile_ts()
            A(f"s_cmp_lt_u32 s{sJ}, {JS}")
            A(f"s_cbranch_scc0 {ldyn}")
            A(f"s_mov_b32 s{sOff}, s{sStat}")
            A(f"s_add_u32 s{sStat}, s{sStat}, {SSTEP}")
            if self.dyn:
                A(f"s_cmp_lt_u32 s{sJ}, {JS-1}")
                A(f"s_cbranch_scc1 {lgo}")
                A(f"s_branch {lreq}")
                A(f"{ldyn}:")
                read_ticket()
                A(f"s_cmp_lt_u32 s{sTk}, {max(DYN-U,0)}")
                A(f"s_cbranch_scc0 L_ftk{p}" if U else f"s_cbranch_scc0 L_fdrain{p}")
                A(f"{lreq}:")
                request_ticket()
            else:
                A(f"s_branch {lgo}")
                A(f"{ldyn}:")
                A(f"s_branch L_fdrain{p}")
            A(f"{lgo}:")
            body(p, D)
            if p == NA - 1:
                A(f"s_cmp_eq_u32 s{sJ}, {NA-1}")
                A("s_cbranch_scc1 L_flushA")
                A("L_flushA_ret:")
            A(f"s_add_u32 s{sJ}, s{sJ}, 1")
        A("s_branch L_loop")

        if self.dyn and U:
            A("L_floop:")
            for p in range(R):
                tile_ts()
                read_ticket()
                A(f"L_ftk{p}:")
                A(f"s_cmp_lt_u32 s{sTk}, {DYN}")
                A(f"s_cbranch_scc0 L_fdrain{p}")
                request_ticket()
                body(p, DF)
                A(f"s_add_u32 s{sJ}, s{sJ}, 1")
            A("s_branch L_floop")
        for p in range(R):
            A(f"L_fdrain{p}:")
            A(f"s_mov_b32 s{sDrain}, {R-1}")
            A(f"s_branch L_dgo{p}")
        A("L_dloop:")
        for p in range(R):
            l1 = self.lab("d1")
            tile_ts()
            A(f"s_sub_u32 s{sDrain}, s{sDrain}, 1")
            A("s_cbranch_scc1 L_exit")
            A(f"s_cmp_gt_u32 s{sDrain}, 1")
            A(f"s_cbranch_scc1 L_dgo{p}")
            A(f"s_cmp_gt_u32 s{sDrain}, 0")
            A(f"s_cbranch_scc1 {l1}")
            A("s_waitcnt vmcnt(0)")
            A(f"{l1}:")
            A("s_waitcnt vmcnt(8)")
            A(f"L_dgo{p}:")
            A("s_waitcnt vmcnt(16)")
            body(p, None)
            A(f"s_add_u32 s{sJ}, s{sJ}, 1")
        A("s_branch L_dloop")

        for lr, lb in stubs:
            A(f"{lr}:")
            A(f"s_call_b64 s[{sRet}:{sRet+1}], L_resc")
            A(f"s_branch {lb}")

        A("L_resc:")
        A(f"v_max_f32 v{vA}, v{vA}, v{vM}")
        A(f"v_mov_b32 v{vB}, v{vA}")
        A("s_nop 1")
        A(f"v_permlane16_swap_b32 v{vA}, v{vB}")
        A(f"v_max_f32 v{vA}, v{vA}, v{vB}")
        A(f"v_mov_b32 v{vB}, v{vA}")
        A("s_nop 1")
        A(f"v_permlane32_swap_b32 v{vA}, v{vB}")
        A(f"v_max_f32 v{vM}, v{vA}, v{vB}")
        A(f"v_mul_f32 v{vA}, s{sC}, v{vM}")
        A(f"v_sub_f32 v{vAl}, v{vMC}, v{vA}")
        A(f"v_exp_f32 v{vAl}, v{vAl}")
        A(f"v_mov_b32 v{vMC}, v{vA}")
        for i in range(8):
            A(f"v_mul_f32 v{vO1+i}, v{vO1+i}, v{vAl}")
        A(f"v_mul_f32 v{vL}, v{vL}, v{vAl}")
        A(f"s_setpc_b64 s[{sRet}:{sRet+1}]")

        def state_to_lds(br):
            A(f"v_mov_b32 v{vB}, v{vL}")
            A(f"s_mul_i32 s{sT1}, s{sW}, {W_STR}")
            A(f"v_add_u32 v{vA}, s{sT1}, v{vLin}")
            A(f"v_permlane16_swap_b32 v{vL}, v{vB}")
            A(f"v_add_f32 v{vL}, v{vL}, v{vB}")
            A(f"v_mov_b32 v{vB}, v{vL}")
            A(f"s_lshl_b32 s{sT1}, s{sW}, 3")
            A("s_nop 0")
            A(f"v_permlane32_swap_b32 v{vL}, v{vB}")
            A(f"v_add_f32 v{vL}, v{vL}, v{vB}")
            A(f"v_bfe_u32 v{vB}, v{vLane}, 2, 2")
            A(f"v_lshlrev_b32 v{vB}, 5, v{vB}")
            A(f"v_add_u32 v{vB}, s{sT1}, v{vB}")
            A(f"ds_write_b128 v{vA}, {vr(vO1,4)} offset:{L_O+br*NW*W_STR}")
            A(f"ds_write_b128 v{vA}, {vr(vO2,4)} offset:{L_O+br*NW*W_STR+U_STR}")
            A("s_mov_b64 exec, 0x1111")
            A(f"ds_write_b64 v{vB}, {vr(vM,2)} offset:{L_ML+br*128}")
            A("s_mov_b64 exec, -1")

        A("L_flushA:")
        state_to_lds(0)
        for i in range(4):
            A(f"v_mov_b32 v{vQ+i}, v{vQB+i}")
        A("s_waitcnt lgkmcnt(0)")
        A(f"v_mov_b32 v{vM}, 0xff7fffff")
        A(f"v_mov_b32 v{vMC}, 0xff7fffff")
        A(f"v_mov_b32 v{vL}, 0")
        for i in range(8):
            A(f"v_mov_b32 v{vO1+i}, 0")
        A("s_branch L_flushA_ret")

        A("L_exit:")
        self.TS(5)
        state_to_lds(1)
        A(f"s_lshl_b32 s{sT1}, s{sH}, 19")
        A(f"s_lshl_b32 s{sT2}, s{sS}, 15")
        A(f"s_add_u32 s{sT1}, s{sT1}, s{sT2}")
        A(f"s_lshl_b32 s{sT2}, s{sW}, 8")
        A(f"s_add_u32 s{sT1}, s{sT1}, s{sT2}")
        A(f"s_add_u32 s{sT2}, s{sT1}, 4096")
        A(f"v_lshrrev_b32 v{vA}, 4, v{vLane}")
        A(f"v_lshlrev_b32 v{vA}, 13, v{vA}")
        A(f"v_and_b32 v{vB}, 15, v{vLane}")
        A(f"v_lshl_add_u32 v{vA}, v{vB}, 4, v{vA}")
        vWO = slot(R - 1, 0, 0)
        for i in range(8):
            A(f"buffer_load_dwordx4 {vr(vWO+4*i,4)}, v{vA}, {srd(sWO)}, s{(sT1, sT2)[i>>2]} offen offset:{(i&3)*1024} {self.wopol}")
        if self.pf2:
            code_prefetch()
        vG = slot(R - 2, 0, 0)
        l = self.lab("nogate")
        A(f"s_lshl_b32 s{sT1}, s{sRed}, 3")
        A(f"s_or_b32 s{sT1}, s{sT1}, s{sW}")
        A(f"s_cmp_lg_u32 s{sT1}, 3")
        A(f"s_cbranch_scc1 {l}")
        A(f"s_lshl_b32 s{sT1}, s2, 7")
        A(f"s_and_b32 s{sT1}, s{sT1}, 1024")
        A(f"buffer_load_dwordx4 {vr(vG,4)}, v{vLin}, {srd(sX)}, s{sT1} offen")
        A(f"global_load_dwordx4 {vr(vG+4,4)}, v{vLin}, s[68:69]")
        A(f"{l}:")
        ml = RING
        od = RING + 8
        A(f"s_lshr_b32 s{sT1}, s{sW}, 1")
        A(f"s_and_b32 s{sT2}, s{sW}, 1")
        A(f"s_lshl_b32 s{sT3}, s{sT1}, 7")
        A(f"v_bfe_u32 v{vB}, v{vLane}, 3, 2")
        A(f"v_lshlrev_b32 v{vB}, 5, v{vB}")
        A(f"v_add_u32 v{vB}, s{sT3}, v{vB}")
        A(f"s_mul_i32 s{sT3}, s{sT1}, {NW*W_STR}")
        A(f"s_lshl_b32 s{sT0}, s{sT2}, 9")
        A(f"s_add_u32 s{sT3}, s{sT3}, s{sT0}")
        A(f"v_lshrrev_b32 v{vA}, 3, v{vLane}")
        A(f"v_lshlrev_b32 v{vA}, 6, v{vA}")
        A(f"v_and_b32 v{vAl}, 3, v{vLane}")
        A(f"v_lshl_add_u32 v{vA}, v{vAl}, 4, v{vA}")
        A(f"v_bfe_u32 v{vAl}, v{vLane}, 2, 1")
        A(f"v_mul_u32_u24 v{vAl}, {U_STR}, v{vAl}")
        A(f"v_add3_u32 v{vA}, v{vA}, v{vAl}, s{sT3}")
        A(f"s_lshl_b32 s{sIdx}, s{sT1}, 8")
        A(f"s_add_u32 s{sIdx}, s{sIdx}, s2")
        A(f"s_lshl_b32 s{sT3}, s{sIdx}, 11")
        A(f"s_lshl_b32 s{sT0}, s{sT2}, 10")
        A(f"s_add_u32 s{sT3}, s{sT3}, s{sT0}")
        A(f"s_add_u32 s{sT3}, s{sT3}, {WS_PO}")
        A(f"s_lshl_b32 s{sT0}, s{sIdx}, 7")
        A(f"s_add_u32 s{sT0}, s{sT0}, {WS_PML}")
        tb = DD
        A(f"v_and_b32 v{tb}, 0xff, v{vT}")
        A(f"v_bfe_u32 v{tb+1}, v{vT}, 8, 8")
        A(f"v_bfe_u32 v{tb+2}, v{vT}, 16, 8")
        A(f"v_lshrrev_b32 v{tb+3}, 24, v{vT}")
        Mx, Ls = DD + 4, DD + 5
        res = DD + 8
        A(f"v_mov_b32 v{DD+6}, v{vT}")
        A(f"v_mov_b32 v{DD+7}, v{vT}")
        A(f"v_lshlrev_b32 v{vx0}, 1, v{vLane}")
        A("s_waitcnt lgkmcnt(0)")
        A("s_barrier")
        self.TS(6)
        for i in range(2):
            A(f"ds_read_b128 {vr(ml+4*i,4)}, v{vB} offset:{L_ML+16*i}")
        for w in range(NW):
            A(f"ds_read_b128 {vr(od+4*w,4)}, v{vA} offset:{L_O+W_STR*w}")
        A("s_waitcnt lgkmcnt(4)")
        A(f"v_max3_f32 v{Mx}, v{ml}, v{ml+2}, v{ml+4}")
        A(f"v_max_f32 v{Mx}, v{Mx}, v{ml+6}")
        A(f"v_mul_f32 v{vAl}, s{sC}, v{Mx}")
        for w in range(NW):
            A(f"v_fma_f32 v{ml+2*w}, v{ml+2*w}, s{sC}, -v{vAl}")
        for w in range(NW):
            A(f"v_exp_f32 v{ml+2*w}, v{ml+2*w}")
        A("s_waitcnt lgkmcnt(0)")
        for i in range(4):
            A(f"v_mul_f32 v{res+i}, v{ml}, v{od+i}")
        for w in range(1, NW):
            for i in range(4):
                A(f"v_fmac_f32 v{res+i}, v{ml+2*w}, v{od+4*w+i}")
        for i in range(4):
            A(f"v_and_or_b32 v{res+i}, v{res+i}, s{sMaskHi}, v{tb+i}")
        A(f"buffer_store_dwordx4 {vr(res,4)}, v{vLin}, {srd(sWS)}, s{sT3} offen sc1")
        l = self.lab("noml")
        A(f"s_cmp_lg_u32 s{sT2}, 0")
        A(f"s_cbranch_scc1 {l}")
        A(f"v_mul_f32 v{Ls}, v{ml}, v{ml+1}")
        for w in range(1, NW):
            A(f"v_fmac_f32 v{Ls}, v{ml+2*w}, v{ml+2*w+1}")
        A("s_mov_b32 exec_lo, 0x01010101")
        A("s_mov_b32 exec_hi, 0x01010101")
        A(f"buffer_store_dwordx4 {vr(Mx,4)}, v{vx0}, {srd(sWS)}, s{sT0} offen sc1")
        A("s_mov_b64 exec, -1")
        A(f"{l}:")
        self.TS(7)

        def tagcheck(regs, extra):
            n = 0
            for r in regs:
                A(f"v_perm_b32 v{vD+n}, v{r+1}, v{r}, s{sSelx}")
                A(f"v_perm_b32 v{vD+n+1}, v{r+3}, v{r+2}, s{sSely}")
                A(f"v_or_b32 v{vD+n}, v{vD+n}, v{vD+n+1}")
                A(f"v_xor_b32 v{vD+n}, v{vD+n}, v{vT}")
                n += 1
            for r in extra:
                A(f"v_xor_b32 v{vD+n}, v{r}, v{vT}")
                n += 1
            for i in range(1, n):
                A(f"v_or_b32 v{vD}, v{vD}, v{vD+i}")
            A(f"v_cmp_ne_u32 vcc, 0, v{vD}")

        def poll(loads, check, delay):
            lp, lok = self.lab("poll"), self.lab("pok")
            if delay:
                A(f"s_sleep {delay}")
            A(f"{lp}:")
            loads()
            A("s_mov_b64 exec, -1")
            A(f"s_sub_u32 s{sSpin}, s{sSpin}, 1")
            A("s_cbranch_scc1 L_end")
            A("s_waitcnt vmcnt(0)")
            check()
            A(f"s_cbranch_vccz {lok}")
            A("s_mov_b64 exec, vcc")
            A(f"s_branch {lp}")
            A(f"{lok}:")

        def xreduce(regs, op, tmp):
            A("s_nop 1")
            for r in regs:
                A(f"{op}_dpp v{r}, v{r}, v{r} row_ror:8 {DPPM}")
            for sw in ("v_permlane16_swap_b32", "v_permlane32_swap_b32"):
                for i, r in enumerate(regs):
                    A(f"v_mov_b32 v{tmp+i}, v{r}")
                A("s_nop 1")
                for i, r in enumerate(regs):
                    A(f"{sw} v{r}, v{tmp+i}")
                for i, r in enumerate(regs):
                    A(f"{op} v{r}, v{r}, v{tmp+i}")

        A(f"s_cmp_eq_u32 s{sT2}, 0")
        A("s_cbranch_scc1 L_t3")
        oa, obb, mla, mlb = RING, RING + 4, RING + 8, RING + 12
        A(f"s_lshl_b32 s{sT1}, s{sT1}, 7")
        A(f"s_lshl_b32 s{sT2}, s{sB}, 8")
        A(f"s_add_u32 s{sT1}, s{sT1}, s{sT2}")
        A(f"s_lshl_b32 s{sT2}, s{sH}, 4")
        A(f"s_add_u32 s{sT1}, s{sT1}, s{sT2}")
        A(f"s_and_b32 s{sT2}, s{sS}, 3")
        A(f"s_lshl_b32 s{sT2}, s{sT2}, 9")
        A(f"s_lshr_b32 s{sT3}, s{sS}, 2")
        A(f"s_lshl_b32 s{sT0}, s{sT3}, 7")
        A(f"s_add_u32 s{sT2}, s{sT2}, s{sT0}")
        A(f"s_lshl_b32 s{sT0}, s{sT1}, 11")
        A(f"s_add_u32 s{sT2}, s{sT2}, s{sT0}")
        A(f"s_add_u32 s{sT2}, s{sT2}, {WS_PO}")
        A(f"s_add_u32 s{sIdx}, s{sT2}, 16384")
        A(f"s_lshl_b32 s{sT1}, s{sT1}, 7")
        A(f"s_lshl_b32 s{sT3}, s{sT3}, 4")
        A(f"s_add_u32 s{sT1}, s{sT1}, s{sT3}")
        A(f"s_add_u32 s{sT1}, s{sT1}, {WS_PML}")
        A(f"v_lshrrev_b32 v{vB}, 3, v{vLane}")
        A(f"v_lshlrev_b32 v{vA}, 11, v{vB}")
        A(f"v_and_b32 v{vAl}, 7, v{vLane}")
        A(f"v_lshl_add_u32 v{vA}, v{vAl}, 4, v{vA}")
        A(f"v_lshlrev_b32 v{vB}, 7, v{vB}")

        def h1loads():
            A(f"buffer_load_dwordx4 {vr(mla,4)}, v{vB}, {srd(sWS)}, s{sT1} offen sc1")
            A(f"buffer_load_dwordx4 {vr(mlb,4)}, v{vB}, {srd(sWS)}, s{sT1} offen offset:1024 sc1")
            A(f"buffer_load_dwordx4 {vr(oa,4)}, v{vA}, {srd(sWS)}, s{sT2} offen sc1")
            A(f"buffer_load_dwordx4 {vr(obb,4)}, v{vA}, {srd(sWS)}, s{sIdx} offen sc1")
        poll(h1loads, lambda: tagcheck([oa, obb], [mla + 2, mlb + 2]), self.d1)
        self.TS(8)
        Mg = vD
        A(f"v_max_f32 v{Mg}, v{mla}, v{mlb}")
        xreduce([Mg], "v_max_f32", vD + 8)
        A(f"v_mul_f32 v{Mg}, s{sC}, v{Mg}")
        A(f"v_fma_f32 v{mla}, v{mla}, s{sC}, -v{Mg}")
        A(f"v_fma_f32 v{mlb}, v{mlb}, s{sC}, -v{Mg}")
        A(f"v_exp_f32 v{mla}, v{mla}")
        A(f"v_exp_f32 v{mlb}, v{mlb}")
        A(f"s_lshr_b32 s{sT1}, s{sW}, 1")
        A(f"v_mul_f32 v{vD+1}, v{mla}, v{mla+1}")
        A(f"v_fmac_f32 v{vD+1}, v{mlb}, v{mlb+1}")
        for i in range(4):
            A(f"v_mul_f32 v{vD+2+i}, v{mla}, v{oa+i}")
        for i in range(4):
            A(f"v_fmac_f32 v{vD+2+i}, v{mlb}, v{obb+i}")
        xreduce([vD + 1 + i for i in range(5)], "v_add_f32", vD + 8)
        A(f"v_rcp_f32 v{vD+1}, v{vD+1}")
        A(f"s_lshl_b32 s{sT1}, s{sT1}, 7")
        A(f"v_lshlrev_b32 v{vA}, 2, v{vAl}")
        A(f"v_add_u32 v{vA}, s{sT1}, v{vA}")
        for i in range(4):
            A(f"v_mul_f32 v{vD+2+i}, v{vD+2+i}, v{vD+1}")
        for i in range(4):
            A(f"v_cvt_pk_bf16_f32 v{vD+2+i}, v{vD+2+i}, v{vD+2+i}")
        A("s_mov_b64 exec, 0xff")
        for i in range(4):
            A(f"ds_write_b32 v{vA}, v{vD+2+i} offset:{L_OF+32*i}")
        A("s_mov_b64 exec, -1")

        A("L_t3:")
        mk = 52
        A(f"v_and_b32 v{vA}, 1, v{vLane}")
        A(f"v_lshlrev_b32 v{vA}, 4, v{vA}")
        A(f"v_mov_b32 v{vB}, 0xffff")
        A(f"v_lshlrev_b32 v{vB}, v{vA}, v{vB}")
        A(f"v_bfe_u32 v{vA}, v{vLane}, 1, 2")
        for j in range(4):
            A(f"v_cmp_eq_u32 vcc, {j}, v{vA}")
            A("s_nop 1")
            A(f"v_cndmask_b32 v{mk+j}, 0, v{vB}, vcc")
        A(f"v_bfe_u32 v{vA}, v{vLane}, 3, 1")
        A(f"v_lshlrev_b32 v{vA}, 7, v{vA}")
        A(f"v_lshrrev_b32 v{vB}, 4, v{vLane}")
        A(f"v_lshl_add_u32 v{vA}, v{vB}, 5, v{vA}")
        A(f"s_lshl_b32 s{sT3}, s{sW}, 10")
        A(f"s_lshl_b32 s{sT0}, s2, 12")
        A(f"s_add_u32 s{sT3}, s{sT3}, s{sT0}")
        A(f"s_add_u32 s{sT3}, s{sT3}, {WS_C}")
        A("s_waitcnt vmcnt(0) lgkmcnt(0)")
        A("s_barrier")
        ob = RING
        bo = RING + 8
        A(f"ds_read_b128 {vr(ob,4)}, v{vA} offset:{L_OF}")
        A(f"ds_read_b128 {vr(ob+4,4)}, v{vA} offset:{L_OF+16}")
        for i in range(8):
            if i == 0:
                A("s_waitcnt lgkmcnt(1)")
            if i == 4:
                A("s_waitcnt lgkmcnt(0)")
            for j in range(4):
                A(f"v_and_b32 v{bo+4*i+j}, v{ob+i}, v{mk+j}")
            if i > 0:
                c = "0" if i == 1 else vr(res, 4)
                A(f"v_mfma_f32_16x16x32_bf16 {vr(res,4)}, {vr(vWO+4*(i-1),4)}, {vr(bo+4*(i-1),4)}, {c}")
        A("s_nop 0")
        A(f"v_mfma_f32_16x16x32_bf16 {vr(res,4)}, {vr(vWO+28,4)}, {vr(bo+28,4)}, {vr(res,4)}")
        A("s_nop 7")
        for i in range(4):
            A(f"v_and_or_b32 v{res+i}, v{res+i}, s{sMaskHi}, v{tb+i}")
        A(f"buffer_store_dwordx4 {vr(res,4)}, v{vLin}, {srd(sWS)}, s{sT3} offen sc1")
        self.TS(9)

        A(f"s_cmp_lg_u32 s{sRed}, 0")
        A("s_cbranch_scc1 L_fin")
        ca = RING
        A(f"s_lshr_b32 s{sT1}, s2, 3")
        A(f"s_lshl_b32 s{sT2}, s{sT1}, 7")
        A(f"s_lshl_b32 s{sT3}, s{sW}, 18")
        A(f"s_add_u32 s{sT2}, s{sT2}, s{sT3}")
        A(f"s_add_u32 s{sT2}, s{sT2}, {WS_C}")
        A(f"v_lshrrev_b32 v{vA}, 3, v{vLane}")
        A(f"v_lshlrev_b32 v{vA}, 12, v{vA}")
        A(f"v_and_b32 v{vB}, 7, v{vLane}")
        A(f"v_lshl_add_u32 v{vA}, v{vB}, 4, v{vA}")
        for k in range(8):
            A(f"s_add_u32 s{48+k}, s{sT2}, {k*32768}")
        l = self.lab("nog2")
        A(f"s_cmp_lg_u32 s{sW}, 3")
        A(f"s_cbranch_scc1 {l}")
        g0 = RING + 40
        for j in range(4):
            A(f"v_lshlrev_b32 v{g0+4*j}, 16, v{vG+j}")
            A(f"v_and_b32 v{g0+4*j+1}, 0xffff0000, v{vG+j}")
            A(f"v_lshlrev_b32 v{g0+4*j+2}, 16, v{vG+4+j}")
            A(f"v_and_b32 v{g0+4*j+3}, 0xffff0000, v{vG+4+j}")
        for j in range(4):
            A(f"v_mul_f32 v{g0+4*j}, v{g0+4*j}, v{g0+4*j+2}")
            A(f"v_mul_f32 v{g0+4*j+1}, v{g0+4*j+1}, v{g0+4*j+3}")
        for j in range(4):
            A(f"v_cvt_pk_bf16_f32 v{g0+4*j}, v{g0+4*j}, v{g0+4*j+1}")
        for j in range(4):
            A(f"v_and_b32 v{g0+4*j+1}, 0xffff0000, v{g0+4*j}")
            A(f"v_lshlrev_b32 v{g0+4*j}, 16, v{g0+4*j}")
        for j in range(4):
            A(f"v_add_f32 v{g0+4*j}, v{g0+4*j}, v{g0+4*j+1}")
        A(f"v_add_f32 v{g0}, v{g0}, v{g0+4}")
        A(f"v_add_f32 v{g0+8}, v{g0+8}, v{g0+12}")
        A(f"v_add_f32 v{g0}, v{g0}, v{g0+8}")
        for ror in (1, 2, 4):
            A("s_nop 1")
            A(f"v_add_f32_dpp v{g0}, v{g0}, v{g0} row_ror:{ror} {DPPM}")
        xreduce([g0], "v_add_f32", g0 + 1)
        A(f"v_cvt_pk_bf16_f32 v{g0}, v{g0}, v{g0}")
        A(f"v_and_b32 v{g0}, 0xffff0000, v{g0}")
        A(f"v_mul_f32 v{g0}, {f2u(-1.4426950408889634):#x}, v{g0}")
        A(f"v_exp_f32 v{g0}, v{g0}")
        A("s_nop 0")
        A(f"v_add_f32 v{g0}, 1.0, v{g0}")
        A(f"v_rcp_f32 v{g0}, v{g0}")
        A("s_nop 0")
        A(f"v_cvt_pk_bf16_f32 v{g0}, v{g0}, v{g0}")
        A(f"v_and_b32 v{g0}, 0xffff0000, v{g0}")
        A(f"v_mov_b32 v{g0+1}, {L_G}")
        A("s_mov_b64 exec, 1")
        A(f"ds_write_b32 v{g0+1}, v{g0}")
        A("s_mov_b64 exec, -1")
        A(f"{l}:")

        def h2loads():
            for k in range(8):
                A(f"buffer_load_dwordx4 {vr(ca+4*k,4)}, v{vA}, {srd(sWS)}, s{48+k} offen sc1")
        poll(h2loads, lambda: tagcheck([ca + 4 * k for k in range(8)], []), self.d2)
        self.TS(10)
        for st in (16, 8, 4):
            for i in range(st):
                A(f"v_add_f32 v{ca+i}, v{ca+i}, v{ca+st+i}")
        A("s_nop 1")
        A(f"v_permlane32_swap_b32 v{ca}, v{ca+2}")
        A(f"v_permlane32_swap_b32 v{ca+1}, v{ca+3}")
        A(f"v_add_f32 v{ca}, v{ca}, v{ca+2}")
        A(f"v_add_f32 v{ca+1}, v{ca+1}, v{ca+3}")
        A("s_nop 1")
        A(f"v_permlane16_swap_b32 v{ca}, v{ca+1}")
        A(f"v_add_f32 v{ca}, v{ca}, v{ca+1}")
        A(f"v_lshrrev_b32 v{vA}, 4, v{vLane}")
        A(f"v_lshlrev_b32 v{vA}, 5, v{vA}")
        A(f"v_add_f32_dpp v{ca}, v{ca}, v{ca} row_ror:8 {DPPM}")
        A(f"v_lshl_add_u32 v{vA}, v{vB}, 2, v{vA}")
        A(f"s_lshl_b32 s{sT2}, s{sW}, 7")
        A(f"v_add_u32 v{vA}, s{sT2}, v{vA}")
        A("s_mov_b32 exec_lo, 0x00ff00ff")
        A("s_mov_b32 exec_hi, 0x00ff00ff")
        A(f"ds_write_b32 v{vA}, v{ca} offset:{L_R}")
        A("s_mov_b64 exec, -1")
        A(f"v_and_b32 v{vB}, 31, v{vLane}")
        A(f"v_lshlrev_b32 v{vA}, 2, v{vB}")
        A(f"v_add_u32 v{vAl}, {L_R}, v{vA}")
        A(f"v_mov_b32 v{vD}, {L_G}")
        A(f"s_lshr_b32 s{sT2}, s{sT1}, 1")
        A(f"s_lshl_b32 s{sT2}, s{sT2}, 6")
        A(f"s_and_b32 s{sT3}, s{sT1}, 1")
        A(f"s_lshl_b32 s{sT3}, s{sT3}, 10")
        A(f"s_add_u32 s{sT2}, s{sT2}, s{sT3}")
        A(f"v_lshlrev_b32 v{vA}, 1, v{vB}")
        A("s_waitcnt lgkmcnt(0)")
        A("s_barrier")
        A(f"s_cmp_lg_u32 s{sW}, 0")
        A("s_cbranch_scc1 L_fin")
        fa = RING
        for w in range(2):
            A(f"ds_read2_b32 {vr(fa+2*w,2)}, v{vAl} offset0:{w*32} offset1:{w*32+64}")
        A(f"ds_read_b32 v{vD}, v{vD}")
        A("s_waitcnt lgkmcnt(0)")
        A(f"v_add_f32 v{fa}, v{fa}, v{fa+2}")
        A(f"v_add_f32 v{fa+1}, v{fa+1}, v{fa+3}")
        A(f"v_sub_f32 v{vD+1}, 1.0, v{vD}")
        A(f"v_cvt_pk_bf16_f32 v{fa}, v{fa}, v{fa+1}")
        A(f"v_cvt_pk_bf16_f32 v{vD+1}, v{vD+1}, v{vD+1}")
        A(f"v_and_b32 v{fa+1}, 0xffff0000, v{fa}")
        A(f"v_lshlrev_b32 v{fa}, 16, v{fa}")
        A(f"v_and_b32 v{vD+1}, 0xffff0000, v{vD+1}")
        A(f"v_mul_f32 v{fa}, v{fa}, v{vD}")
        A(f"v_mul_f32 v{fa+1}, v{fa+1}, v{vD+1}")
        A(f"v_cvt_pk_bf16_f32 v{fa}, v{fa}, v{fa+1}")
        A(f"v_and_b32 v{fa+1}, 0xffff0000, v{fa}")
        A(f"v_lshlrev_b32 v{fa}, 16, v{fa}")
        A(f"v_add_f32 v{fa}, v{fa}, v{fa+1}")
        A(f"v_cvt_pk_bf16_f32 v{fa}, v{fa}, v{fa}")
        A("s_mov_b32 exec_hi, 0")
        A(f"buffer_store_short v{fa}, v{vA}, {srd(sOUT)}, s{sT2} offen")
        A("s_cmp_lg_u32 s2, 0")
        A("s_cbranch_scc1 L_fin")
        A("s_mov_b64 exec, 1")
        A(f"v_mov_b32 v{vA}, {WS_EPOCH}")
        A(f"buffer_store_dword v{vT}, v{vA}, {srd(sWS)}, 0 offen sc1")
        A("L_fin:")
        if self.ts:
            A("s_mov_b64 exec, -1")
            self.TS(11)
            A(f"v_writelane_b32 v{vTS}, s{sJ}, 12")
            A("s_getreg_b32 s96, hwreg(HW_REG_XCC_ID)")
            A("s_nop 0")
            A(f"v_writelane_b32 v{vTS}, s96, 13")
            A(f"s_sub_u32 s96, {self.spin}, s{sSpin}")
            A(f"v_writelane_b32 v{vTS}, s96, 14")
            if self.tkm:
                A(f"v_writelane_b32 v{vTS}, s59, 15")
                A(f"v_writelane_b32 v{vTS}, s79, 62")
                A(f"v_writelane_b32 v{vTS}, s57, 63")
            A(f"s_lshl_b32 s{sT1}, s2, 2")
            A(f"s_add_u32 s{sT1}, s{sT1}, s{sW}")
            A(f"s_lshl_b32 s{sT1}, s{sT1}, 8")
            A(f"s_add_u32 s{sT1}, s{sT1}, {WS_TS}")
            A(f"v_lshlrev_b32 v{vA}, 2, v{vLane}")
            A(f"buffer_store_dword v{vTS}, v{vA}, {srd(sWS)}, s{sT1} offen")
            A("s_mov_b64 exec, 0xffff")
            if self.echo >= 0:
                A(f"s_or_b32 s{sT1}, s{sW}, s2")
                A(f"s_cmp_lg_u32 s{sT1}, 0")
                A("s_cbranch_scc1 L_end")
                A("s_nop 1")
                A(f"v_readlane_b32 s{sT1}, v{vTS}, {self.echo}")
                A(f"v_readlane_b32 s{sT2}, v{vTS}, 0")
                A(f"v_readlane_b32 s{sT3}, v{vTS}, 11")
                A("s_nop 3")
                A(f"s_sub_u32 s{sT1}, s{sT1}, s{sT2}")
                A(f"s_min_u32 s{sT1}, s{sT1}, 20000")
                A("L_echo:")
                A("s_memrealtime s[96:97]")
                A("s_waitcnt lgkmcnt(0)")
                A(f"s_sub_u32 s96, s96, s{sT3}")
                A(f"s_cmp_lt_u32 s96, s{sT1}")
                A("s_cbranch_scc1 L_echo")
            if self.dbgts:
                for (src, dst) in ((0, 13), (5, 14), (4, 15)):
                    A("s_nop 0")
                    A(f"v_readlane_b32 s96, v{vTS}, {src}")
                    A("s_nop 3")
                    A("s_not_b32 s96, s96")
                    A(f"v_writelane_b32 v{vTS}, s96, {dst}")
                A(f"global_atomic_umax v{vA}, v{vTS}, s[72:73] sc1")
        A("L_end:")
        A("s_endpgm")
        body_txt = "\n".join(self.L)
        out = HDR + f"; @launch grid=(256,1,1) block=({64*NW},1,1) lds={LDS_BYTES}\n"
        out += '.amdgcn_target "amdgcn-amd-amdhsa--gfx950"\n.text\n'
        out += f".globl {name}\n.p2align 8\n.type {name},@function\n" + body_txt + "\n"
        assert NV <= 256
        out += f""".section .rodata,"a"
.p2align 6
.amdhsa_kernel {name}
  .amdhsa_next_free_vgpr 264
  .amdhsa_next_free_sgpr 102
  .amdhsa_accum_offset 256
  .amdhsa_group_segment_fixed_size 0
  .amdhsa_kernarg_size 112
  .amdhsa_user_sgpr_count 2
  .amdhsa_user_sgpr_kernarg_segment_ptr 1
  .amdhsa_system_sgpr_workgroup_id_x 1
.end_amdhsa_kernel
"""
        return out


if __name__ == "__main__":
    out = sys.argv[1]
    kw = {}
    for a in sys.argv[2:]:
        k, v = a.split("=")
        assert k in DEFAULTS, k
        kw[k] = type(DEFAULTS[k])(v)
    open(out, "w").write(Gen(**kw).gen())
    print("lds", LDS_BYTES)
```

```python
import sys, struct

NAME = "gated_mix__sliding_block_cached__gqa_block_cached__decode_kernel"

HDR = """; Kernarg layout for this problem (112 bytes, ptrs only, base s[0:1]):
"""

def f2u(x):
    return struct.unpack("<I", struct.pack("<f", x))[0]

WS_EPOCH = 0
WS_CNT = 4096
WS_Q = 0x10000
WS_PML = 0x20000
WS_PO = 0x40000
WS_C = 0x140000
WS_TS = 0x300000
WS_SIZE = 0x400000

NW = 4
U_STR = 1024 + 64
W_STR = 2 * U_STR
L_O = 0
L_ML = 2 * NW * W_STR
L_Q = L_ML + 256
L_OF = L_Q + 1024
L_R = L_OF + 256
L_G = L_R + 512
L_C = L_G + 16
LDS_BYTES = L_C + 48

DEFAULTS = dict(D=8, DF=12, R=5, NS=26, dyn=1, P1=26, F0=0, U=16, d1=0, d2=0, ts=0, dbgts=0, echo=-1,
                kvpol="nt", wqpol="nt", wopol="nt", pf2=1, smap=0, dmap=0, tkm=0, echob=0, echog=1)

class Gen:
    def __init__(self, **kw):
        self.o = dict(DEFAULTS)
        self.o.update(kw)
        for k, v in self.o.items():
            setattr(self, k, v)
        if not self.dyn:
            self.NS = 32
        if self.dbgts or self.echo >= 0:
            self.ts = 1
        self.L = []
        self.name = NAME
        self.spin = 1 << 20
        self.uid = 0

    def A(self, s):
        for line in s.split("\n"):
            line = line.strip()
            self.L.append(line if line.endswith(":") else "    " + line)

    def lab(self, base):
        self.uid += 1
        return f"L{base}_{self.uid}"

    def TS(self, k):
        if not self.ts:
            return
        A = self.A
        A("s_memrealtime s[96:97]")
        A("s_waitcnt lgkmcnt(0)")
        A(f"v_writelane_b32 v69, s96, {k}")

    def gen(self):
        A = self.A
        D, DF, R, NS, P1, F0, U = self.D, self.DF, self.R, self.NS, self.P1, self.F0, self.U
        name = self.name
        DPPM = "row_mask:0xf bank_mask:0xf"
        NA = 16 // NW
        sKA, sVA, sKB, sVB, sWQ, sWO, sWS, sX, sOUT = 8, 12, 16, 20, 24, 28, 32, 36, 40
        sW, sBH, sS, sB, sH = 44, 45, 46, 47, 76
        sC, sJ, sStat, sOff, sTk, sT, sSpin = 77, 78, 80, 81, 82, 83, 84
        sT0, sT1, sT2, sT3 = 85, 86, 87, 88
        sSelx, sSely, sMaskHi = 89, 90, 91
        sIdx, sAoff = 92, 93
        sPC = 94
        sRet = 4
        sPool, sCnt, sTkN = 3, 98, 58
        sDrain, sRed = 6, 7
        vKoff, vLin, vLane = 1, 2, 3
        vQ, vQB, DD = 4, 8, 12
        vM, vL, vMC, vmX, vmY, vA, vB, vAl = 28, 29, 30, 31, 32, 33, 34, 35
        vS, vt, vpd, vXY = 36, 40, 44, 48
        vO1, vO2 = 56, 60
        vT, vTS, vx0, vx1 = 68, 69, 70, 71
        RING = 72
        NV = RING + 32 * R
        vD = 36

        def srd(s):
            return f"s[{s}:{s+3}]"

        def vr(r, n):
            return f"v[{r}:{r+n-1}]"

        def slot(p, kv, b):
            return RING + (p * 8 + 4 * kv + b) * 4

        def kvload(p, kv, b, sK, sV):
            A(f"buffer_load_dwordx4 {vr(slot(p,kv,b),4)}, v{(vKoff, vLin)[kv]}, {srd((sK, sV)[kv])}, s{sOff} offen offset:{b*1024} {self.kvpol}")

        DYN = 16 * (32 - NS)
        DYNBASE = 64 * NS * 4096
        SSTEP = (NW, 64, 64)[self.smap] * 4096

        self.L.append(f"{name}:")
        A("s_cmp_ge_u32 s2, 256")
        A("s_cbranch_scc1 L_end")
        A("s_load_dwordx16 s[48:63], s[0:1], 0")
        A("s_load_dwordx8 s[64:71], s[0:1], 64")
        A("s_load_dwordx4 s[72:75], s[0:1], 96")
        if self.ts:
            A(f"v_mov_b32 v{vTS}, 0")
            A("s_memrealtime s[96:97]")
        A(f"v_lshrrev_b32 v{vA}, 6, v0")
        A(f"v_and_b32 v{vLane}, 63, v0")
        A(f"s_lshr_b32 s{sBH}, s2, 4")
        A(f"v_readfirstlane_b32 s{sW}, v{vA}")
        A(f"s_and_b32 s{sS}, s2, 15")
        A(f"s_lshr_b32 s{sB}, s{sBH}, 3")
        A(f"s_and_b32 s{sH}, s{sBH}, 7")
        A(f"v_lshrrev_b32 v{vA}, 2, v{vLane}")
        A(f"v_lshlrev_b32 v{vB}, 16, v{vA}")
        A(f"v_and_b32 v{vAl}, 3, v{vLane}")
        A(f"v_lshl_add_u32 v{vB}, v{vAl}, 4, v{vB}")
        A(f"v_lshlrev_b32 v{vA}, 4, v{vA}")
        A(f"s_and_b32 s{sT0}, s{sS}, 7")
        A(f"s_lshl_b32 s{sT0}, s{sT0}, 7")
        A(f"s_lshr_b32 s{sT1}, s{sS}, 3")
        A(f"s_lshl_b32 s{sT1}, s{sT1}, 6")
        A(f"s_add_u32 s{sT0}, s{sT0}, s{sT1}")
        A(f"s_lshl_b32 s{sT1}, s{sH}, 10")
        A(f"s_add_u32 s{sT1}, s{sT1}, s{sT0}")
        A(f"s_lshl_b32 s{sT2}, s{sW}, 20")
        A(f"s_add_u32 s{sT1}, s{sT1}, s{sT2}")
        A(f"s_lshl_b32 s{sT2}, s{sW}, 8")
        A(f"v_lshlrev_b32 v{vLin}, 4, v{vLane}")
        A(f"v_mov_b32 v{vx0}, {L_C}")
        A(f"v_mov_b32 v{vx1}, 0")
        A(f"ds_write_b32 v{vx0}, v{vx1}")
        A(f"s_add_u32 s{sPool}, s{sW}, s{sS}")
        A(f"s_and_b32 s{sPool}, s{sPool}, {NW-1}")
        A(f"s_lshl_b32 s{sT3}, s{sBH}, 2")
        A(f"s_add_u32 s{sT3}, s{sT3}, s{sPool}")
        A(f"s_lshl_b32 s{sT3}, s{sT3}, 8")
        A(f"s_add_u32 s{sT3}, s{sT3}, {WS_CNT}")
        A(f"s_cmp_eq_u32 s{sB}, 0")
        A("s_waitcnt lgkmcnt(0)")
        if self.ts:
            A(f"v_writelane_b32 v{vTS}, s96, 0")
        A(f"s_cselect_b32 s{sWQ}, s54, s64")
        A(f"s_cselect_b32 s{sWQ+1}, s55, s65")
        A(f"s_cselect_b32 s{sWO}, s56, s66")
        A(f"s_cselect_b32 s{sWO+1}, s57, s67")
        A(f"s_mov_b32 s{sWQ+2}, 0x400000")
        A(f"s_mov_b32 s{sWQ+3}, 0x20000")
        A(f"s_mov_b32 s{sX}, s48")
        A(f"s_mov_b32 s{sX+1}, s49")
        A(f"s_mov_b32 s{sX+2}, 2048")
        A(f"s_mov_b32 s{sX+3}, 0x20000")
        A(f"s_mov_b32 s{sWS}, s74")
        A(f"s_mov_b32 s{sWS+1}, s75")
        A(f"s_mov_b32 s{sWS+2}, {WS_SIZE}")
        A(f"s_mov_b32 s{sWS+3}, 0x20000")
        if self.dyn:
            l = self.lab("noinit")
            A(f"s_cmp_lg_u32 s{sS}, 0")
            A(f"s_cbranch_scc1 {l}")
            A("s_mov_b64 exec, 1")
            A(f"buffer_store_dword v{vx1}, v{vx1}, {srd(sWS)}, s{sT3} offen sc1")
            A("s_mov_b64 exec, -1")
            A(f"{l}:")
        vXd, vWd = DD, slot(R - 1, 0, 0)
        A(f"buffer_load_dwordx4 {vr(vXd,4)}, v{vA}, {srd(sX)}, s{sT2} offen")
        A(f"buffer_load_dwordx4 {vr(vXd+4,4)}, v{vA}, {srd(sX)}, s{sT2} offen offset:1024")
        for i in range(8):
            A(f"buffer_load_dwordx4 {vr(vWd+4*i,4)}, v{vB}, {srd(sWQ)}, s{sT1} offen {self.wqpol}")
            if i < 7:
                A(f"s_add_u32 s{sT1}, s{sT1}, 8192")
        A(f"s_load_dword s{sT}, s[74:75], {WS_EPOCH}")
        A(f"s_add_u32 s{sCnt}, s74, s{sT3}")
        A(f"s_addc_u32 s{sCnt+1}, s75, 0")
        if self.dmap == 0:
            A(f"s_lshl_b32 s{sPool}, s{sPool}, 12")
        else:
            A(f"s_mul_i32 s{sPool}, s{sPool}, {DYN*4096}")
        A(f"s_add_u32 s{sPool}, s{sPool}, {DYNBASE}")
        A(f"s_lshl_b32 s{sT1}, s{sBH}, 23")
        A(f"s_lshl_b32 s{sT2}, s{sS}, 16")
        A(f"s_add_u32 s{sT2}, s{sT2}, {(32768-4096)*256}")
        A(f"s_add_u32 s{sT2}, s{sT2}, s{sT1}")
        for (d, src, off, n) in ((sKA, 50, sT2, 65536), (sVA, 52, sT2, 65536), (sKB, 60, sT1, 0x800000), (sVB, 62, sT1, 0x800000)):
            A(f"s_add_u32 s{d}, s{src}, s{off}")
            A(f"s_addc_u32 s{d+1}, s{src+1}, 0")
            A(f"s_mov_b32 s{d+2}, {n}")
            A(f"s_mov_b32 s{d+3}, 0x20000")
        A(f"v_lshrrev_b32 v{vKoff}, 4, v{vLane}")
        A(f"v_lshlrev_b32 v{vKoff}, 6, v{vKoff}")
        A(f"v_lshl_add_u32 v{vKoff}, v{vAl}, 4, v{vKoff}")
        A(f"v_bfe_u32 v{vA}, v{vLane}, 2, 2")
        A(f"v_lshl_add_u32 v{vKoff}, v{vA}, 8, v{vKoff}")
        A(f"s_lshl_b32 s{sAoff}, s{sW}, 12")
        if self.smap == 0:
            A(f"s_mul_i32 s{sStat}, s{sS}, {NW*NS*4096}")
            A(f"s_add_u32 s{sStat}, s{sStat}, s{sAoff}")
        elif self.smap == 1:
            A(f"s_lshl_b32 s{sStat}, s{sS}, 14")
            A(f"s_add_u32 s{sStat}, s{sStat}, s{sAoff}")
        else:
            A(f"s_lshl_b32 s{sStat}, s{sAoff}, 4")
            A(f"s_lshl_b32 s{sT1}, s{sS}, 12")
            A(f"s_add_u32 s{sStat}, s{sStat}, s{sT1}")

        fill = [(t, kv, b) for t in range(R) for kv in range(2) for b in range(4)]
        self.fill_pos = 0

        def issue_fill(paced):
            t, kv, b = fill[self.fill_pos]
            if paced:
                A(f"s_waitcnt vmcnt({D-1})")
            if kv == 0 and b == 0:
                if t < NA:
                    A(f"s_add_u32 s{sOff}, s{sAoff}, {t*NW*4096}")
                else:
                    A(f"s_mov_b32 s{sOff}, s{sStat}")
                    A(f"s_add_u32 s{sStat}, s{sStat}, {SSTEP}")
            if t < NA:
                kvload(t, kv, b, sKA, sVA)
            else:
                kvload(t, kv, b, sKB, sVB)
            self.fill_pos += 1

        for _ in range(F0):
            issue_fill(False)
        A(f"s_getpc_b64 s[{sPC}:{sPC+1}]")
        A("L_pc:")

        def code_prefetch():
            l = self.lab("nopf")
            A(f"s_cmp_lg_u32 s{sW}, {NW-1}")
            A(f"s_cbranch_scc1 {l}")
            A(f"v_lshlrev_b32 v{vx0}, 7, v{vLane}")
            A(f"v_add_u32 v{vx1}, 8192, v{vx0}")
            A(f"v_min_u32 v{vx1}, L_end-L_pc, v{vx1}")
            A(f"v_min_u32 v{vx0}, L_end-L_pc, v{vx0}")
            A(f"global_load_dword v{vx0}, v{vx0}, s[{sPC}:{sPC+1}]")
            A(f"global_load_dword v{vx1}, v{vx1}, s[{sPC}:{sPC+1}]")
            A(f"{l}:")
        A(f"s_mov_b32 s{sC}, {f2u(128 ** -0.5 * 1.4426950408889634):#x}")
        A(f"s_mov_b32 s{sWO+2}, 0x400000")
        A(f"s_mov_b32 s{sWO+3}, 0x20000")
        A(f"s_mov_b32 s{sOUT}, s70")
        A(f"s_mov_b32 s{sOUT+1}, s71")
        A(f"s_mov_b32 s{sOUT+2}, 2048")
        A(f"s_mov_b32 s{sOUT+3}, 0x20000")
        A(f"s_mov_b32 s{sSelx}, 0x0c0c0400")
        A(f"s_mov_b32 s{sSely}, 0x04000c0c")
        A(f"s_mov_b32 s{sMaskHi}, 0xffffff00")
        A(f"s_mov_b32 s{sJ}, 0")
        A(f"s_mov_b32 s{sSpin}, {self.spin}")
        A(f"s_lshr_b32 s{sRed}, s2, 3")
        A(f"s_xor_b32 s{sRed}, s{sRed}, s2")
        A(f"s_and_b32 s{sRed}, s{sRed}, 7")
        A(f"v_and_b32 v{vA}, 1, v{vLane}")
        A(f"v_lshlrev_b32 v{vA}, 4, v{vA}")
        A(f"v_mov_b32 v{vmX}, 0xffff")
        A(f"v_lshlrev_b32 v{vmX}, v{vA}, v{vmX}")
        A(f"v_and_b32 v{vA}, 2, v{vLane}")
        A(f"v_cmp_eq_u32 vcc, 0, v{vA}")
        A(f"v_mov_b32 v{vM}, 0xff7fffff")
        A(f"v_mov_b32 v{vL}, 0")
        A(f"v_cndmask_b32 v{vmY}, v{vmX}, 0, vcc")
        A(f"v_cndmask_b32 v{vmX}, 0, v{vmX}, vcc")
        A(f"v_mov_b32 v{vMC}, 0xff7fffff")
        A(f"v_lshrrev_b32 v{vA}, 5, v{vLane}")
        A(f"v_lshlrev_b32 v{vA}, 7, v{vA}")
        A(f"v_lshl_add_u32 v{vA}, v{vAl}, 5, v{vA}")
        A(f"v_and_b32 v{vB}, 16, v{vLane}")
        A(f"s_lshl_b32 s{sT1}, s{sW}, 8")
        A(f"v_add3_u32 v{vA}, v{vA}, v{vB}, s{sT1}")
        A("s_waitcnt lgkmcnt(0)")
        A("s_barrier")
        A(f"s_mul_i32 s{sT}, s{sT}, 0x9e3779b1")
        A(f"s_add_u32 s{sT}, s{sT}, 0x7f4a7c15")
        A(f"v_mov_b32 v{vT}, s{sT}")
        A(f"s_waitcnt vmcnt({F0+7})")
        self.TS(1)
        acc = 52
        xs = 36
        tw = 20
        for b in range(2):
            for j in range(4):
                A(f"v_lshlrev_b32 v{xs+b*8+2*j}, 16, v{vXd+4*b+j}")
                A(f"v_and_b32 v{xs+b*8+2*j+1}, 0xffff0000, v{vXd+4*b+j}")
        for i in range(8):
            if i > 0:
                A(f"s_waitcnt vmcnt({F0+7})")
            issue_fill(False)
            for j in range(4):
                w = vWd + 4 * i + j
                lo, hi = tw + (j & 1) * 2, tw + (j & 1) * 2 + 1
                A(f"v_lshlrev_b32 v{lo}, 16, v{w}")
                A(f"v_and_b32 v{hi}, 0xffff0000, v{w}")
                for b in range(2):
                    op = "v_mul_f32" if i == 0 else "v_fmac_f32"
                    A(f"{op} v{acc+8*b+2*j}, v{lo}, v{xs+8*b+i}")
                    A(f"{op} v{acc+8*b+2*j+1}, v{hi}, v{xs+8*b+i}")
        A("s_nop 1")
        for i in range(8):
            A(f"v_permlane32_swap_b32 v{acc+i}, v{acc+i+8}")
        for i in range(8):
            A(f"v_add_f32 v{acc+i}, v{acc+i}, v{acc+i+8}")
        A("s_nop 1")
        for i in range(4):
            A(f"v_permlane16_swap_b32 v{acc+i}, v{acc+i+4}")
        for i in range(4):
            A(f"v_add_f32 v{acc+i}, v{acc+i}, v{acc+i+4}")
        A("s_nop 1")
        for i in range(4):
            A(f"v_add_f32_dpp v{acc+i}, v{acc+i}, v{acc+i} row_ror:8 {DPPM}")
        A("s_nop 1")
        for i in range(4):
            A(f"v_add_f32_dpp v{acc+i}, v{acc+i}, v{acc+i} row_ror:4 {DPPM}")
        A("s_mov_b32 exec_lo, 0x000f000f")
        A("s_mov_b32 exec_hi, 0x000f000f")
        A(f"ds_write_b128 v{vA}, {vr(acc,4)} offset:{L_Q}")
        A("s_mov_b64 exec, 1")
        A(f"v_mov_b32 v{vA}, {L_C}")
        A(f"v_mov_b32 v{vB}, 1")
        A("s_waitcnt lgkmcnt(0)")
        A(f"ds_add_rtn_u32 v{vB}, v{vA}, v{vB}")
        A("s_mov_b64 exec, -1")
        code_prefetch()
        A("s_waitcnt lgkmcnt(0)")
        A(f"v_readfirstlane_b32 s{sT1}, v{vB}")
        l = self.lab("nosvc")
        A(f"v_lshlrev_b32 v{vA}, 2, v{vLane}")
        A("s_nop 2")
        A(f"s_cmp_lg_u32 s{sT1}, {NW-1}")
        A(f"s_cbranch_scc1 {l}")
        for w in range(NW):
            A(f"ds_read_b32 v{acc+w}, v{vA} offset:{L_Q+w*256}")
        A(f"s_lshl_b32 s{sT1}, s{sB}, 4")
        A(f"s_add_u32 s{sT1}, s{sT1}, s{sH}")
        A(f"s_lshl_b32 s{sT1}, s{sT1}, 11")
        A(f"s_lshl_b32 s{sT2}, s{sT0}, 1")
        A(f"s_add_u32 s{sT1}, s{sT1}, s{sT2}")
        A(f"s_add_u32 s{sT1}, s{sT1}, {WS_Q}")
        A(f"v_lshrrev_b32 v{vB}, 5, v{vLane}")
        A(f"v_lshlrev_b32 v{vB}, 14, v{vB}")
        A(f"v_and_b32 v{vA}, 31, v{vLane}")
        A(f"v_lshl_add_u32 v{vB}, v{vA}, 2, v{vB}")
        A("s_waitcnt lgkmcnt(0)")
        A(f"v_add_f32 v{acc}, v{acc}, v{acc+1}")
        A(f"v_add_f32 v{acc+2}, v{acc+2}, v{acc+3}")
        A(f"v_add_f32 v{acc}, v{acc}, v{acc+2}")
        A(f"v_mov_b32 v{acc+9}, v{vT}")
        A(f"v_mov_b32 v{acc+11}, v{vT}")
        A(f"v_mov_b32_dpp v{acc+1}, v{acc} quad_perm:[1,1,3,3] {DPPM}")
        A("s_nop 0")
        A(f"v_cvt_pk_bf16_f32 v{acc+8}, v{acc}, v{acc+1}")
        A("s_nop 1")
        A(f"v_mov_b32_dpp v{acc+10}, v{acc+8} quad_perm:[2,2,2,2] {DPPM}")
        A("s_mov_b32 exec_lo, 0x11111111")
        A("s_mov_b32 exec_hi, 0x11111111")
        A(f"buffer_store_dwordx4 {vr(acc+8,4)}, v{vB}, {srd(sWS)}, s{sT1} offen sc1")
        A("s_mov_b64 exec, -1")
        self.TS(2)
        A(f"{l}:")
        vQg = DD
        A(f"v_lshlrev_b32 v{vA}, 1, v{vKoff}")
        A(f"s_lshl_b32 s{sT1}, s{sBH}, 11")
        A(f"s_add_u32 s{sT1}, s{sT1}, {WS_Q}")
        A(f"s_add_u32 s{sT2}, s{sT1}, 32768")

        def q_loads():
            A(f"buffer_load_dwordx4 {vr(vQg,4)}, v{vA}, {srd(sWS)}, s{sT1} offen sc1")
            A(f"buffer_load_dwordx4 {vr(vQg+4,4)}, v{vA}, {srd(sWS)}, s{sT1} offen offset:16 sc1")
            A(f"buffer_load_dwordx4 {vr(vQg+8,4)}, v{vA}, {srd(sWS)}, s{sT2} offen sc1")
            A(f"buffer_load_dwordx4 {vr(vQg+12,4)}, v{vA}, {srd(sWS)}, s{sT2} offen offset:16 sc1")

        assert 8 * R - P1 >= D
        first = True
        while self.fill_pos < 8 * R:
            if self.fill_pos == P1:
                q_loads()
            issue_fill(True)
            if first:
                for i in range(8):
                    A(f"v_mov_b32 v{vO1+i}, 0")
                first = False
        self.TS(3)
        lchk, lok = self.lab("qchk"), self.lab("qok")
        A(f"{lchk}:")
        A(f"v_xor_b32 v{vAl}, v{vQg+1}, v{vT}")
        for i in range(1, 8):
            A(f"v_xor_b32 v{vB}, v{vQg+2*i+1}, v{vT}")
            A(f"v_or_b32 v{vAl}, v{vAl}, v{vB}")
        A(f"v_cmp_ne_u32 vcc, 0, v{vAl}")
        A(f"s_cbranch_vccz {lok}")
        A(f"s_sub_u32 s{sSpin}, s{sSpin}, 1")
        A("s_cbranch_scc1 L_end")
        q_loads()
        A("s_waitcnt vmcnt(0)")
        A(f"s_branch {lchk}")
        A(f"{lok}:")
        for i in range(4):
            A(f"v_mov_b32 v{vQ+i}, v{vQg+2*i}")
        for i in range(4):
            A(f"v_mov_b32 v{vQB+i}, v{vQg+8+2*i}")
        self.TS(4)

        stubs = []
        JS = NS - (R - NA)
        if self.tkm:
            A("s_mov_b32 s59, 0\ns_mov_b32 s79, 0\ns_mov_b32 s57, 0")

        def tile_ts():
            if self.ts:
                A("s_memrealtime s[96:97]")
                A(f"s_add_u32 m0, s{sJ}, 16")
                A("s_waitcnt lgkmcnt(0)")
                A(f"v_writelane_b32 v{vTS}, s96, m0")
                if self.tkm:
                    A("s_memrealtime s[100:101]")
                    A("s_waitcnt lgkmcnt(0)")
                    A("s_sub_u32 s100, s100, s96")
                    A(f"s_cmp_lt_u32 s{sJ}, {JS}")
                    A("s_cselect_b32 s96, 0, s100")
                    A("s_cselect_b32 s97, s100, 0")
                    A("s_cselect_b32 s100, 0, 1")
                    A("s_add_u32 s59, s59, s96")
                    A("s_add_u32 s79, s79, s97")
                    A("s_add_u32 s57, s57, s100")

        def request_ticket():
            A(f"s_mov_b32 s{sTkN}, 1")
            A(f"s_atomic_add s{sTkN}, s[{sCnt}:{sCnt+1}], 0 glc")

        def read_ticket():
            A("s_waitcnt lgkmcnt(0)")
            A(f"s_mov_b32 s{sTk}, s{sTkN}")
            A(f"s_lshl_b32 s{sOff}, s{sTk}, {14 if self.dmap == 0 else 12}")
            A(f"s_add_u32 s{sOff}, s{sOff}, s{sPool}")

        def body(p, pace):
            def IP(kv, b):
                if pace is None:
                    if kv == 0 and b == 0:
                        A("s_nop 0")
                    return
                A(f"s_waitcnt vmcnt({pace-1})")
                kvload(p, kv, b, sKB, sVB)
            for b in range(4):
                A(f"v_mfma_f32_16x16x32_bf16 {vr(DD+4*b,4)}, {vr(slot(p,0,b),4)}, {vr(vQ,4)}, 0")
            IP(0, 0)
            A("s_nop 3")
            for b in range(4):
                d = DD + 4 * b
                A(f"v_mov_b32_dpp v{vS+b}, v{d} quad_perm:[0,0,0,0] {DPPM}")
                for q in range(1, 4):
                    A(f"v_add_f32_dpp v{vS+b}, v{d+q}, v{vS+b} quad_perm:[{q},{q},{q},{q}] {DPPM}")
                if b < 3:
                    IP(0, b + 1)
            A(f"v_max3_f32 v{vA}, v{vS}, v{vS+1}, v{vS+2}")
            A(f"v_max_f32 v{vA}, v{vA}, v{vS+3}")
            lr, lb = self.lab("rs"), self.lab("rsb")
            A(f"v_cmp_gt_f32 vcc, v{vA}, v{vM}")
            A(f"s_cbranch_vccnz {lr}")
            A(f"{lb}:")
            stubs.append((lr, lb))
            for b in range(4):
                A(f"v_fma_f32 v{vt+b}, v{vS+b}, s{sC}, -v{vMC}")
            for b in range(4):
                A(f"v_exp_f32 v{vt+b}, v{vt+b}")
            for b in range(4):
                A(f"v_cvt_pk_bf16_f32 v{vpd+b}, v{vt+b}, v{vt+b}")
            for b in range(4):
                A(f"v_and_b32 v{vXY+2*b}, v{vpd+b}, v{vmX}")
                A(f"v_and_b32 v{vXY+2*b+1}, v{vpd+b}, v{vmY}")
            A(f"v_add_f32 v{vA}, v{vt}, v{vt+1}")
            A(f"v_add_f32 v{vB}, v{vt+2}, v{vt+3}")
            for b in range(4):
                r = slot(p, 1, b)
                A(f"v_mfma_f32_16x16x16_bf16 {vr(vO1,4)}, {vr(r,2)}, {vr(vXY+2*b,2)}, {vr(vO1,4)}")
                A(f"v_mfma_f32_16x16x16_bf16 {vr(vO2,4)}, {vr(r+2,2)}, {vr(vXY+2*b,2)}, {vr(vO2,4)}")
                if b == 0:
                    A(f"v_add_f32 v{vL}, v{vL}, v{vA}")
                if b == 1:
                    A(f"v_add_f32 v{vL}, v{vL}, v{vB}")
                IP(1, b)

        JS = NS - (R - NA)
        A(".p2align 6")
        A("L_loop:")
        for p in range(R):
            lgo, ldyn, lreq = self.lab("go"), self.lab("dyn"), self.lab("req")
            tile_ts()
            A(f"s_cmp_lt_u32 s{sJ}, {JS}")
            A(f"s_cbranch_scc0 {ldyn}")
            A(f"s_mov_b32 s{sOff}, s{sStat}")
            A(f"s_add_u32 s{sStat}, s{sStat}, {SSTEP}")
            if self.dyn:
                A(f"s_cmp_lt_u32 s{sJ}, {JS-1}")
                A(f"s_cbranch_scc1 {lgo}")
                A(f"s_branch {lreq}")
                A(f"{ldyn}:")
                read_ticket()
                A(f"s_cmp_lt_u32 s{sTk}, {max(DYN-U,0)}")
                A(f"s_cbranch_scc0 L_ftk{p}" if U else f"s_cbranch_scc0 L_fdrain{p}")
                A(f"{lreq}:")
                request_ticket()
            else:
                A(f"s_branch {lgo}")
                A(f"{ldyn}:")
                A(f"s_branch L_fdrain{p}")
            A(f"{lgo}:")
            body(p, D)
            if p == NA - 1:
                A(f"s_cmp_eq_u32 s{sJ}, {NA-1}")
                A("s_cbranch_scc1 L_flushA")
                A("L_flushA_ret:")
            A(f"s_add_u32 s{sJ}, s{sJ}, 1")
        A("s_branch L_loop")

        if self.dyn and U:
            A("L_floop:")
            for p in range(R):
                tile_ts()
                read_ticket()
                A(f"L_ftk{p}:")
                A(f"s_cmp_lt_u32 s{sTk}, {DYN}")
                A(f"s_cbranch_scc0 L_fdrain{p}")
                request_ticket()
                body(p, DF)
                A(f"s_add_u32 s{sJ}, s{sJ}, 1")
            A("s_branch L_floop")
        for p in range(R):
            A(f"L_fdrain{p}:")
            A(f"s_mov_b32 s{sDrain}, {R-1}")
            A(f"s_branch L_dgo{p}")
        A("L_dloop:")
        for p in range(R):
            l1 = self.lab("d1")
            tile_ts()
            A(f"s_sub_u32 s{sDrain}, s{sDrain}, 1")
            A("s_cbranch_scc1 L_exit")
            A(f"s_cmp_gt_u32 s{sDrain}, 1")
            A(f"s_cbranch_scc1 L_dgo{p}")
            A(f"s_cmp_gt_u32 s{sDrain}, 0")
            A(f"s_cbranch_scc1 {l1}")
            A("s_waitcnt vmcnt(0)")
            A(f"{l1}:")
            A("s_waitcnt vmcnt(8)")
            A(f"L_dgo{p}:")
            A("s_waitcnt vmcnt(16)")
            body(p, None)
            A(f"s_add_u32 s{sJ}, s{sJ}, 1")
        A("s_branch L_dloop")

        for lr, lb in stubs:
            A(f"{lr}:")
            A(f"s_call_b64 s[{sRet}:{sRet+1}], L_resc")
            A(f"s_branch {lb}")

        A("L_resc:")
        A(f"v_max_f32 v{vA}, v{vA}, v{vM}")
        A(f"v_mov_b32 v{vB}, v{vA}")
        A("s_nop 1")
        A(f"v_permlane16_swap_b32 v{vA}, v{vB}")
        A(f"v_max_f32 v{vA}, v{vA}, v{vB}")
        A(f"v_mov_b32 v{vB}, v{vA}")
        A("s_nop 1")
        A(f"v_permlane32_swap_b32 v{vA}, v{vB}")
        A(f"v_max_f32 v{vM}, v{vA}, v{vB}")
        A(f"v_mul_f32 v{vA}, s{sC}, v{vM}")
        A(f"v_sub_f32 v{vAl}, v{vMC}, v{vA}")
        A(f"v_exp_f32 v{vAl}, v{vAl}")
        A(f"v_mov_b32 v{vMC}, v{vA}")
        for i in range(8):
            A(f"v_mul_f32 v{vO1+i}, v{vO1+i}, v{vAl}")
        A(f"v_mul_f32 v{vL}, v{vL}, v{vAl}")
        A(f"s_setpc_b64 s[{sRet}:{sRet+1}]")

        def state_to_lds(br):
            A(f"v_mov_b32 v{vB}, v{vL}")
            A(f"s_mul_i32 s{sT1}, s{sW}, {W_STR}")
            A(f"v_add_u32 v{vA}, s{sT1}, v{vLin}")
            A(f"v_permlane16_swap_b32 v{vL}, v{vB}")
            A(f"v_add_f32 v{vL}, v{vL}, v{vB}")
            A(f"v_mov_b32 v{vB}, v{vL}")
            A(f"s_lshl_b32 s{sT1}, s{sW}, 3")
            A("s_nop 0")
            A(f"v_permlane32_swap_b32 v{vL}, v{vB}")
            A(f"v_add_f32 v{vL}, v{vL}, v{vB}")
            A(f"v_bfe_u32 v{vB}, v{vLane}, 2, 2")
            A(f"v_lshlrev_b32 v{vB}, 5, v{vB}")
            A(f"v_add_u32 v{vB}, s{sT1}, v{vB}")
            A(f"ds_write_b128 v{vA}, {vr(vO1,4)} offset:{L_O+br*NW*W_STR}")
            A(f"ds_write_b128 v{vA}, {vr(vO2,4)} offset:{L_O+br*NW*W_STR+U_STR}")
            A("s_mov_b64 exec, 0x1111")
            A(f"ds_write_b64 v{vB}, {vr(vM,2)} offset:{L_ML+br*128}")
            A("s_mov_b64 exec, -1")

        A("L_flushA:")
        state_to_lds(0)
        for i in range(4):
            A(f"v_mov_b32 v{vQ+i}, v{vQB+i}")
        A("s_waitcnt lgkmcnt(0)")
        A(f"v_mov_b32 v{vM}, 0xff7fffff")
        A(f"v_mov_b32 v{vMC}, 0xff7fffff")
        A(f"v_mov_b32 v{vL}, 0")
        for i in range(8):
            A(f"v_mov_b32 v{vO1+i}, 0")
        A("s_branch L_flushA_ret")

        A("L_exit:")
        self.TS(5)
        state_to_lds(1)
        A(f"s_lshl_b32 s{sT1}, s{sH}, 19")
        A(f"s_lshl_b32 s{sT2}, s{sS}, 15")
        A(f"s_add_u32 s{sT1}, s{sT1}, s{sT2}")
        A(f"s_lshl_b32 s{sT2}, s{sW}, 8")
        A(f"s_add_u32 s{sT1}, s{sT1}, s{sT2}")
        A(f"s_add_u32 s{sT2}, s{sT1}, 4096")
        A(f"v_lshrrev_b32 v{vA}, 4, v{vLane}")
        A(f"v_lshlrev_b32 v{vA}, 13, v{vA}")
        A(f"v_and_b32 v{vB}, 15, v{vLane}")
        A(f"v_lshl_add_u32 v{vA}, v{vB}, 4, v{vA}")
        vWO = slot(R - 1, 0, 0)
        for i in range(8):
            A(f"buffer_load_dwordx4 {vr(vWO+4*i,4)}, v{vA}, {srd(sWO)}, s{(sT1, sT2)[i>>2]} offen offset:{(i&3)*1024} {self.wopol}")
        if self.pf2:
            code_prefetch()
        vG = slot(R - 2, 0, 0)
        l = self.lab("nogate")
        A(f"s_lshl_b32 s{sT1}, s{sRed}, 3")
        A(f"s_or_b32 s{sT1}, s{sT1}, s{sW}")
        A(f"s_cmp_lg_u32 s{sT1}, 3")
        A(f"s_cbranch_scc1 {l}")
        A(f"s_lshl_b32 s{sT1}, s2, 7")
        A(f"s_and_b32 s{sT1}, s{sT1}, 1024")
        A(f"buffer_load_dwordx4 {vr(vG,4)}, v{vLin}, {srd(sX)}, s{sT1} offen")
        A(f"global_load_dwordx4 {vr(vG+4,4)}, v{vLin}, s[68:69]")
        A(f"{l}:")
        ml = RING
        od = RING + 8
        A(f"s_lshr_b32 s{sT1}, s{sW}, 1")
        A(f"s_and_b32 s{sT2}, s{sW}, 1")
        A(f"s_lshl_b32 s{sT3}, s{sT1}, 7")
        A(f"v_bfe_u32 v{vB}, v{vLane}, 3, 2")
        A(f"v_lshlrev_b32 v{vB}, 5, v{vB}")
        A(f"v_add_u32 v{vB}, s{sT3}, v{vB}")
        A(f"s_mul_i32 s{sT3}, s{sT1}, {NW*W_STR}")
        A(f"s_lshl_b32 s{sT0}, s{sT2}, 9")
        A(f"s_add_u32 s{sT3}, s{sT3}, s{sT0}")
        A(f"v_lshrrev_b32 v{vA}, 3, v{vLane}")
        A(f"v_lshlrev_b32 v{vA}, 6, v{vA}")
        A(f"v_and_b32 v{vAl}, 3, v{vLane}")
        A(f"v_lshl_add_u32 v{vA}, v{vAl}, 4, v{vA}")
        A(f"v_bfe_u32 v{vAl}, v{vLane}, 2, 1")
        A(f"v_mul_u32_u24 v{vAl}, {U_STR}, v{vAl}")
        A(f"v_add3_u32 v{vA}, v{vA}, v{vAl}, s{sT3}")
        A(f"s_lshl_b32 s{sIdx}, s{sT1}, 8")
        A(f"s_add_u32 s{sIdx}, s{sIdx}, s2")
        A(f"s_lshl_b32 s{sT3}, s{sIdx}, 11")
        A(f"s_lshl_b32 s{sT0}, s{sT2}, 10")
        A(f"s_add_u32 s{sT3}, s{sT3}, s{sT0}")
        A(f"s_add_u32 s{sT3}, s{sT3}, {WS_PO}")
        A(f"s_lshl_b32 s{sT0}, s{sIdx}, 7")
        A(f"s_add_u32 s{sT0}, s{sT0}, {WS_PML}")
        tb = DD
        A(f"v_and_b32 v{tb}, 0xff, v{vT}")
        A(f"v_bfe_u32 v{tb+1}, v{vT}, 8, 8")
        A(f"v_bfe_u32 v{tb+2}, v{vT}, 16, 8")
        A(f"v_lshrrev_b32 v{tb+3}, 24, v{vT}")
        Mx, Ls = DD + 4, DD + 5
        res = DD + 8
        A(f"v_mov_b32 v{DD+6}, v{vT}")
        A(f"v_mov_b32 v{DD+7}, v{vT}")
        A(f"v_lshlrev_b32 v{vx0}, 1, v{vLane}")
        A("s_waitcnt lgkmcnt(0)")
        A("s_barrier")
        self.TS(6)
        for i in range(2):
            A(f"ds_read_b128 {vr(ml+4*i,4)}, v{vB} offset:{L_ML+16*i}")
        for w in range(NW):
            A(f"ds_read_b128 {vr(od+4*w,4)}, v{vA} offset:{L_O+W_STR*w}")
        A("s_waitcnt lgkmcnt(4)")
        A(f"v_max3_f32 v{Mx}, v{ml}, v{ml+2}, v{ml+4}")
        A(f"v_max_f32 v{Mx}, v{Mx}, v{ml+6}")
        A(f"v_mul_f32 v{vAl}, s{sC}, v{Mx}")
        for w in range(NW):
            A(f"v_fma_f32 v{ml+2*w}, v{ml+2*w}, s{sC}, -v{vAl}")
        for w in range(NW):
            A(f"v_exp_f32 v{ml+2*w}, v{ml+2*w}")
        A("s_waitcnt lgkmcnt(0)")
        for i in range(4):
            A(f"v_mul_f32 v{res+i}, v{ml}, v{od+i}")
        for w in range(1, NW):
            for i in range(4):
                A(f"v_fmac_f32 v{res+i}, v{ml+2*w}, v{od+4*w+i}")
        for i in range(4):
            A(f"v_and_or_b32 v{res+i}, v{res+i}, s{sMaskHi}, v{tb+i}")
        A(f"buffer_store_dwordx4 {vr(res,4)}, v{vLin}, {srd(sWS)}, s{sT3} offen sc1")
        l = self.lab("noml")
        A(f"s_cmp_lg_u32 s{sT2}, 0")
        A(f"s_cbranch_scc1 {l}")
        A(f"v_mul_f32 v{Ls}, v{ml}, v{ml+1}")
        for w in range(1, NW):
            A(f"v_fmac_f32 v{Ls}, v{ml+2*w}, v{ml+2*w+1}")
        A("s_mov_b32 exec_lo, 0x01010101")
        A("s_mov_b32 exec_hi, 0x01010101")
        A(f"buffer_store_dwordx4 {vr(Mx,4)}, v{vx0}, {srd(sWS)}, s{sT0} offen sc1")
        A("s_mov_b64 exec, -1")
        A(f"{l}:")
        self.TS(7)

        def tagcheck(regs, extra):
            n = 0
            for r in regs:
                A(f"v_perm_b32 v{vD+n}, v{r+1}, v{r}, s{sSelx}")
                A(f"v_perm_b32 v{vD+n+1}, v{r+3}, v{r+2}, s{sSely}")
                A(f"v_or_b32 v{vD+n}, v{vD+n}, v{vD+n+1}")
                A(f"v_xor_b32 v{vD+n}, v{vD+n}, v{vT}")
                n += 1
            for r in extra:
                A(f"v_xor_b32 v{vD+n}, v{r}, v{vT}")
                n += 1
            for i in range(1, n):
                A(f"v_or_b32 v{vD}, v{vD}, v{vD+i}")
            A(f"v_cmp_ne_u32 vcc, 0, v{vD}")

        def poll(loads, check, delay):
            lp, lok = self.lab("poll"), self.lab("pok")
            if delay:
                A(f"s_sleep {delay}")
            A(f"{lp}:")
            loads()
            A("s_mov_b64 exec, -1")
            A(f"s_sub_u32 s{sSpin}, s{sSpin}, 1")
            A("s_cbranch_scc1 L_end")
            A("s_waitcnt vmcnt(0)")
            check()
            A(f"s_cbranch_vccz {lok}")
            A("s_mov_b64 exec, vcc")
            A(f"s_branch {lp}")
            A(f"{lok}:")

        def xreduce(regs, op, tmp):
            A("s_nop 1")
            for r in regs:
                A(f"{op}_dpp v{r}, v{r}, v{r} row_ror:8 {DPPM}")
            for sw in ("v_permlane16_swap_b32", "v_permlane32_swap_b32"):
                for i, r in enumerate(regs):
                    A(f"v_mov_b32 v{tmp+i}, v{r}")
                A("s_nop 1")
                for i, r in enumerate(regs):
                    A(f"{sw} v{r}, v{tmp+i}")
                for i, r in enumerate(regs):
                    A(f"{op} v{r}, v{r}, v{tmp+i}")

        A(f"s_cmp_eq_u32 s{sT2}, 0")
        A("s_cbranch_scc1 L_t3")
        oa, obb, mla, mlb = RING, RING + 4, RING + 8, RING + 12
        A(f"s_lshl_b32 s{sT1}, s{sT1}, 7")
        A(f"s_lshl_b32 s{sT2}, s{sB}, 8")
        A(f"s_add_u32 s{sT1}, s{sT1}, s{sT2}")
        A(f"s_lshl_b32 s{sT2}, s{sH}, 4")
        A(f"s_add_u32 s{sT1}, s{sT1}, s{sT2}")
        A(f"s_and_b32 s{sT2}, s{sS}, 3")
        A(f"s_lshl_b32 s{sT2}, s{sT2}, 9")
        A(f"s_lshr_b32 s{sT3}, s{sS}, 2")
        A(f"s_lshl_b32 s{sT0}, s{sT3}, 7")
        A(f"s_add_u32 s{sT2}, s{sT2}, s{sT0}")
        A(f"s_lshl_b32 s{sT0}, s{sT1}, 11")
        A(f"s_add_u32 s{sT2}, s{sT2}, s{sT0}")
        A(f"s_add_u32 s{sT2}, s{sT2}, {WS_PO}")
        A(f"s_add_u32 s{sIdx}, s{sT2}, 16384")
        A(f"s_lshl_b32 s{sT1}, s{sT1}, 7")
        A(f"s_lshl_b32 s{sT3}, s{sT3}, 4")
        A(f"s_add_u32 s{sT1}, s{sT1}, s{sT3}")
        A(f"s_add_u32 s{sT1}, s{sT1}, {WS_PML}")
        A(f"v_lshrrev_b32 v{vB}, 3, v{vLane}")
        A(f"v_lshlrev_b32 v{vA}, 11, v{vB}")
        A(f"v_and_b32 v{vAl}, 7, v{vLane}")
        A(f"v_lshl_add_u32 v{vA}, v{vAl}, 4, v{vA}")
        A(f"v_lshlrev_b32 v{vB}, 7, v{vB}")

        def h1loads():
            A(f"buffer_load_dwordx4 {vr(mla,4)}, v{vB}, {srd(sWS)}, s{sT1} offen sc1")
            A(f"buffer_load_dwordx4 {vr(mlb,4)}, v{vB}, {srd(sWS)}, s{sT1} offen offset:1024 sc1")
            A(f"buffer_load_dwordx4 {vr(oa,4)}, v{vA}, {srd(sWS)}, s{sT2} offen sc1")
            A(f"buffer_load_dwordx4 {vr(obb,4)}, v{vA}, {srd(sWS)}, s{sIdx} offen sc1")
        poll(h1loads, lambda: tagcheck([oa, obb], [mla + 2, mlb + 2]), self.d1)
        self.TS(8)
        Mg = vD
        A(f"v_max_f32 v{Mg}, v{mla}, v{mlb}")
        xreduce([Mg], "v_max_f32", vD + 8)
        A(f"v_mul_f32 v{Mg}, s{sC}, v{Mg}")
        A(f"v_fma_f32 v{mla}, v{mla}, s{sC}, -v{Mg}")
        A(f"v_fma_f32 v{mlb}, v{mlb}, s{sC}, -v{Mg}")
        A(f"v_exp_f32 v{mla}, v{mla}")
        A(f"v_exp_f32 v{mlb}, v{mlb}")
        A(f"s_lshr_b32 s{sT1}, s{sW}, 1")
        A(f"v_mul_f32 v{vD+1}, v{mla}, v{mla+1}")
        A(f"v_fmac_f32 v{vD+1}, v{mlb}, v{mlb+1}")
        for i in range(4):
            A(f"v_mul_f32 v{vD+2+i}, v{mla}, v{oa+i}")
        for i in range(4):
            A(f"v_fmac_f32 v{vD+2+i}, v{mlb}, v{obb+i}")
        xreduce([vD + 1 + i for i in range(5)], "v_add_f32", vD + 8)
        A(f"v_rcp_f32 v{vD+1}, v{vD+1}")
        A(f"s_lshl_b32 s{sT1}, s{sT1}, 7")
        A(f"v_lshlrev_b32 v{vA}, 2, v{vAl}")
        A(f"v_add_u32 v{vA}, s{sT1}, v{vA}")
        for i in range(4):
            A(f"v_mul_f32 v{vD+2+i}, v{vD+2+i}, v{vD+1}")
        for i in range(4):
            A(f"v_cvt_pk_bf16_f32 v{vD+2+i}, v{vD+2+i}, v{vD+2+i}")
        A("s_mov_b64 exec, 0xff")
        for i in range(4):
            A(f"ds_write_b32 v{vA}, v{vD+2+i} offset:{L_OF+32*i}")
        A("s_mov_b64 exec, -1")

        A("L_t3:")
        mk = 52
        A(f"v_and_b32 v{vA}, 1, v{vLane}")
        A(f"v_lshlrev_b32 v{vA}, 4, v{vA}")
        A(f"v_mov_b32 v{vB}, 0xffff")
        A(f"v_lshlrev_b32 v{vB}, v{vA}, v{vB}")
        A(f"v_bfe_u32 v{vA}, v{vLane}, 1, 2")
        for j in range(4):
            A(f"v_cmp_eq_u32 vcc, {j}, v{vA}")
            A("s_nop 1")
            A(f"v_cndmask_b32 v{mk+j}, 0, v{vB}, vcc")
        A(f"v_bfe_u32 v{vA}, v{vLane}, 3, 1")
        A(f"v_lshlrev_b32 v{vA}, 7, v{vA}")
        A(f"v_lshrrev_b32 v{vB}, 4, v{vLane}")
        A(f"v_lshl_add_u32 v{vA}, v{vB}, 5, v{vA}")
        A(f"s_lshl_b32 s{sT3}, s{sW}, 10")
        A(f"s_lshl_b32 s{sT0}, s2, 12")
        A(f"s_add_u32 s{sT3}, s{sT3}, s{sT0}")
        A(f"s_add_u32 s{sT3}, s{sT3}, {WS_C}")
        A("s_waitcnt vmcnt(0) lgkmcnt(0)")
        A("s_barrier")
        ob = RING
        bo = RING + 8
        A(f"ds_read_b128 {vr(ob,4)}, v{vA} offset:{L_OF}")
        A(f"ds_read_b128 {vr(ob+4,4)}, v{vA} offset:{L_OF+16}")
        for i in range(8):
            if i == 0:
                A("s_waitcnt lgkmcnt(1)")
            if i == 4:
                A("s_waitcnt lgkmcnt(0)")
            for j in range(4):
                A(f"v_and_b32 v{bo+4*i+j}, v{ob+i}, v{mk+j}")
            if i > 0:
                c = "0" if i == 1 else vr(res, 4)
                A(f"v_mfma_f32_16x16x32_bf16 {vr(res,4)}, {vr(vWO+4*(i-1),4)}, {vr(bo+4*(i-1),4)}, {c}")
        A("s_nop 0")
        A(f"v_mfma_f32_16x16x32_bf16 {vr(res,4)}, {vr(vWO+28,4)}, {vr(bo+28,4)}, {vr(res,4)}")
        A("s_nop 7")
        for i in range(4):
            A(f"v_and_or_b32 v{res+i}, v{res+i}, s{sMaskHi}, v{tb+i}")
        A(f"buffer_store_dwordx4 {vr(res,4)}, v{vLin}, {srd(sWS)}, s{sT3} offen sc1")
        self.TS(9)

        A(f"s_cmp_lg_u32 s{sRed}, 0")
        A("s_cbranch_scc1 L_fin")
        ca = RING
        A(f"s_lshr_b32 s{sT1}, s2, 3")
        A(f"s_lshl_b32 s{sT2}, s{sT1}, 7")
        A(f"s_lshl_b32 s{sT3}, s{sW}, 18")
        A(f"s_add_u32 s{sT2}, s{sT2}, s{sT3}")
        A(f"s_add_u32 s{sT2}, s{sT2}, {WS_C}")
        A(f"v_lshrrev_b32 v{vA}, 3, v{vLane}")
        A(f"v_lshlrev_b32 v{vA}, 12, v{vA}")
        A(f"v_and_b32 v{vB}, 7, v{vLane}")
        A(f"v_lshl_add_u32 v{vA}, v{vB}, 4, v{vA}")
        for k in range(8):
            A(f"s_add_u32 s{48+k}, s{sT2}, {k*32768}")
        l = self.lab("nog2")
        A(f"s_cmp_lg_u32 s{sW}, 3")
        A(f"s_cbranch_scc1 {l}")
        g0 = RING + 40
        for j in range(4):
            A(f"v_lshlrev_b32 v{g0+4*j}, 16, v{vG+j}")
            A(f"v_and_b32 v{g0+4*j+1}, 0xffff0000, v{vG+j}")
            A(f"v_lshlrev_b32 v{g0+4*j+2}, 16, v{vG+4+j}")
            A(f"v_and_b32 v{g0+4*j+3}, 0xffff0000, v{vG+4+j}")
        for j in range(4):
            A(f"v_mul_f32 v{g0+4*j}, v{g0+4*j}, v{g0+4*j+2}")
            A(f"v_mul_f32 v{g0+4*j+1}, v{g0+4*j+1}, v{g0+4*j+3}")
        for j in range(4):
            A(f"v_cvt_pk_bf16_f32 v{g0+4*j}, v{g0+4*j}, v{g0+4*j+1}")
        for j in range(4):
            A(f"v_and_b32 v{g0+4*j+1}, 0xffff0000, v{g0+4*j}")
            A(f"v_lshlrev_b32 v{g0+4*j}, 16, v{g0+4*j}")
        for j in range(4):
            A(f"v_add_f32 v{g0+4*j}, v{g0+4*j}, v{g0+4*j+1}")
        A(f"v_add_f32 v{g0}, v{g0}, v{g0+4}")
        A(f"v_add_f32 v{g0+8}, v{g0+8}, v{g0+12}")
        A(f"v_add_f32 v{g0}, v{g0}, v{g0+8}")
        for ror in (1, 2, 4):
            A("s_nop 1")
            A(f"v_add_f32_dpp v{g0}, v{g0}, v{g0} row_ror:{ror} {DPPM}")
        xreduce([g0], "v_add_f32", g0 + 1)
        A(f"v_cvt_pk_bf16_f32 v{g0}, v{g0}, v{g0}")
        A(f"v_and_b32 v{g0}, 0xffff0000, v{g0}")
        A(f"v_mul_f32 v{g0}, {f2u(-1.4426950408889634):#x}, v{g0}")
        A(f"v_exp_f32 v{g0}, v{g0}")
        A("s_nop 0")
        A(f"v_add_f32 v{g0}, 1.0, v{g0}")
        A(f"v_rcp_f32 v{g0}, v{g0}")
        A("s_nop 0")
        A(f"v_cvt_pk_bf16_f32 v{g0}, v{g0}, v{g0}")
        A(f"v_and_b32 v{g0}, 0xffff0000, v{g0}")
        A(f"v_mov_b32 v{g0+1}, {L_G}")
        A("s_mov_b64 exec, 1")
        A(f"ds_write_b32 v{g0+1}, v{g0}")
        A("s_mov_b64 exec, -1")
        A(f"{l}:")

        def h2loads():
            for k in range(8):
                A(f"buffer_load_dwordx4 {vr(ca+4*k,4)}, v{vA}, {srd(sWS)}, s{48+k} offen sc1")
        poll(h2loads, lambda: tagcheck([ca + 4 * k for k in range(8)], []), self.d2)
        self.TS(10)
        for st in (16, 8, 4):
            for i in range(st):
                A(f"v_add_f32 v{ca+i}, v{ca+i}, v{ca+st+i}")
        A("s_nop 1")
        A(f"v_permlane32_swap_b32 v{ca}, v{ca+2}")
        A(f"v_permlane32_swap_b32 v{ca+1}, v{ca+3}")
        A(f"v_add_f32 v{ca}, v{ca}, v{ca+2}")
        A(f"v_add_f32 v{ca+1}, v{ca+1}, v{ca+3}")
        A("s_nop 1")
        A(f"v_permlane16_swap_b32 v{ca}, v{ca+1}")
        A(f"v_add_f32 v{ca}, v{ca}, v{ca+1}")
        A(f"v_lshrrev_b32 v{vA}, 4, v{vLane}")
        A(f"v_lshlrev_b32 v{vA}, 5, v{vA}")
        A(f"v_add_f32_dpp v{ca}, v{ca}, v{ca} row_ror:8 {DPPM}")
        A(f"v_lshl_add_u32 v{vA}, v{vB}, 2, v{vA}")
        A(f"s_lshl_b32 s{sT2}, s{sW}, 7")
        A(f"v_add_u32 v{vA}, s{sT2}, v{vA}")
        A("s_mov_b32 exec_lo, 0x00ff00ff")
        A("s_mov_b32 exec_hi, 0x00ff00ff")
        A(f"ds_write_b32 v{vA}, v{ca} offset:{L_R}")
        A("s_mov_b64 exec, -1")
        A(f"v_and_b32 v{vB}, 31, v{vLane}")
        A(f"v_lshlrev_b32 v{vA}, 2, v{vB}")
        A(f"v_add_u32 v{vAl}, {L_R}, v{vA}")
        A(f"v_mov_b32 v{vD}, {L_G}")
        A(f"s_lshr_b32 s{sT2}, s{sT1}, 1")
        A(f"s_lshl_b32 s{sT2}, s{sT2}, 6")
        A(f"s_and_b32 s{sT3}, s{sT1}, 1")
        A(f"s_lshl_b32 s{sT3}, s{sT3}, 10")
        A(f"s_add_u32 s{sT2}, s{sT2}, s{sT3}")
        A(f"v_lshlrev_b32 v{vA}, 1, v{vB}")
        A("s_waitcnt lgkmcnt(0)")
        A("s_barrier")
        A(f"s_cmp_lg_u32 s{sW}, 0")
        A("s_cbranch_scc1 L_fin")
        fa = RING
        for w in range(2):
            A(f"ds_read2_b32 {vr(fa+2*w,2)}, v{vAl} offset0:{w*32} offset1:{w*32+64}")
        A(f"ds_read_b32 v{vD}, v{vD}")
        A("s_waitcnt lgkmcnt(0)")
        A(f"v_add_f32 v{fa}, v{fa}, v{fa+2}")
        A(f"v_add_f32 v{fa+1}, v{fa+1}, v{fa+3}")
        A(f"v_sub_f32 v{vD+1}, 1.0, v{vD}")
        A(f"v_cvt_pk_bf16_f32 v{fa}, v{fa}, v{fa+1}")
        A(f"v_cvt_pk_bf16_f32 v{vD+1}, v{vD+1}, v{vD+1}")
        A(f"v_and_b32 v{fa+1}, 0xffff0000, v{fa}")
        A(f"v_lshlrev_b32 v{fa}, 16, v{fa}")
        A(f"v_and_b32 v{vD+1}, 0xffff0000, v{vD+1}")
        A(f"v_mul_f32 v{fa}, v{fa}, v{vD}")
        A(f"v_mul_f32 v{fa+1}, v{fa+1}, v{vD+1}")
        A(f"v_cvt_pk_bf16_f32 v{fa}, v{fa}, v{fa+1}")
        A(f"v_and_b32 v{fa+1}, 0xffff0000, v{fa}")
        A(f"v_lshlrev_b32 v{fa}, 16, v{fa}")
        A(f"v_add_f32 v{fa}, v{fa}, v{fa+1}")
        A(f"v_cvt_pk_bf16_f32 v{fa}, v{fa}, v{fa}")
        A("s_mov_b32 exec_hi, 0")
        A(f"buffer_store_short v{fa}, v{vA}, {srd(sOUT)}, s{sT2} offen")
        A("s_cmp_lg_u32 s2, 0")
        A("s_cbranch_scc1 L_fin")
        A("s_mov_b64 exec, 1")
        A(f"v_mov_b32 v{vA}, {WS_EPOCH}")
        A(f"buffer_store_dword v{vT}, v{vA}, {srd(sWS)}, 0 offen sc1")
        A("L_fin:")
        if self.ts:
            A("s_mov_b64 exec, -1")
            self.TS(11)
            A(f"v_writelane_b32 v{vTS}, s{sJ}, 12")
            A("s_getreg_b32 s96, hwreg(HW_REG_XCC_ID)")
            A("s_nop 0")
            A(f"v_writelane_b32 v{vTS}, s96, 13")
            A(f"s_sub_u32 s96, {self.spin}, s{sSpin}")
            A(f"v_writelane_b32 v{vTS}, s96, 14")
            if self.tkm:
                A(f"v_writelane_b32 v{vTS}, s59, 15")
                A(f"v_writelane_b32 v{vTS}, s79, 62")
                A(f"v_writelane_b32 v{vTS}, s57, 63")
            A(f"s_lshl_b32 s{sT1}, s2, 2")
            A(f"s_add_u32 s{sT1}, s{sT1}, s{sW}")
            A(f"s_lshl_b32 s{sT1}, s{sT1}, 8")
            A(f"s_add_u32 s{sT1}, s{sT1}, {WS_TS}")
            A(f"v_lshlrev_b32 v{vA}, 2, v{vLane}")
            A(f"buffer_store_dword v{vTS}, v{vA}, {srd(sWS)}, s{sT1} offen")
            A("s_mov_b64 exec, 0xffff")
            if self.echo >= 0:
                A(f"s_or_b32 s{sT1}, s{sW}, s2")
                A(f"s_cmp_lg_u32 s{sT1}, 0")
                A("s_cbranch_scc1 L_end")
                A("s_nop 1")
                A(f"v_readlane_b32 s{sT1}, v{vTS}, {self.echo}")
                A(f"v_readlane_b32 s{sT2}, v{vTS}, {self.echob}")
                A(f"v_readlane_b32 s{sT3}, v{vTS}, 11")
                A("s_nop 3")
                A(f"s_sub_u32 s{sT1}, s{sT1}, s{sT2}")
                A(f"s_mul_i32 s{sT1}, s{sT1}, {self.echog}")
                A(f"s_min_u32 s{sT1}, s{sT1}, 30000")
                A("L_echo:")
                A("s_memrealtime s[96:97]")
                A("s_waitcnt lgkmcnt(0)")
                A(f"s_sub_u32 s96, s96, s{sT3}")
                A(f"s_cmp_lt_u32 s96, s{sT1}")
                A("s_cbranch_scc1 L_echo")
            if self.dbgts:
                for (src, dst) in ((0, 13), (5, 14), (4, 15)):
                    A("s_nop 0")
                    A(f"v_readlane_b32 s96, v{vTS}, {src}")
                    A("s_nop 3")
                    A("s_not_b32 s96, s96")
                    A(f"v_writelane_b32 v{vTS}, s96, {dst}")
                A(f"global_atomic_umax v{vA}, v{vTS}, s[72:73] sc1")
        A("L_end:")
        A("s_endpgm")
        body_txt = "\n".join(self.L)
        out = HDR + f"; @launch grid=(256,1,1) block=({64*NW},1,1) lds={LDS_BYTES}\n"
        out += '.amdgcn_target "amdgcn-amd-amdhsa--gfx950"\n.text\n'
        out += f".globl {name}\n.p2align 8\n.type {name},@function\n" + body_txt + "\n"
        assert NV <= 256
        out += f""".section .rodata,"a"
.p2align 6
.amdhsa_kernel {name}
  .amdhsa_next_free_vgpr 264
  .amdhsa_next_free_sgpr 102
  .amdhsa_accum_offset 256
  .amdhsa_group_segment_fixed_size 0
  .amdhsa_kernarg_size 112
  .amdhsa_user_sgpr_count 2
  .amdhsa_user_sgpr_kernarg_segment_ptr 1
  .amdhsa_system_sgpr_workgroup_id_x 1
.end_amdhsa_kernel
"""
        return out


if __name__ == "__main__":
    out = sys.argv[1]
    kw = {}
    for a in sys.argv[2:]:
        k, v = a.split("=")
        assert k in DEFAULTS, k
        kw[k] = type(DEFAULTS[k])(v)
    open(out, "w").write(Gen(**kw).gen())
    print("lds", LDS_BYTES)
```

```python
import sys, struct

NAME = "gated_mix__sliding_block_cached__gqa_block_cached__decode_kernel"

HDR = """; Kernarg layout for this problem (112 bytes, ptrs only, base s[0:1]):
"""

def f2u(x):
    return struct.unpack("<I", struct.pack("<f", x))[0]

WS_EPOCH = 0
WS_PLAN = 4096
WS_Q = 0x10000
WS_PML = 0x20000
WS_PO = 0x40000
WS_C = 0x140000
WS_TS = 0x300000
WS_SIZE = 0x400000

NW = 4
U_STR = 1024 + 64
W_STR = 2 * U_STR
L_O = 0
L_ML = 2 * NW * W_STR
L_Q = L_ML + 256
L_OF = L_Q + 1024
L_R = L_OF + 256
L_G = L_R + 512
L_C = L_G + 16
L_TK = L_C + 4
L_PL = L_C + 8
LDS_BYTES = L_C + 48

DEFAULTS = dict(D=5, DF=8, DQ=8, R=5, NS=28, dyn=0, P1=26, F0=0, fm=0, KF=12, TAU=110, TOFF=800, d1=0, d2=0, ts=0, dbgts=0, echo=-1,
                kvpol="nt", wqpol="nt", wopol="nt", pf2=1, smap=0, dmap=0, tkm=0, echob=0, echog=1, N2=0, N3=0, fake=0, J0=4, J1=20, kvf=0, touch=0)

class Gen:
    def __init__(self, **kw):
        self.o = dict(DEFAULTS)
        self.o.update(kw)
        for k, v in self.o.items():
            setattr(self, k, v)
        if not self.dyn:
            self.NS = 32
        if self.dbgts or self.echo >= 0:
            self.ts = 1
        self.L = []
        self.name = NAME
        self.spin = 1 << 20
        self.uid = 0
        self.tailcode = []

    def A(self, s):
        for line in s.split("\n"):
            line = line.strip()
            self.L.append(line if line.endswith(":") else "    " + line)

    def lab(self, base):
        self.uid += 1
        return f"L{base}_{self.uid}"

    def TS(self, k):
        if not self.ts:
            return
        A = self.A
        A("s_memrealtime s[96:97]")
        A("s_waitcnt lgkmcnt(0)")
        A(f"v_writelane_b32 v69, s96, {k}")

    def gen(self):
        A = self.A
        D, DF, DQ, R, NS, P1, F0 = self.D, self.DF, self.DQ, self.R, self.NS, self.P1, self.F0
        name = self.name
        DPPM = "row_mask:0xf bank_mask:0xf"
        NA = 16 // NW
        sKA, sVA, sKB, sVB, sWQ, sWO, sWS, sX, sOUT = 8, 12, 16, 20, 24, 28, 32, 36, 40
        sW, sBH, sS, sB, sH = 44, 45, 46, 47, 76
        sC, sJ, sStat, sOff, sTk, sT, sSpin = 77, 78, 80, 81, 82, 83, 84
        sT0, sT1, sT2, sT3 = 85, 86, 87, 88
        sSelx, sSely, sMaskHi = 89, 90, 91
        sIdx, sAoff = 92, 93
        sPC = 52
        sRet2, sStart = 48, 50
        sRet = 4
        sPool, sCnt, sTkN = 3, 98, 58
        sSvc, sState, sTa, sCa = 59, 58, 98, 60
        sBase, sNT, sPlanned, sSched, sNow = 61, 62, 63, 64, 66
        sOff1 = 79
        sBias = 48
        vTkA, vTkV = 64, 65
        sDrain, sRed = 6, 7
        vKoff, vLin, vLane = 1, 2, 3
        vQ, vQB, DD = 4, 8, 12
        vM, vL, vMC, vmX, vmY, vA, vB, vAl = 28, 29, 30, 31, 32, 33, 34, 35
        vS, vt, vpd, vXY = 36, 40, 44, 48
        vO1, vO2 = 56, 60
        vT, vTS, vx0, vx1 = 68, 69, 70, 71
        RING = 72
        NV = RING + 32 * R
        vD = 36

        def srd(s):
            return f"s[{s}:{s+3}]"

        def vr(r, n):
            return f"v[{r}:{r+n-1}]"

        def slot(p, kv, b):
            return RING + (p * 8 + 4 * kv + b) * 4

        def kvload(p, kv, b, sK, sV):
            A(f"buffer_load_dwordx4 {vr(slot(p,kv,b),4)}, v{(vKoff, vLin)[kv]}, {srd((sK, sV)[kv])}, s{sOff} offen offset:{b*1024} {self.kvpol}")

        NTS = NW * NS
        PU = 64 * (32 - NS)
        DYNBASE = 64 * NS * 4096
        J0, J1 = self.J0, self.J1

        self.L.append(f"{name}:")
        A("s_cmp_ge_u32 s2, 256")
        A("s_cbranch_scc1 L_end")
        A("s_load_dwordx16 s[48:63], s[0:1], 0")
        A("s_load_dwordx8 s[64:71], s[0:1], 64")
        A("s_load_dwordx4 s[72:75], s[0:1], 96")
        if self.ts:
            A(f"v_mov_b32 v{vTS}, 0")
            A("s_memrealtime s[96:97]")
        A(f"v_lshrrev_b32 v{vA}, 6, v0")
        A(f"v_and_b32 v{vLane}, 63, v0")
        A(f"s_lshr_b32 s{sBH}, s2, 4")
        A(f"v_readfirstlane_b32 s{sW}, v{vA}")
        A(f"s_and_b32 s{sS}, s2, 15")
        A(f"s_lshr_b32 s{sB}, s{sBH}, 3")
        A(f"s_and_b32 s{sH}, s{sBH}, 7")
        A(f"v_lshrrev_b32 v{vA}, 2, v{vLane}")
        A(f"v_lshlrev_b32 v{vB}, 16, v{vA}")
        A(f"v_and_b32 v{vAl}, 3, v{vLane}")
        A(f"v_lshl_add_u32 v{vB}, v{vAl}, 4, v{vB}")
        A(f"v_lshlrev_b32 v{vA}, 4, v{vA}")
        A(f"s_and_b32 s{sT0}, s{sS}, 7")
        A(f"s_lshl_b32 s{sT0}, s{sT0}, 7")
        A(f"s_lshr_b32 s{sT1}, s{sS}, 3")
        A(f"s_lshl_b32 s{sT1}, s{sT1}, 6")
        A(f"s_add_u32 s{sT0}, s{sT0}, s{sT1}")
        A(f"s_lshl_b32 s{sT1}, s{sH}, 10")
        A(f"s_add_u32 s{sT1}, s{sT1}, s{sT0}")
        A(f"s_lshl_b32 s{sT2}, s{sW}, 20")
        A(f"s_add_u32 s{sT1}, s{sT1}, s{sT2}")
        A(f"s_lshl_b32 s{sT2}, s{sW}, 8")
        A(f"v_lshlrev_b32 v{vLin}, 4, v{vLane}")
        A(f"v_mov_b32 v{vx0}, {L_C}")
        A(f"v_mov_b32 v{vM}, 0")
        A(f"v_mov_b32 v{vM+1}, {(R-NA)*NW}")
        A(f"v_mov_b32 v{vM+2}, -1")
        A(f"v_mov_b32 v{vM+3}, -1")
        A(f"ds_write_b128 v{vx0}, {vr(vM,4)}")
        A(f"s_cmp_eq_u32 s{sB}, 0")
        A("s_waitcnt lgkmcnt(0)")
        if self.ts:
            A(f"v_writelane_b32 v{vTS}, s96, 0")
            self.TS(63)
        A(f"s_cselect_b32 s{sWQ}, s54, s64")
        A(f"s_cselect_b32 s{sWQ+1}, s55, s65")
        A(f"s_cselect_b32 s{sWO}, s56, s66")
        A(f"s_cselect_b32 s{sWO+1}, s57, s67")
        A(f"s_mov_b32 s{sWQ+2}, 0x400000")
        A(f"s_mov_b32 s{sWQ+3}, 0x20000")
        A(f"s_mov_b32 s{sX}, s48")
        A(f"s_mov_b32 s{sX+1}, s49")
        A(f"s_mov_b32 s{sX+2}, 2048")
        A(f"s_mov_b32 s{sX+3}, 0x20000")
        A(f"s_mov_b32 s{sWS}, s74")
        A(f"s_mov_b32 s{sWS+1}, s75")
        A(f"s_mov_b32 s{sWS+2}, {WS_SIZE}")
        A(f"s_mov_b32 s{sWS+3}, 0x20000")
        vXd, vWd = DD, slot(R - 1, 0, 0)
        def wq_loads():
            A(f"buffer_load_dwordx4 {vr(vXd,4)}, v{vA}, {srd(sX)}, s{sT2} offen")
            A(f"buffer_load_dwordx4 {vr(vXd+4,4)}, v{vA}, {srd(sX)}, s{sT2} offen offset:1024")
            for i in range(8):
                A(f"buffer_load_dwordx4 {vr(vWd+4*i,4)}, v{vB}, {srd(sWQ)}, s{sT1} offen {self.wqpol}")
                if i < 7:
                    A(f"s_add_u32 s{sT1}, s{sT1}, 8192")
        if not self.kvf:
            wq_loads()
        A(f"s_load_dword s{sT}, s[74:75], {WS_EPOCH}")
        A(f"s_lshl_b32 s{sT3}, s{sBH}, 23")
        A(f"s_lshl_b32 s{sIdx}, s{sS}, 16")
        A(f"s_add_u32 s{sIdx}, s{sIdx}, {(32768-4096)*256}")
        A(f"s_add_u32 s{sIdx}, s{sIdx}, s{sT3}")
        for (d, src, off, n) in ((sKA, 50, sIdx, 65536), (sVA, 52, sIdx, 65536), (sKB, 60, sT3, 0x800000), (sVB, 62, sT3, 0x800000)):
            A(f"s_add_u32 s{d}, s{src}, s{off}")
            A(f"s_addc_u32 s{d+1}, s{src+1}, 0")
            A(f"s_mov_b32 s{d+2}, {n}")
            A(f"s_mov_b32 s{d+3}, 0x20000")
        A(f"v_lshrrev_b32 v{vKoff}, 4, v{vLane}")
        A(f"v_lshlrev_b32 v{vKoff}, 6, v{vKoff}")
        A(f"v_lshl_add_u32 v{vKoff}, v{vAl}, 4, v{vKoff}")
        A(f"v_bfe_u32 v{vx1}, v{vLane}, 2, 2")
        A(f"v_lshl_add_u32 v{vKoff}, v{vx1}, 8, v{vKoff}")
        A(f"s_lshl_b32 s{sAoff}, s{sW}, 12")
        A(f"s_mul_i32 s{sBase}, s{sS}, {NTS*4096}")
        A(f"s_add_u32 s{sStat}, s{sBase}, s{sAoff}")

        fill = [(t, kv, b) for t in range(R) for kv in range(2) for b in range(4)]
        self.fill_pos = 0

        def issue_fill(paced):
            t, kv, b = fill[self.fill_pos]
            if paced:
                A(f"s_waitcnt vmcnt({DQ-1})")
            if kv == 0 and b == 0:
                if t < NA:
                    A(f"s_add_u32 s{sOff}, s{sAoff}, {t*NW*4096}")
                else:
                    A(f"s_mov_b32 s{sOff}, s{sStat}")
                    A(f"s_add_u32 s{sStat}, s{sStat}, {NW*4096}")
            if t < NA:
                kvload(t, kv, b, sKA, sVA)
            else:
                kvload(t, kv, b, sKB, sVB)
            self.fill_pos += 1

        for _ in range(self.kvf):
            issue_fill(False)
        if self.kvf:
            wq_loads()
            if self.ts:
                A("s_waitcnt vmcnt(%d)" % (10 + self.kvf - 1))
                self.TS(62)
        NT_ = 0
        if self.touch:
            A(f"s_mov_b32 s{sWO+2}, 0x400000")
            A(f"s_mov_b32 s{sWO+3}, 0x20000")
            A(f"s_mov_b32 s{sOUT}, s70")
            A(f"s_mov_b32 s{sOUT+1}, s71")
            A(f"s_mov_b32 s{sOUT+2}, 2048")
            A(f"s_mov_b32 s{sOUT+3}, 0x20000")
            A(f"v_mov_b32 v{vx1}, 0")
            A(f"s_lshl_b32 s{sT3}, s{sH}, 19")
            A(f"s_lshl_b32 s{sIdx}, s{sS}, 15")
            A(f"s_add_u32 s{sT3}, s{sT3}, s{sIdx}")
            A(f"s_add_u32 s{sIdx}, s{sBase}, {NTS*4096-4096}")
            A(f"s_mov_b32 s{sOff}, {WS_C + 0xff000}")
            A("s_mov_b64 exec, 1")
            tl = []
            if self.touch & 1:
                tl += [(sKA, 0), (sVA, 0), (sKB, f"s{sBase}"), (sVB, f"s{sBase}")]
            if self.touch & 2:
                tl += [(sKB, f"s{sIdx}"), (sVB, f"s{sIdx}")]
            if self.touch & 4:
                tl += [(sWO, f"s{sT3}"), (sWS, 0), (sWS, f"s{sOff}"), (sOUT, 0)]
            for (sr, so) in tl:
                A(f"buffer_load_dword v{slot(R-2,1,3)}, v{vx1}, {srd(sr)}, {so} offen nt")
            if self.touch & 4:
                A(f"global_load_dword v{slot(R-2,1,3)}, v{vx1}, s[68:69]")
            NT_ = len(tl) + (1 if self.touch & 4 else 0)
            A("s_mov_b64 exec, -1")
        for _ in range(F0):
            issue_fill(False)
        F0 += NT_
        if self.fm == 2:
            A(f"s_memrealtime s[{sStart}:{sStart+1}]")
        A(f"s_getpc_b64 s[{sPC}:{sPC+1}]")
        A("L_pc:")
        A(f"s_mov_b32 s{sPC+2}, L_end-L_pc")
        A(f"s_mov_b32 s{sPC+3}, 0x20000")

        def code_prefetch():
            l = self.lab("nopf")
            A(f"s_cmp_lg_u32 s{sW}, {NW-1}")
            A(f"s_cbranch_scc1 {l}")
            A(f"v_lshlrev_b32 v{vx1}, 7, v{vLane}")
            A(f"s_movk_i32 s{sT1}, 0x2000")
            A(f"buffer_load_dword v66, v{vx1}, {srd(sPC)}, 0 offen")
            A(f"buffer_load_dword v67, v{vx1}, {srd(sPC)}, s{sT1} offen")
            A(f"{l}:")
        A(f"s_mov_b32 s{sC}, {f2u(128 ** -0.5 * 1.4426950408889634):#x}")
        A(f"s_mov_b32 s{sWO+2}, 0x400000")
        A(f"s_mov_b32 s{sWO+3}, 0x20000")
        A(f"s_mov_b32 s{sOUT}, s70")
        A(f"s_mov_b32 s{sOUT+1}, s71")
        A(f"s_mov_b32 s{sOUT+2}, 2048")
        A(f"s_mov_b32 s{sOUT+3}, 0x20000")
        A(f"s_mov_b32 s{sSelx}, 0x0c0c0400")
        A(f"s_mov_b32 s{sSely}, 0x04000c0c")
        A(f"s_mov_b32 s{sMaskHi}, 0xffffff00")
        A(f"s_mov_b32 s{sJ}, 0")
        A(f"s_mov_b32 s{sSpin}, {self.spin}")
        A(f"s_lshr_b32 s{sRed}, s2, 3")
        A(f"s_xor_b32 s{sRed}, s{sRed}, s2")
        A(f"s_and_b32 s{sRed}, s{sRed}, 7")
        A(f"v_and_b32 v{vA}, 1, v{vLane}")
        A(f"v_lshlrev_b32 v{vA}, 4, v{vA}")
        A(f"v_mov_b32 v{vmX}, 0xffff")
        A(f"v_lshlrev_b32 v{vmX}, v{vA}, v{vmX}")
        A(f"v_and_b32 v{vA}, 2, v{vLane}")
        A(f"v_cmp_eq_u32 vcc, 0, v{vA}")
        A(f"v_mov_b32 v{vM}, 0xff7fffff")
        A(f"v_mov_b32 v{vL}, 0")
        A(f"v_cndmask_b32 v{vmY}, v{vmX}, 0, vcc")
        A(f"v_cndmask_b32 v{vmX}, 0, v{vmX}, vcc")
        A(f"v_mov_b32 v{vMC}, 0xff7fffff")
        A(f"v_lshrrev_b32 v{vA}, 5, v{vLane}")
        A(f"v_lshlrev_b32 v{vA}, 7, v{vA}")
        A(f"v_lshl_add_u32 v{vA}, v{vAl}, 5, v{vA}")
        A(f"v_and_b32 v{vB}, 16, v{vLane}")
        A(f"s_lshl_b32 s{sT1}, s{sW}, 8")
        A(f"v_add3_u32 v{vA}, v{vA}, v{vB}, s{sT1}")
        A("s_waitcnt lgkmcnt(0)")
        A("s_barrier")
        A(f"s_mul_i32 s{sT}, s{sT}, 0x9e3779b1")
        A(f"s_add_u32 s{sT}, s{sT}, 0x7f4a7c15")
        A(f"v_mov_b32 v{vT}, s{sT}")
        A(f"s_waitcnt vmcnt({F0+7})")
        self.TS(1)
        acc = 52
        xs = 36
        tw = 20
        for b in range(2):
            for j in range(4):
                A(f"v_lshlrev_b32 v{xs+b*8+2*j}, 16, v{vXd+4*b+j}")
                A(f"v_and_b32 v{xs+b*8+2*j+1}, 0xffff0000, v{vXd+4*b+j}")
        for i in range(8):
            if i > 0:
                A(f"s_waitcnt vmcnt({F0+7})")
            issue_fill(False)
            for j in range(4):
                w = vWd + 4 * i + j
                lo, hi = tw + (j & 1) * 2, tw + (j & 1) * 2 + 1
                A(f"v_lshlrev_b32 v{lo}, 16, v{w}")
                A(f"v_and_b32 v{hi}, 0xffff0000, v{w}")
                for b in range(2):
                    op = "v_mul_f32" if i == 0 else "v_fmac_f32"
                    A(f"{op} v{acc+8*b+2*j}, v{lo}, v{xs+8*b+i}")
                    A(f"{op} v{acc+8*b+2*j+1}, v{hi}, v{xs+8*b+i}")
        A("s_nop 1")
        for i in range(8):
            A(f"v_permlane32_swap_b32 v{acc+i}, v{acc+i+8}")
        for i in range(8):
            A(f"v_add_f32 v{acc+i}, v{acc+i}, v{acc+i+8}")
        A("s_nop 1")
        for i in range(4):
            A(f"v_permlane16_swap_b32 v{acc+i}, v{acc+i+4}")
        for i in range(4):
            A(f"v_add_f32 v{acc+i}, v{acc+i}, v{acc+i+4}")
        A("s_nop 1")
        for i in range(4):
            A(f"v_add_f32_dpp v{acc+i}, v{acc+i}, v{acc+i} row_ror:8 {DPPM}")
        A("s_nop 1")
        for i in range(4):
            A(f"v_add_f32_dpp v{acc+i}, v{acc+i}, v{acc+i} row_ror:4 {DPPM}")
        A("s_mov_b32 exec_lo, 0x000f000f")
        A("s_mov_b32 exec_hi, 0x000f000f")
        A(f"ds_write_b128 v{vA}, {vr(acc,4)} offset:{L_Q}")
        A("s_mov_b64 exec, 1")
        A(f"v_mov_b32 v{vA}, {L_C}")
        A(f"v_mov_b32 v{vB}, 1")
        A("s_waitcnt lgkmcnt(0)")
        A(f"ds_add_rtn_u32 v{vB}, v{vA}, v{vB}")
        A("s_mov_b64 exec, -1")
        code_prefetch()
        A("s_waitcnt lgkmcnt(0)")
        A(f"v_readfirstlane_b32 s{sT1}, v{vB}")
        l = self.lab("nosvc")
        A(f"v_lshlrev_b32 v{vA}, 2, v{vLane}")
        A("s_nop 2")
        A(f"s_cmp_lg_u32 s{sT1}, {NW-1}")
        A(f"s_cbranch_scc1 {l}")
        for w in range(NW):
            A(f"ds_read_b32 v{acc+w}, v{vA} offset:{L_Q+w*256}")
        A(f"s_lshl_b32 s{sT1}, s{sB}, 4")
        A(f"s_add_u32 s{sT1}, s{sT1}, s{sH}")
        A(f"s_lshl_b32 s{sT1}, s{sT1}, 11")
        A(f"s_lshl_b32 s{sT2}, s{sT0}, 1")
        A(f"s_add_u32 s{sT1}, s{sT1}, s{sT2}")
        A(f"s_add_u32 s{sT1}, s{sT1}, {WS_Q}")
        A(f"v_lshrrev_b32 v{vB}, 5, v{vLane}")
        A(f"v_lshlrev_b32 v{vB}, 14, v{vB}")
        A(f"v_and_b32 v{vA}, 31, v{vLane}")
        A(f"v_lshl_add_u32 v{vB}, v{vA}, 2, v{vB}")
        A("s_waitcnt lgkmcnt(0)")
        A(f"v_add_f32 v{acc}, v{acc}, v{acc+1}")
        A(f"v_add_f32 v{acc+2}, v{acc+2}, v{acc+3}")
        A(f"v_add_f32 v{acc}, v{acc}, v{acc+2}")
        A(f"v_mov_b32 v{acc+9}, v{vT}")
        A(f"v_mov_b32 v{acc+11}, v{vT}")
        A(f"v_mov_b32_dpp v{acc+1}, v{acc} quad_perm:[1,1,3,3] {DPPM}")
        A("s_nop 0")
        A(f"v_cvt_pk_bf16_f32 v{acc+8}, v{acc}, v{acc+1}")
        A("s_nop 1")
        A(f"v_mov_b32_dpp v{acc+10}, v{acc+8} quad_perm:[2,2,2,2] {DPPM}")
        A("s_mov_b32 exec_lo, 0x11111111")
        A("s_mov_b32 exec_hi, 0x11111111")
        A(f"buffer_store_dwordx4 {vr(acc+8,4)}, v{vB}, {srd(sWS)}, s{sT1} offen sc1")
        A("s_mov_b64 exec, -1")
        self.TS(2)
        A(f"{l}:")
        vQg = DD
        A(f"v_lshlrev_b32 v{vA}, 1, v{vKoff}")
        A(f"s_lshl_b32 s{sT1}, s{sBH}, 11")
        A(f"s_add_u32 s{sT1}, s{sT1}, {WS_Q}")
        A(f"s_add_u32 s{sT2}, s{sT1}, 32768")

        def q_loads():
            A(f"buffer_load_dwordx4 {vr(vQg,4)}, v{vA}, {srd(sWS)}, s{sT1} offen sc1")
            A(f"buffer_load_dwordx4 {vr(vQg+4,4)}, v{vA}, {srd(sWS)}, s{sT1} offen offset:16 sc1")
            A(f"buffer_load_dwordx4 {vr(vQg+8,4)}, v{vA}, {srd(sWS)}, s{sT2} offen sc1")
            A(f"buffer_load_dwordx4 {vr(vQg+12,4)}, v{vA}, {srd(sWS)}, s{sT2} offen offset:16 sc1")

        assert 8 * R - P1 >= DQ
        first = True
        while self.fill_pos < 8 * R:
            if self.fill_pos == P1:
                q_loads()
            issue_fill(True)
            if first:
                for i in range(8):
                    A(f"v_mov_b32 v{vO1+i}, 0")
                first = False
        self.TS(3)
        lchk, lok = self.lab("qchk"), self.lab("qok")
        A(f"{lchk}:")
        A(f"v_xor_b32 v{vAl}, v{vQg+1}, v{vT}")
        for i in range(1, 8):
            A(f"v_xor_b32 v{vB}, v{vQg+2*i+1}, v{vT}")
            A(f"v_or_b32 v{vAl}, v{vAl}, v{vB}")
        A(f"v_cmp_ne_u32 vcc, 0, v{vAl}")
        A(f"s_cbranch_vccz {lok}")
        A(f"s_sub_u32 s{sSpin}, s{sSpin}, 1")
        A("s_cbranch_scc1 L_end")
        q_loads()
        A("s_waitcnt vmcnt(0)")
        A(f"s_branch {lchk}")
        A(f"{lok}:")
        for i in range(4):
            A(f"v_mov_b32 v{vQ+i}, v{vQg+2*i}")
        for i in range(4):
            A(f"v_mov_b32 v{vQB+i}, v{vQg+8+2*i}")
        self.TS(4)

        stubs = []
        if self.tkm:
            A("s_mov_b32 s59, 0\ns_mov_b32 s79, 0\ns_mov_b32 s57, 0")

        def tile_ts():
            if self.ts:
                lt = self.lab("nts")
                A("s_memrealtime s[96:97]")
                A(f"s_min_u32 s{sT1}, s{sJ}, 45")
                A(f"s_add_u32 m0, s{sT1}, 16")
                A("s_waitcnt lgkmcnt(0)")
                A(f"v_writelane_b32 v{vTS}, s96, m0")
                A(f"{lt}:")
                if self.tkm:
                    A("s_memrealtime s[100:101]")
                    A("s_waitcnt lgkmcnt(0)")
                    A("s_sub_u32 s100, s100, s96")
                    A(f"s_cmp_lt_u32 s{sJ}, {JS}")
                    A("s_cselect_b32 s96, 0, s100")
                    A("s_cselect_b32 s97, s100, 0")
                    A("s_cselect_b32 s100, 0, 1")
                    A("s_add_u32 s59, s59, s96")
                    A("s_add_u32 s79, s79, s97")
                    A("s_add_u32 s57, s57, s100")

        def claim():
            A(f"v_mov_b32 v{vTkV}, 1")
            A("s_mov_b64 exec, 1")
            A(f"ds_add_rtn_u32 v{vTkV}, v{vTkA}, v{vTkV}")
            A("s_mov_b64 exec, -1")
            if self.fm >= 2:
                A(f"s_memrealtime s[{sNow}:{sNow+1}]")

        def body(p, pace):
            def IP(kv, b):
                if pace is None:
                    if kv == 0 and b == 0:
                        A("s_nop 0")
                    return
                A(f"s_waitcnt vmcnt({pace-1})")
                kvload(p, kv, b, sKB, sVB)
            for b in range(4):
                A(f"v_mfma_f32_16x16x32_bf16 {vr(DD+4*b,4)}, {vr(slot(p,0,b),4)}, {vr(vQ,4)}, 0")
            IP(0, 0)
            A("s_nop 3")
            for b in range(4):
                d = DD + 4 * b
                A(f"v_mov_b32_dpp v{vS+b}, v{d} quad_perm:[0,0,0,0] {DPPM}")
                for q in range(1, 4):
                    A(f"v_add_f32_dpp v{vS+b}, v{d+q}, v{vS+b} quad_perm:[{q},{q},{q},{q}] {DPPM}")
                if b == 1:
                    IP(0, 1)
            A(f"v_max3_f32 v{vA}, v{vS}, v{vS+1}, v{vS+2}")
            A(f"v_max_f32 v{vA}, v{vA}, v{vS+3}")
            lr, lb = self.lab("rs"), self.lab("rsb")
            A(f"v_cmp_gt_f32 vcc, v{vA}, v{vM}")
            A(f"s_cbranch_vccnz {lr}")
            A(f"{lb}:")
            stubs.append((lr, lb))
            IP(0, 2)
            for b in range(4):
                A(f"v_fma_f32 v{vt+b}, v{vS+b}, s{sC}, -v{vMC}")
            for b in range(4):
                A(f"v_exp_f32 v{vt+b}, v{vt+b}")
            for b in range(4):
                A(f"v_cvt_pk_bf16_f32 v{vpd+b}, v{vt+b}, v{vt+b}")
            IP(0, 3)
            for b in range(4):
                A(f"v_and_b32 v{vXY+2*b}, v{vpd+b}, v{vmX}")
                A(f"v_and_b32 v{vXY+2*b+1}, v{vpd+b}, v{vmY}")
            A(f"v_add_f32 v{vA}, v{vt}, v{vt+1}")
            A(f"v_add_f32 v{vB}, v{vt+2}, v{vt+3}")
            for b in range(4):
                r = slot(p, 1, b)
                A(f"v_mfma_f32_16x16x16_bf16 {vr(vO1,4)}, {vr(r,2)}, {vr(vXY+2*b,2)}, {vr(vO1,4)}")
                A(f"v_mfma_f32_16x16x16_bf16 {vr(vO2,4)}, {vr(r+2,2)}, {vr(vXY+2*b,2)}, {vr(vO2,4)}")
                if b == 0:
                    A(f"v_add_f32 v{vL}, v{vL}, v{vA}")
                if b == 1:
                    A(f"v_add_f32 v{vL}, v{vL}, v{vB}")
                if b == 3 and pace is not None:
                    A(f"s_waitcnt vmcnt({pace-1})")
                    claim()
                    kvload(p, 1, 3, sKB, sVB)
                else:
                    IP(1, b)

        A(f"v_mov_b32 v{vTkA}, {L_TK}")
        A(f"s_mov_b32 s{sState}, 0")
        A(f"s_mov_b32 s{sNT}, {NTS}")
        A(f"s_mov_b32 s{sPlanned}, {0 if self.dyn else 1}")
        claim()
        A(f"s_cmp_eq_u32 s{sW}, 0")
        A(f"s_cselect_b32 s{sSvc}, {J0 if self.dyn else 0x7fffffff}, 0x7fffffff")
        if self.fm == 2:
            A(f"s_add_u32 s{sSched}, s{sStart}, {self.TOFF}")
        A(".p2align 6")
        for (ln, other, pace) in (("a", "b", D), ("b", "a", DF)):
            if ln == "b" and not self.fm:
                break
            A(f"L_loop{ln}:")
            for p in range(R):
                tile_ts()
                A("s_waitcnt lgkmcnt(0)")
                A(f"v_readfirstlane_b32 s{sTk}, v{vTkV}")
                if self.dyn:
                    A(f"s_cmp_ge_u32 s{sJ}, s{sSvc}")
                    A(f"s_cbranch_scc1 L_svc{ln}{p}")
                    A(f"L_svcret{ln}{p}:")
                else:
                    A("s_nop 1")
                A(f"s_cmp_ge_u32 s{sTk}, s{sNT}")
                A(f"s_cbranch_scc1 L_odd{p}")
                if ln == "a":
                    A(f"L_got{p}:")
                A(f"s_lshl_b32 s{sOff}, s{sTk}, 12")
                A(f"s_add_u32 s{sOff}, s{sOff}, s{sBase}")
                if self.fm == 1 and ln == "a":
                    A(f"s_add_u32 s{sT1}, s{sTk}, {self.KF}")
                    A(f"s_cmp_ge_u32 s{sT1}, s{sNT}")
                    A(f"s_cbranch_scc1 L_in{other}{p}")
                elif self.fm == 2:
                    A(f"s_mul_i32 s{sT1}, s{sTk}, {self.TAU}")
                    A(f"s_lshr_b32 s{sT1}, s{sT1}, 2")
                    A(f"s_add_u32 s{sT1}, s{sT1}, s{sSched}")
                    A(f"s_sub_u32 s{sT1}, s{sNow}, s{sT1}")
                    A(f"s_cmp_gt_i32 s{sT1}, 0")
                    A(f"s_cbranch_scc{1 if ln == 'a' else 0} L_in{other}{p}")
                A(f"L_in{ln}{p}:")
                body(p, pace)
                if p == NA - 1:
                    A(f"s_cmp_eq_u32 s{sJ}, {NA-1}")
                    A(f"s_cbranch_scc0 L_nf{ln}")
                    A(f"s_call_b64 s[{sRet}:{sRet+1}], L_flushA")
                    A(f"L_nf{ln}:")
                A(f"s_add_u32 s{sJ}, s{sJ}, 1")
            A(f"s_branch L_loop{ln}")
            if self.dyn:
                for p in range(R):
                    A(f"L_svc{ln}{p}:")
                    A(f"s_call_b64 s[{sRet}:{sRet+1}], L_service")
                    A(f"s_branch L_svcret{ln}{p}")
        for p in range(R):
            A(f"L_odd{p}:")
            A(f"s_cmp_lg_u32 s{sPlanned}, 0")
            A(f"s_cbranch_scc1 L_fdrain{p}")
            if self.dyn:
                A(f"s_call_b64 s[{sRet2}:{sRet2+1}], L_getplan")
                A(f"s_cmp_ge_u32 s{sTk}, s{sNT}")
                A(f"s_cbranch_scc1 L_fdrain{p}")
                A(f"s_branch L_got{p}")
        if self.dyn:
            lg = self.lab("gp")
            A("L_getplan:")
            A(f"s_sub_u32 s{sSpin}, s{sSpin}, 1")
            A("s_cbranch_scc1 L_end")
            A(f"s_cmp_eq_u32 s{sSvc}, 0x7fffffff")
            A(f"s_cbranch_scc1 {lg}")
            A(f"s_call_b64 s[{sRet}:{sRet+1}], L_service")
            A("s_waitcnt vmcnt(0)")
            A("s_branch L_getplan")
            A(f"{lg}:")
            A(f"ds_read_b64 {vr(DD,2)}, v{vTkA} offset:{L_PL-L_TK}")
            A("s_waitcnt lgkmcnt(0)")
            A(f"v_readfirstlane_b32 s{sNT}, v{DD}")
            A(f"v_readfirstlane_b32 s{sBase}, v{DD+1}")
            A("s_nop 3")
            A(f"s_cmp_eq_u32 s{sNT}, -1")
            A("s_cbranch_scc1 L_getplan")
            A(f"s_mov_b32 s{sPlanned}, 1")
            A(f"s_setpc_b64 s[{sRet2}:{sRet2+1}]")
        rec = vQB
        t0r, t1r, t2r, t3r, t4r = DD, DD + 1, DD + 2, DD + 3, DD + 4
        st1, lret, lchk, lld, leq = [self.lab("sv") for _ in range(5)]
        if self.dyn:
            assert J0 >= NA
            A("L_service:")
            A(f"s_cmp_eq_u32 s{sState}, 1")
            A(f"s_cbranch_scc1 {st1}")
            A(f"s_cmp_eq_u32 s{sState}, 2")
            A(f"s_cbranch_scc1 {lld}")
            A(f"s_cmp_eq_u32 s{sState}, 3")
            A(f"s_cbranch_scc1 {lchk}")
            A(f"s_memrealtime s[{sTa}:{sTa+1}]")
            A(f"s_mov_b32 s{sCa}, s{sTk}")
            A(f"s_mov_b32 s{sState}, 1")
            A(f"s_mov_b32 s{sSvc}, {J1}")
            A("s_waitcnt lgkmcnt(0)")
            A(f"s_setpc_b64 s[{sRet}:{sRet+1}]")
            A(f"{st1}:")
            A("s_memrealtime s[100:101]")
            A(f"s_lshl_b32 s{sT1}, s2, 4")
            A(f"s_add_u32 s{sT1}, s{sT1}, {WS_PLAN}")
            A(f"s_sub_u32 s{sCa}, s{sTk}, s{sCa}")
            A(f"s_lshl_b32 s{sT2}, s{sTk}, 16")
            A(f"s_or_b32 s{sCa}, s{sCa}, s{sT2}")
            A(f"v_mov_b32 v{rec+2}, s{sCa}")
            A(f"v_mov_b32 v{rec+3}, v{vT}")
            A(f"v_mov_b32 v{t0r}, 0")
            A(f"s_mov_b32 s{sState}, 2")
            A(f"s_add_u32 s{sSvc}, s{sJ}, 2")
            A("s_waitcnt lgkmcnt(0)")
            A(f"s_sub_u32 s{sTa}, s100, s{sTa}")
            A(f"v_mov_b32 v{rec}, s100")
            A(f"v_mov_b32 v{rec+1}, s{sTa}")
            A("s_mov_b64 exec, 1")
            A(f"buffer_store_dwordx4 {vr(rec,4)}, v{t0r}, {srd(sWS)}, s{sT1} offen sc1")
            A("s_mov_b64 exec, -1")
            A(f"s_setpc_b64 s[{sRet}:{sRet+1}]")
            A(f"{lld}:")
            A(f"s_lshl_b32 s{sT1}, s{sBH}, 8")
            A(f"s_add_u32 s{sT1}, s{sT1}, {WS_PLAN}")
            A(f"v_and_b32 v{t0r}, 15, v{vLane}")
            A(f"v_lshlrev_b32 v{t0r}, 4, v{t0r}")
            A(f"buffer_load_dwordx4 {vr(rec,4)}, v{t0r}, {srd(sWS)}, s{sT1} offen sc1")
            A(f"s_mov_b32 s{sState}, 3")
            A(f"s_add_u32 s{sSvc}, s{sJ}, 1")
            A(f"s_setpc_b64 s[{sRet}:{sRet+1}]")
            A(f"{lchk}:")
            A("s_waitcnt vmcnt(8)")
            A(f"v_cmp_ne_u32 vcc, v{rec+3}, v{vT}")
            A(f"s_cbranch_vccnz {lld}")
            A(f"v_readlane_b32 s{sT1}, v{rec}, 0")
            A(f"v_cvt_f32_u32 v{t1r}, v{rec+1}")
            A(f"v_and_b32 v{t2r}, 0xffff, v{rec+2}")
            A(f"v_lshrrev_b32 v{t4r}, 16, v{rec+2}")
            A(f"v_subrev_u32 v{t0r}, s{sT1}, v{rec}")
            A(f"v_rcp_f32 v{t1r}, v{t1r}")
            A(f"v_cvt_f32_u32 v{t2r}, v{t2r}")
            A(f"v_cvt_f32_i32 v{t0r}, v{t0r}")
            A(f"v_cvt_f32_u32 v{t4r}, v{t4r}")
            A(f"v_mul_f32 v{t1r}, v{t2r}, v{t1r}")
            A(f"v_sub_f32 v{t4r}, {f2u(float(NTS)):#x}, v{t4r}")
            A(f"v_fma_f32 v{t3r}, v{t0r}, v{t1r}, v{t4r}")
            A(f"v_mov_b32 v{t2r}, v{t1r}")
            for ror in (1, 2, 4, 8):
                A("s_nop 1")
                A(f"v_add_f32_dpp v{t2r}, v{t2r}, v{t2r} row_ror:{ror} {DPPM}")
                A(f"v_add_f32_dpp v{t3r}, v{t3r}, v{t3r} row_ror:{ror} {DPPM}")
            A(f"v_rcp_f32 v{t2r}, v{t2r}")
            A(f"v_add_f32 v{t3r}, {f2u(float(PU)):#x}, v{t3r}")
            A(f"v_mul_f32 v{t3r}, v{t3r}, v{t2r}")
            A("s_nop 0")
            A(f"v_readlane_b32 s{sT1}, v{t3r}, 0")
            A("s_nop 1")
            A(f"v_sub_f32 v{t0r}, s{sT1}, v{t0r}")
            A(f"v_fma_f32 v{t0r}, v{t0r}, v{t1r}, -v{t4r}")
            A(f"v_max_f32 v{t0r}, {f2u(2.0**-10):#x}, v{t0r}")
            A(f"v_mov_b32 v{t2r}, v{t0r}")
            for ror in (1, 2, 4, 8):
                A("s_nop 1")
                A(f"v_add_f32_dpp v{t2r}, v{t2r}, v{t2r} row_ror:{ror} {DPPM}")
            A(f"v_rcp_f32 v{t2r}, v{t2r}")
            A("s_nop 0")
            A(f"v_mul_f32 v{t2r}, {f2u(PU*(1-2.0**-14)):#x}, v{t2r}")
            A("s_nop 0")
            A(f"v_readlane_b32 s{sT1}, v{t2r}, 0")
            A("s_nop 1")
            A(f"v_mul_f32 v{t0r}, s{sT1}, v{t0r}")
            A(f"v_cvt_u32_f32 v{t0r}, v{t0r}")
            A(f"v_min_u32 v{t0r}, {PU}, v{t0r}")
            A(f"v_mov_b32 v{t2r}, v{t0r}")
            for ror in (1, 2, 4, 8):
                A("s_nop 1")
                A(f"v_add_u32_dpp v{t2r}, v{t2r}, v{t2r} row_ror:{ror} {DPPM}")
            A(f"v_sub_u32 v{t2r}, {PU}, v{t2r}")
            A(f"v_and_b32 v{t1r}, 15, v{vLane}")
            A(f"v_cmp_lt_u32 vcc, 16, v{t2r}")
            A(f"s_cbranch_vccz {leq}")
            A(f"v_mov_b32 v{t0r}, {PU//16}")
            A(f"v_mov_b32 v{t2r}, 0")
            A(f"{leq}:")
            A(f"v_cmp_lt_u32 vcc, v{t1r}, v{t2r}")
            A("s_nop 1")
            A(f"v_addc_co_u32 v{t0r}, vcc, 0, v{t0r}, vcc")
            A(f"v_mov_b32 v{t2r}, v{t0r}")
            for sh in (1, 2, 4, 8):
                A("s_nop 1")
                A(f"v_add_u32_dpp v{t2r}, v{t2r}, v{t2r} row_shr:{sh} {DPPM} bound_ctrl:0")
            A("s_nop 0")
            A(f"v_readlane_b32 s{sT1}, v{t2r}, s{sS}")
            A(f"v_readlane_b32 s{sT2}, v{t0r}, s{sS}")
            A("s_nop 3")
            if self.ts:
                A(f"v_writelane_b32 v{vTS}, s{sT2}, 15")
            A(f"s_sub_u32 s{sT1}, s{sT1}, s{sT2}")
            A(f"s_lshl_b32 s{sT1}, s{sT1}, 12")
            A(f"s_add_u32 s{sT1}, s{sT1}, {DYNBASE - NTS*4096}")
            A(f"s_add_u32 s{sT2}, s{sT2}, {NTS}")
            A(f"v_mov_b32 v{t0r}, s{sT2}")
            A(f"v_mov_b32 v{t1r}, s{sT1}")
            A(f"ds_write_b64 v{vTkA}, {vr(t0r,2)} offset:{L_PL-L_TK}")
            A(f"s_mov_b32 s{sSvc}, 0x7fffffff")
            A(f"s_setpc_b64 s[{sRet}:{sRet+1}]")

        per = 8
        assert (R - 1) * per >= max(D, DF, DQ)
        for p in range(R):
            A(f"L_fdrain{p}:")
            A(f"s_mov_b32 s{sDrain}, {R-1}")
            A(f"s_branch L_dgo{p}")
        A("L_dloop:")
        for p in range(R):
            tile_ts()
            A(f"s_sub_u32 s{sDrain}, s{sDrain}, 1")
            A("s_cbranch_scc1 L_exit")
            labs = [self.lab("dw") for _ in range(R)]
            for r in range(R - 2, 0, -1):
                A(f"s_cmp_eq_u32 s{sDrain}, {r}")
                A(f"s_cbranch_scc1 {labs[r]}")
            A("s_waitcnt vmcnt(0)")
            for r in range(1, R - 1):
                A(f"{labs[r]}:")
                A(f"s_waitcnt vmcnt({min(63, per*r)})")
            A(f"L_dgo{p}:")
            body(p, None)
            A(f"s_add_u32 s{sJ}, s{sJ}, 1")
        A("s_branch L_dloop")

        for lr, lb in stubs:
            A(f"{lr}:")
            A(f"s_call_b64 s[{sRet}:{sRet+1}], L_resc")
            A(f"s_branch {lb}")

        A("L_resc:")
        A(f"v_max_f32 v{vA}, v{vA}, v{vM}")
        A(f"v_mov_b32 v{vB}, v{vA}")
        A("s_nop 1")
        A(f"v_permlane16_swap_b32 v{vA}, v{vB}")
        A(f"v_max_f32 v{vA}, v{vA}, v{vB}")
        A(f"v_mov_b32 v{vB}, v{vA}")
        A("s_nop 1")
        A(f"v_permlane32_swap_b32 v{vA}, v{vB}")
        A(f"v_max_f32 v{vM}, v{vA}, v{vB}")
        A(f"v_mul_f32 v{vA}, s{sC}, v{vM}")
        A(f"v_sub_f32 v{vAl}, v{vMC}, v{vA}")
        A(f"v_exp_f32 v{vAl}, v{vAl}")
        A(f"v_mov_b32 v{vMC}, v{vA}")
        for i in range(8):
            A(f"v_mul_f32 v{vO1+i}, v{vO1+i}, v{vAl}")
        A(f"v_mul_f32 v{vL}, v{vL}, v{vAl}")
        A(f"s_setpc_b64 s[{sRet}:{sRet+1}]")

        def state_to_lds(br):
            A(f"v_mov_b32 v{vB}, v{vL}")
            A(f"s_mul_i32 s{sT1}, s{sW}, {W_STR}")
            A(f"v_add_u32 v{vA}, s{sT1}, v{vLin}")
            A(f"v_permlane16_swap_b32 v{vL}, v{vB}")
            A(f"v_add_f32 v{vL}, v{vL}, v{vB}")
            A(f"v_mov_b32 v{vB}, v{vL}")
            A(f"s_lshl_b32 s{sT1}, s{sW}, 3")
            A("s_nop 0")
            A(f"v_permlane32_swap_b32 v{vL}, v{vB}")
            A(f"v_add_f32 v{vL}, v{vL}, v{vB}")
            A(f"v_bfe_u32 v{vB}, v{vLane}, 2, 2")
            A(f"v_lshlrev_b32 v{vB}, 5, v{vB}")
            A(f"v_add_u32 v{vB}, s{sT1}, v{vB}")
            A(f"ds_write_b128 v{vA}, {vr(vO1,4)} offset:{L_O+br*NW*W_STR}")
            A(f"ds_write_b128 v{vA}, {vr(vO2,4)} offset:{L_O+br*NW*W_STR+U_STR}")
            A("s_mov_b64 exec, 0x1111")
            A(f"ds_write_b64 v{vB}, {vr(vM,2)} offset:{L_ML+br*128}")
            A("s_mov_b64 exec, -1")

        A("L_flushA:")
        state_to_lds(0)
        for i in range(4):
            A(f"v_mov_b32 v{vQ+i}, v{vQB+i}")
        A("s_waitcnt lgkmcnt(0)")
        A(f"v_mov_b32 v{vM}, 0xff7fffff")
        A(f"v_mov_b32 v{vMC}, 0xff7fffff")
        A(f"v_mov_b32 v{vL}, 0")
        for i in range(8):
            A(f"v_mov_b32 v{vO1+i}, 0")
        A(f"s_setpc_b64 s[{sRet}:{sRet+1}]")

        A("L_exit:")
        self.TS(5)
        state_to_lds(1)
        A(f"s_lshl_b32 s{sT1}, s{sH}, 19")
        A(f"s_lshl_b32 s{sT2}, s{sS}, 15")
        A(f"s_add_u32 s{sT1}, s{sT1}, s{sT2}")
        A(f"s_lshl_b32 s{sT2}, s{sW}, 8")
        A(f"s_add_u32 s{sT1}, s{sT1}, s{sT2}")
        A(f"s_add_u32 s{sT2}, s{sT1}, 4096")
        A(f"v_lshrrev_b32 v{vA}, 4, v{vLane}")
        A(f"v_lshlrev_b32 v{vA}, 13, v{vA}")
        A(f"v_and_b32 v{vB}, 15, v{vLane}")
        A(f"v_lshl_add_u32 v{vA}, v{vB}, 4, v{vA}")
        vWO = slot(R - 1, 0, 0)
        for i in range(8):
            A(f"buffer_load_dwordx4 {vr(vWO+4*i,4)}, v{vA}, {srd(sWO)}, s{(sT1, sT2)[i>>2]} offen offset:{(i&3)*1024} {self.wopol}")
        if self.pf2:
            code_prefetch()
        vG = slot(R - 2, 0, 0)
        l = self.lab("nogate")
        A(f"s_lshl_b32 s{sT1}, s{sRed}, 3")
        A(f"s_or_b32 s{sT1}, s{sT1}, s{sW}")
        A(f"s_cmp_lg_u32 s{sT1}, 3")
        A(f"s_cbranch_scc1 {l}")
        A(f"s_lshl_b32 s{sT1}, s2, 7")
        A(f"s_and_b32 s{sT1}, s{sT1}, 1024")
        A(f"buffer_load_dwordx4 {vr(vG,4)}, v{vLin}, {srd(sX)}, s{sT1} offen")
        A(f"global_load_dwordx4 {vr(vG+4,4)}, v{vLin}, s[68:69]")
        A(f"{l}:")
        ml = RING
        od = RING + 8
        A(f"s_lshr_b32 s{sT1}, s{sW}, 1")
        A(f"s_and_b32 s{sT2}, s{sW}, 1")
        A(f"s_lshl_b32 s{sT3}, s{sT1}, 7")
        A(f"v_bfe_u32 v{vB}, v{vLane}, 3, 2")
        A(f"v_lshlrev_b32 v{vB}, 5, v{vB}")
        A(f"v_add_u32 v{vB}, s{sT3}, v{vB}")
        A(f"s_mul_i32 s{sT3}, s{sT1}, {NW*W_STR}")
        A(f"s_lshl_b32 s{sT0}, s{sT2}, 9")
        A(f"s_add_u32 s{sT3}, s{sT3}, s{sT0}")
        A(f"v_lshrrev_b32 v{vA}, 3, v{vLane}")
        A(f"v_lshlrev_b32 v{vA}, 6, v{vA}")
        A(f"v_and_b32 v{vAl}, 3, v{vLane}")
        A(f"v_lshl_add_u32 v{vA}, v{vAl}, 4, v{vA}")
        A(f"v_bfe_u32 v{vAl}, v{vLane}, 2, 1")
        A(f"v_mul_u32_u24 v{vAl}, {U_STR}, v{vAl}")
        A(f"v_add3_u32 v{vA}, v{vA}, v{vAl}, s{sT3}")
        A(f"s_lshl_b32 s{sIdx}, s{sT1}, 8")
        A(f"s_add_u32 s{sIdx}, s{sIdx}, s2")
        A(f"s_lshl_b32 s{sT3}, s{sIdx}, 11")
        A(f"s_lshl_b32 s{sT0}, s{sT2}, 10")
        A(f"s_add_u32 s{sT3}, s{sT3}, s{sT0}")
        A(f"s_add_u32 s{sT3}, s{sT3}, {WS_PO}")
        A(f"s_lshl_b32 s{sT0}, s{sIdx}, 7")
        A(f"s_add_u32 s{sT0}, s{sT0}, {WS_PML}")
        tb = DD
        A(f"v_and_b32 v{tb}, 0xff, v{vT}")
        A(f"v_bfe_u32 v{tb+1}, v{vT}, 8, 8")
        A(f"v_bfe_u32 v{tb+2}, v{vT}, 16, 8")
        A(f"v_lshrrev_b32 v{tb+3}, 24, v{vT}")
        Mx, Ls = DD + 4, DD + 5
        res = DD + 8
        A(f"v_mov_b32 v{DD+6}, v{vT}")
        A(f"v_mov_b32 v{DD+7}, v{vT}")
        A(f"v_lshlrev_b32 v{vx0}, 1, v{vLane}")
        A("s_waitcnt lgkmcnt(0)")
        A("s_barrier")
        self.TS(6)
        for i in range(2):
            A(f"ds_read_b128 {vr(ml+4*i,4)}, v{vB} offset:{L_ML+16*i}")
        for w in range(NW):
            A(f"ds_read_b128 {vr(od+4*w,4)}, v{vA} offset:{L_O+W_STR*w}")
        A("s_waitcnt lgkmcnt(4)")
        A(f"v_max3_f32 v{Mx}, v{ml}, v{ml+2}, v{ml+4}")
        A(f"v_max_f32 v{Mx}, v{Mx}, v{ml+6}")
        A(f"v_mul_f32 v{vAl}, s{sC}, v{Mx}")
        for w in range(NW):
            A(f"v_fma_f32 v{ml+2*w}, v{ml+2*w}, s{sC}, -v{vAl}")
        for w in range(NW):
            A(f"v_exp_f32 v{ml+2*w}, v{ml+2*w}")
        A("s_waitcnt lgkmcnt(0)")
        for i in range(4):
            A(f"v_mul_f32 v{res+i}, v{ml}, v{od+i}")
        for w in range(1, NW):
            for i in range(4):
                A(f"v_fmac_f32 v{res+i}, v{ml+2*w}, v{od+4*w+i}")
        for i in range(4):
            A(f"v_and_or_b32 v{res+i}, v{res+i}, s{sMaskHi}, v{tb+i}")
        A(f"buffer_store_dwordx4 {vr(res,4)}, v{vLin}, {srd(sWS)}, s{sT3} offen sc1")
        l = self.lab("noml")
        A(f"s_cmp_lg_u32 s{sT2}, 0")
        A(f"s_cbranch_scc1 {l}")
        A(f"v_mul_f32 v{Ls}, v{ml}, v{ml+1}")
        for w in range(1, NW):
            A(f"v_fmac_f32 v{Ls}, v{ml+2*w}, v{ml+2*w+1}")
        A("s_mov_b32 exec_lo, 0x01010101")
        A("s_mov_b32 exec_hi, 0x01010101")
        A(f"buffer_store_dwordx4 {vr(Mx,4)}, v{vx0}, {srd(sWS)}, s{sT0} offen sc1")
        A("s_mov_b64 exec, -1")
        A(f"{l}:")
        self.TS(7)

        def tagcheck(regs, extra):
            n = 0
            for r in regs:
                A(f"v_perm_b32 v{vD+n}, v{r+1}, v{r}, s{sSelx}")
                A(f"v_perm_b32 v{vD+n+1}, v{r+3}, v{r+2}, s{sSely}")
                A(f"v_or_b32 v{vD+n}, v{vD+n}, v{vD+n+1}")
                A(f"v_xor_b32 v{vD+n}, v{vD+n}, v{vT}")
                n += 1
            for r in extra:
                A(f"v_xor_b32 v{vD+n}, v{r}, v{vT}")
                n += 1
            for i in range(1, n):
                A(f"v_or_b32 v{vD}, v{vD}, v{vD+i}")
            A(f"v_cmp_ne_u32 vcc, 0, v{vD}")

        def poll(loads, check, delay):
            lp, lok = self.lab("poll"), self.lab("pok")
            if delay:
                A(f"s_sleep {delay}")
            A(f"{lp}:")
            loads()
            A("s_mov_b64 exec, -1")
            A(f"s_sub_u32 s{sSpin}, s{sSpin}, 1")
            A("s_cbranch_scc1 L_end")
            A("s_waitcnt vmcnt(0)")
            check()
            A(f"s_cbranch_vccz {lok}")
            A("s_mov_b64 exec, vcc")
            A(f"s_branch {lp}")
            A(f"{lok}:")

        def xreduce(regs, op, tmp):
            A("s_nop 1")
            for r in regs:
                A(f"{op}_dpp v{r}, v{r}, v{r} row_ror:8 {DPPM}")
            for sw in ("v_permlane16_swap_b32", "v_permlane32_swap_b32"):
                for i, r in enumerate(regs):
                    A(f"v_mov_b32 v{tmp+i}, v{r}")
                A("s_nop 1")
                for i, r in enumerate(regs):
                    A(f"{sw} v{r}, v{tmp+i}")
                for i, r in enumerate(regs):
                    A(f"{op} v{r}, v{r}, v{tmp+i}")

        A(f"s_cmp_eq_u32 s{sT2}, 0")
        A("s_cbranch_scc1 L_t3")
        oa, obb, mla, mlb = RING, RING + 4, RING + 8, RING + 12
        A(f"s_lshl_b32 s{sT1}, s{sT1}, 7")
        A(f"s_lshl_b32 s{sT2}, s{sB}, 8")
        A(f"s_add_u32 s{sT1}, s{sT1}, s{sT2}")
        A(f"s_lshl_b32 s{sT2}, s{sH}, 4")
        A(f"s_add_u32 s{sT1}, s{sT1}, s{sT2}")
        A(f"s_and_b32 s{sT2}, s{sS}, 3")
        A(f"s_lshl_b32 s{sT2}, s{sT2}, 9")
        A(f"s_lshr_b32 s{sT3}, s{sS}, 2")
        A(f"s_lshl_b32 s{sT0}, s{sT3}, 7")
        A(f"s_add_u32 s{sT2}, s{sT2}, s{sT0}")
        A(f"s_lshl_b32 s{sT0}, s{sT1}, 11")
        A(f"s_add_u32 s{sT2}, s{sT2}, s{sT0}")
        A(f"s_add_u32 s{sT2}, s{sT2}, {WS_PO}")
        A(f"s_add_u32 s{sIdx}, s{sT2}, 16384")
        A(f"s_lshl_b32 s{sT1}, s{sT1}, 7")
        A(f"s_lshl_b32 s{sT3}, s{sT3}, 4")
        A(f"s_add_u32 s{sT1}, s{sT1}, s{sT3}")
        A(f"s_add_u32 s{sT1}, s{sT1}, {WS_PML}")
        A(f"v_lshrrev_b32 v{vB}, 3, v{vLane}")
        A(f"v_lshlrev_b32 v{vA}, 11, v{vB}")
        A(f"v_and_b32 v{vAl}, 7, v{vLane}")
        A(f"v_lshl_add_u32 v{vA}, v{vAl}, 4, v{vA}")
        A(f"v_lshlrev_b32 v{vB}, 7, v{vB}")

        def h1loads():
            A(f"buffer_load_dwordx4 {vr(mla,4)}, v{vB}, {srd(sWS)}, s{sT1} offen sc1")
            A(f"buffer_load_dwordx4 {vr(mlb,4)}, v{vB}, {srd(sWS)}, s{sT1} offen offset:1024 sc1")
            A(f"buffer_load_dwordx4 {vr(oa,4)}, v{vA}, {srd(sWS)}, s{sT2} offen sc1")
            A(f"buffer_load_dwordx4 {vr(obb,4)}, v{vA}, {srd(sWS)}, s{sIdx} offen sc1")
        poll(h1loads, lambda: tagcheck([oa, obb], [mla + 2, mlb + 2]), self.d1)
        self.TS(8)
        Mg = vD
        A(f"v_max_f32 v{Mg}, v{mla}, v{mlb}")
        xreduce([Mg], "v_max_f32", vD + 8)
        A(f"v_mul_f32 v{Mg}, s{sC}, v{Mg}")
        A(f"v_fma_f32 v{mla}, v{mla}, s{sC}, -v{Mg}")
        A(f"v_fma_f32 v{mlb}, v{mlb}, s{sC}, -v{Mg}")
        A(f"v_exp_f32 v{mla}, v{mla}")
        A(f"v_exp_f32 v{mlb}, v{mlb}")
        A(f"s_lshr_b32 s{sT1}, s{sW}, 1")
        A(f"v_mul_f32 v{vD+1}, v{mla}, v{mla+1}")
        A(f"v_fmac_f32 v{vD+1}, v{mlb}, v{mlb+1}")
        for i in range(4):
            A(f"v_mul_f32 v{vD+2+i}, v{mla}, v{oa+i}")
        for i in range(4):
            A(f"v_fmac_f32 v{vD+2+i}, v{mlb}, v{obb+i}")
        xreduce([vD + 1 + i for i in range(5)], "v_add_f32", vD + 8)
        A(f"v_rcp_f32 v{vD+1}, v{vD+1}")
        A(f"s_lshl_b32 s{sT1}, s{sT1}, 7")
        A(f"v_lshlrev_b32 v{vA}, 2, v{vAl}")
        A(f"v_add_u32 v{vA}, s{sT1}, v{vA}")
        for i in range(4):
            A(f"v_mul_f32 v{vD+2+i}, v{vD+2+i}, v{vD+1}")
        for i in range(4):
            A(f"v_cvt_pk_bf16_f32 v{vD+2+i}, v{vD+2+i}, v{vD+2+i}")
        A("s_mov_b64 exec, 0xff")
        for i in range(4):
            A(f"ds_write_b32 v{vA}, v{vD+2+i} offset:{L_OF+32*i}")
        A("s_mov_b64 exec, -1")

        A("L_t3:")
        mk = 52
        A(f"v_and_b32 v{vA}, 1, v{vLane}")
        A(f"v_lshlrev_b32 v{vA}, 4, v{vA}")
        A(f"v_mov_b32 v{vB}, 0xffff")
        A(f"v_lshlrev_b32 v{vB}, v{vA}, v{vB}")
        A(f"v_bfe_u32 v{vA}, v{vLane}, 1, 2")
        for j in range(4):
            A(f"v_cmp_eq_u32 vcc, {j}, v{vA}")
            A("s_nop 1")
            A(f"v_cndmask_b32 v{mk+j}, 0, v{vB}, vcc")
        A(f"v_bfe_u32 v{vA}, v{vLane}, 3, 1")
        A(f"v_lshlrev_b32 v{vA}, 7, v{vA}")
        A(f"v_lshrrev_b32 v{vB}, 4, v{vLane}")
        A(f"v_lshl_add_u32 v{vA}, v{vB}, 5, v{vA}")
        A(f"s_lshl_b32 s{sT3}, s{sW}, 10")
        A(f"s_lshl_b32 s{sT0}, s2, 12")
        A(f"s_add_u32 s{sT3}, s{sT3}, s{sT0}")
        A(f"s_add_u32 s{sT3}, s{sT3}, {WS_C}")
        A("s_waitcnt vmcnt(0) lgkmcnt(0)")
        A("s_barrier")
        ob = RING
        bo = RING + 8
        A(f"ds_read_b128 {vr(ob,4)}, v{vA} offset:{L_OF}")
        A(f"ds_read_b128 {vr(ob+4,4)}, v{vA} offset:{L_OF+16}")
        for i in range(8):
            if i == 0:
                A("s_waitcnt lgkmcnt(1)")
            if i == 4:
                A("s_waitcnt lgkmcnt(0)")
            for j in range(4):
                A(f"v_and_b32 v{bo+4*i+j}, v{ob+i}, v{mk+j}")
            if i > 0:
                c = "0" if i == 1 else vr(res, 4)
                A(f"v_mfma_f32_16x16x32_bf16 {vr(res,4)}, {vr(vWO+4*(i-1),4)}, {vr(bo+4*(i-1),4)}, {c}")
        A("s_nop 0")
        A(f"v_mfma_f32_16x16x32_bf16 {vr(res,4)}, {vr(vWO+28,4)}, {vr(bo+28,4)}, {vr(res,4)}")
        A("s_nop 7")
        for i in range(4):
            A(f"v_and_or_b32 v{res+i}, v{res+i}, s{sMaskHi}, v{tb+i}")
        A(f"buffer_store_dwordx4 {vr(res,4)}, v{vLin}, {srd(sWS)}, s{sT3} offen sc1")
        self.TS(9)

        A(f"s_cmp_lg_u32 s{sRed}, 0")
        A("s_cbranch_scc1 L_fin")
        ca = RING
        A(f"s_lshr_b32 s{sT1}, s2, 3")
        A(f"s_lshl_b32 s{sT2}, s{sT1}, 7")
        A(f"s_lshl_b32 s{sT3}, s{sW}, 18")
        A(f"s_add_u32 s{sT2}, s{sT2}, s{sT3}")
        A(f"s_add_u32 s{sT2}, s{sT2}, {WS_C}")
        A(f"v_lshrrev_b32 v{vA}, 3, v{vLane}")
        A(f"v_lshlrev_b32 v{vA}, 12, v{vA}")
        A(f"v_and_b32 v{vB}, 7, v{vLane}")
        A(f"v_lshl_add_u32 v{vA}, v{vB}, 4, v{vA}")
        for k in range(8):
            A(f"s_add_u32 s{48+k}, s{sT2}, {k*32768}")
        l = self.lab("nog2")
        A(f"s_cmp_lg_u32 s{sW}, 3")
        A(f"s_cbranch_scc1 {l}")
        g0 = RING + 40
        for j in range(4):
            A(f"v_lshlrev_b32 v{g0+4*j}, 16, v{vG+j}")
            A(f"v_and_b32 v{g0+4*j+1}, 0xffff0000, v{vG+j}")
            A(f"v_lshlrev_b32 v{g0+4*j+2}, 16, v{vG+4+j}")
            A(f"v_and_b32 v{g0+4*j+3}, 0xffff0000, v{vG+4+j}")
        for j in range(4):
            A(f"v_mul_f32 v{g0+4*j}, v{g0+4*j}, v{g0+4*j+2}")
            A(f"v_mul_f32 v{g0+4*j+1}, v{g0+4*j+1}, v{g0+4*j+3}")
        for j in range(4):
            A(f"v_cvt_pk_bf16_f32 v{g0+4*j}, v{g0+4*j}, v{g0+4*j+1}")
        for j in range(4):
            A(f"v_and_b32 v{g0+4*j+1}, 0xffff0000, v{g0+4*j}")
            A(f"v_lshlrev_b32 v{g0+4*j}, 16, v{g0+4*j}")
        for j in range(4):
            A(f"v_add_f32 v{g0+4*j}, v{g0+4*j}, v{g0+4*j+1}")
        A(f"v_add_f32 v{g0}, v{g0}, v{g0+4}")
        A(f"v_add_f32 v{g0+8}, v{g0+8}, v{g0+12}")
        A(f"v_add_f32 v{g0}, v{g0}, v{g0+8}")
        for ror in (1, 2, 4):
            A("s_nop 1")
            A(f"v_add_f32_dpp v{g0}, v{g0}, v{g0} row_ror:{ror} {DPPM}")
        xreduce([g0], "v_add_f32", g0 + 1)
        A(f"v_cvt_pk_bf16_f32 v{g0}, v{g0}, v{g0}")
        A(f"v_and_b32 v{g0}, 0xffff0000, v{g0}")
        A(f"v_mul_f32 v{g0}, {f2u(-1.4426950408889634):#x}, v{g0}")
        A(f"v_exp_f32 v{g0}, v{g0}")
        A("s_nop 0")
        A(f"v_add_f32 v{g0}, 1.0, v{g0}")
        A(f"v_rcp_f32 v{g0}, v{g0}")
        A("s_nop 0")
        A(f"v_cvt_pk_bf16_f32 v{g0}, v{g0}, v{g0}")
        A(f"v_and_b32 v{g0}, 0xffff0000, v{g0}")
        A(f"v_mov_b32 v{g0+1}, {L_G}")
        A("s_mov_b64 exec, 1")
        A(f"ds_write_b32 v{g0+1}, v{g0}")
        A("s_mov_b64 exec, -1")
        A(f"{l}:")

        def h2loads():
            for k in range(8):
                A(f"buffer_load_dwordx4 {vr(ca+4*k,4)}, v{vA}, {srd(sWS)}, s{48+k} offen sc1")
        poll(h2loads, lambda: tagcheck([ca + 4 * k for k in range(8)], []), self.d2)
        self.TS(10)
        for st in (16, 8, 4):
            for i in range(st):
                A(f"v_add_f32 v{ca+i}, v{ca+i}, v{ca+st+i}")
        A("s_nop 1")
        A(f"v_permlane32_swap_b32 v{ca}, v{ca+2}")
        A(f"v_permlane32_swap_b32 v{ca+1}, v{ca+3}")
        A(f"v_add_f32 v{ca}, v{ca}, v{ca+2}")
        A(f"v_add_f32 v{ca+1}, v{ca+1}, v{ca+3}")
        A("s_nop 1")
        A(f"v_permlane16_swap_b32 v{ca}, v{ca+1}")
        A(f"v_add_f32 v{ca}, v{ca}, v{ca+1}")
        A(f"v_lshrrev_b32 v{vA}, 4, v{vLane}")
        A(f"v_lshlrev_b32 v{vA}, 5, v{vA}")
        A(f"v_add_f32_dpp v{ca}, v{ca}, v{ca} row_ror:8 {DPPM}")
        A(f"v_lshl_add_u32 v{vA}, v{vB}, 2, v{vA}")
        A(f"s_lshl_b32 s{sT2}, s{sW}, 7")
        A(f"v_add_u32 v{vA}, s{sT2}, v{vA}")
        A("s_mov_b32 exec_lo, 0x00ff00ff")
        A("s_mov_b32 exec_hi, 0x00ff00ff")
        A(f"ds_write_b32 v{vA}, v{ca} offset:{L_R}")
        A("s_mov_b64 exec, -1")
        A(f"v_and_b32 v{vB}, 31, v{vLane}")
        A(f"v_lshlrev_b32 v{vA}, 2, v{vB}")
        A(f"v_add_u32 v{vAl}, {L_R}, v{vA}")
        A(f"v_mov_b32 v{vD}, {L_G}")
        A(f"s_lshr_b32 s{sT2}, s{sT1}, 1")
        A(f"s_lshl_b32 s{sT2}, s{sT2}, 6")
        A(f"s_and_b32 s{sT3}, s{sT1}, 1")
        A(f"s_lshl_b32 s{sT3}, s{sT3}, 10")
        A(f"s_add_u32 s{sT2}, s{sT2}, s{sT3}")
        A(f"v_lshlrev_b32 v{vA}, 1, v{vB}")
        A("s_waitcnt lgkmcnt(0)")
        A("s_barrier")
        A(f"s_cmp_lg_u32 s{sW}, 0")
        A("s_cbranch_scc1 L_fin")
        fa = RING
        for w in range(2):
            A(f"ds_read2_b32 {vr(fa+2*w,2)}, v{vAl} offset0:{w*32} offset1:{w*32+64}")
        A(f"ds_read_b32 v{vD}, v{vD}")
        A("s_waitcnt lgkmcnt(0)")
        A(f"v_add_f32 v{fa}, v{fa}, v{fa+2}")
        A(f"v_add_f32 v{fa+1}, v{fa+1}, v{fa+3}")
        A(f"v_sub_f32 v{vD+1}, 1.0, v{vD}")
        A(f"v_cvt_pk_bf16_f32 v{fa}, v{fa}, v{fa+1}")
        A(f"v_cvt_pk_bf16_f32 v{vD+1}, v{vD+1}, v{vD+1}")
        A(f"v_and_b32 v{fa+1}, 0xffff0000, v{fa}")
        A(f"v_lshlrev_b32 v{fa}, 16, v{fa}")
        A(f"v_and_b32 v{vD+1}, 0xffff0000, v{vD+1}")
        A(f"v_mul_f32 v{fa}, v{fa}, v{vD}")
        A(f"v_mul_f32 v{fa+1}, v{fa+1}, v{vD+1}")
        A(f"v_cvt_pk_bf16_f32 v{fa}, v{fa}, v{fa+1}")
        A(f"v_and_b32 v{fa+1}, 0xffff0000, v{fa}")
        A(f"v_lshlrev_b32 v{fa}, 16, v{fa}")
        A(f"v_add_f32 v{fa}, v{fa}, v{fa+1}")
        A(f"v_cvt_pk_bf16_f32 v{fa}, v{fa}, v{fa}")
        A("s_mov_b32 exec_hi, 0")
        A(f"buffer_store_short v{fa}, v{vA}, {srd(sOUT)}, s{sT2} offen")
        A("s_cmp_lg_u32 s2, 0")
        A("s_cbranch_scc1 L_fin")
        A("s_mov_b64 exec, 1")
        A(f"v_mov_b32 v{vA}, {WS_EPOCH}")
        A(f"buffer_store_dword v{vT}, v{vA}, {srd(sWS)}, 0 offen sc1")
        A("L_fin:")
        if self.ts:
            A("s_mov_b64 exec, -1")
            self.TS(11)
            A(f"v_writelane_b32 v{vTS}, s{sJ}, 12")
            A("s_getreg_b32 s96, hwreg(HW_REG_XCC_ID)")
            A("s_nop 0")
            A(f"v_writelane_b32 v{vTS}, s96, 13")
            A(f"s_sub_u32 s96, {self.spin}, s{sSpin}")
            A(f"v_writelane_b32 v{vTS}, s96, 14")
            if self.tkm:
                A(f"v_writelane_b32 v{vTS}, s59, 15")
                A(f"v_writelane_b32 v{vTS}, s79, 62")
                A(f"v_writelane_b32 v{vTS}, s57, 63")
            A(f"s_lshl_b32 s{sT1}, s2, 2")
            A(f"s_add_u32 s{sT1}, s{sT1}, s{sW}")
            A(f"s_lshl_b32 s{sT1}, s{sT1}, 8")
            A(f"s_add_u32 s{sT1}, s{sT1}, {WS_TS}")
            A(f"v_lshlrev_b32 v{vA}, 2, v{vLane}")
            A(f"buffer_store_dword v{vTS}, v{vA}, {srd(sWS)}, s{sT1} offen")
            A("s_mov_b64 exec, 0xffff")
            if self.echo >= 0:
                A(f"s_or_b32 s{sT1}, s{sW}, s2")
                A(f"s_cmp_lg_u32 s{sT1}, 0")
                A("s_cbranch_scc1 L_end")
                A("s_nop 1")
                A(f"v_readlane_b32 s{sT1}, v{vTS}, {self.echo}")
                A(f"v_readlane_b32 s{sT2}, v{vTS}, {self.echob}")
                A(f"v_readlane_b32 s{sT3}, v{vTS}, 11")
                A("s_nop 3")
                A(f"s_sub_u32 s{sT1}, s{sT1}, s{sT2}")
                A(f"s_mul_i32 s{sT1}, s{sT1}, {self.echog}")
                A(f"s_min_u32 s{sT1}, s{sT1}, 30000")
                A("L_echo:")
                A("s_memrealtime s[96:97]")
                A("s_waitcnt lgkmcnt(0)")
                A(f"s_sub_u32 s96, s96, s{sT3}")
                A(f"s_cmp_lt_u32 s96, s{sT1}")
                A("s_cbranch_scc1 L_echo")
            if self.dbgts:
                for (src, dst) in ((0, 13), (5, 14), (4, 15)):
                    A("s_nop 0")
                    A(f"v_readlane_b32 s96, v{vTS}, {src}")
                    A("s_nop 3")
                    A("s_not_b32 s96, s96")
                    A(f"v_writelane_b32 v{vTS}, s96, {dst}")
                A(f"global_atomic_umax v{vA}, v{vTS}, s[72:73] sc1")
        A("L_end:")
        A("s_endpgm")
        body_txt = "\n".join(self.L)
        out = HDR + f"; @launch grid=(256,1,1) block=({64*NW},1,1) lds={LDS_BYTES}\n"
        out += '.amdgcn_target "amdgcn-amd-amdhsa--gfx950"\n.text\n'
        out += f".globl {name}\n.p2align 8\n.type {name},@function\n" + body_txt + "\n"
        assert NV <= 256 and 2 * R <= 10 and not self.tkm
        out += f""".section .rodata,"a"
.p2align 6
.amdhsa_kernel {name}
  .amdhsa_next_free_vgpr 264
  .amdhsa_next_free_sgpr 102
  .amdhsa_accum_offset 256
  .amdhsa_group_segment_fixed_size 0
  .amdhsa_kernarg_size 112
  .amdhsa_user_sgpr_count 2
  .amdhsa_user_sgpr_kernarg_segment_ptr 1
  .amdhsa_system_sgpr_workgroup_id_x 1
.end_amdhsa_kernel
"""
        return out


if __name__ == "__main__":
    out = sys.argv[1]
    kw = {}
    for a in sys.argv[2:]:
        k, v = a.split("=")
        assert k in DEFAULTS, k
        kw[k] = type(DEFAULTS[k])(v)
    open(out, "w").write(Gen(**kw).gen())
    print("lds", LDS_BYTES)
```

```python
import sys, struct

NAME = "gated_mix__sliding_block_cached__gqa_block_cached__decode_kernel"

HDR = """; Kernarg layout for this problem (112 bytes, ptrs only, base s[0:1]):
"""

def f2u(x):
    return struct.unpack("<I", struct.pack("<f", x))[0]

WS_EPOCH = 0
WS_PLAN = 4096
WS_Q = 0x10000
WS_PML = 0x20000
WS_PO = 0x40000
WS_C = 0x140000
WS_TS = 0x300000
WS_SIZE = 0x400000

NW = 4
U_STR = 1024 + 64
W_STR = 2 * U_STR
L_O = 0
L_ML = 2 * NW * W_STR
L_Q = L_ML + 256
L_OF = L_Q + 1024
L_R = L_OF + 256
L_G = L_R + 512
L_C = L_G + 16
L_TK = L_C + 4
L_PL = L_C + 8
LDS_BYTES = L_C + 48

DEFAULTS = dict(D=5, DF=8, DQ=8, R=5, NS=28, dyn=0, P1=26, F0=0, fm=0, KF=12, TAU=110, TOFF=800, d1=0, d2=0, ts=0, dbgts=0, echo=-1,
                kvpol="nt", wqpol="nt", wopol="nt", pf2=1, smap=0, dmap=0, tkm=0, echob=0, echog=1, N2=0, N3=0, fake=0, J0=4, J1=20, kvf=0, touch=0, LC=8, pp="sc1", sp="sc1", pw=0, BIAS=0, SCL=1.0, dpat="", st=0, wl=0, wlpol="", rs=0, qx=0, qn=8, ex=0, wqf=0, CA0=20, CAS=7)

class Gen:
    def __init__(self, **kw):
        self.o = dict(DEFAULTS)
        self.o.update(kw)
        for k, v in self.o.items():
            setattr(self, k, v)
        if not self.dyn:
            self.NS = 32
        if self.dbgts or self.echo >= 0:
            self.ts = self.ts or 1
        self.L = []
        self.name = NAME
        self.spin = 1 << 20
        self.uid = 0
        self.tailcode = []

    def A(self, s):
        for line in s.split("\n"):
            line = line.strip()
            self.L.append(line if line.endswith(":") else "    " + line)

    def lab(self, base):
        self.uid += 1
        return f"L{base}_{self.uid}"

    def TS(self, k):
        if not self.ts:
            return
        A = self.A
        A("s_memrealtime s[96:97]")
        A("s_waitcnt lgkmcnt(0)")
        A(f"v_writelane_b32 v69, s96, {k}")

    def gen(self):
        A = self.A
        D, DF, DQ, R, NS, P1, F0 = self.D, self.DF, self.DQ, self.R, self.NS, self.P1, self.F0
        name = self.name
        DPPM = "row_mask:0xf bank_mask:0xf"
        NA = 16 // NW
        sKA, sVA, sKB, sVB, sWQ, sWO, sWS, sX, sOUT = 8, 12, 16, 20, 24, 28, 32, 36, 40
        sW, sBH, sS, sB, sH = 44, 45, 46, 47, 76
        sC, sJ, sStat, sOff, sTk, sT, sSpin = 77, 78, 80, 81, 82, 83, 84
        sT0, sT1, sT2, sT3 = 85, 86, 87, 88
        sSelx, sSely, sMaskHi = 89, 90, 91
        sIdx, sAoff = 3, 65
        sPC = 52
        sRet2, sStart = 48, 50
        sRet = 4
        sPool, sCnt, sTkN = 3, 98, 58
        sJ2 = 79
        sSvc, sState, sTa, sCa = 59, 58, 98, 60
        sBase, sNT, sPlanned, sSched, sNow = 61, 62, 63, 98, 66
        sOff1 = 79
        sBias = 48
        vPl = 70
        vTkA, vTkV = 64, 65
        sDrain, sRed = 6, 7
        vKoff, vLin, vLane = 1, 2, 3
        vQ, vQB, DD = 4, 8, 12
        vM, vL, vMC, vmX, vmY, vA, vB, vAl = 28, 29, 30, 31, 32, 33, 34, 35
        vS, vt, vpd, vXY = 36, 40, 44, 48
        vO1, vO2 = 56, 60
        vT, vTS, vx0, vx1 = 68, 69, 70, 71
        RING = 72
        vAlt = 232
        sKc, sVc = 8, 12
        sKAb, sVAb = 92, 94
        sCA, sTypes, sCur = 80, 56, 57
        NV = RING + 32 * R
        vD = 36

        def srd(s):
            return f"s[{s}:{s+3}]"

        def vr(r, n):
            return f"v[{r}:{r+n-1}]"

        def slot(p, kv, b):
            return RING + (p * 8 + 4 * kv + b) * 4

        def kvload(p, kv, b, sK, sV):
            A(f"buffer_load_dwordx4 {vr(slot(p,kv,b),4)}, v{(vKoff, vLin)[kv]}, {srd((sK, sV)[kv])}, s{sOff} offen offset:{b*1024} {self.kvpol}")

        SVC = bool(self.dyn or self.fm == 3)
        NTS = NW * NS
        PU = 64 * (32 - NS)
        DYNBASE = 64 * NS * 4096
        J0, J1 = self.J0, self.J1

        self.L.append(f"{name}:")
        A("s_cmp_ge_u32 s2, 256")
        A("s_cbranch_scc1 L_end")
        A("s_load_dwordx16 s[48:63], s[0:1], 0")
        A("s_load_dwordx8 s[64:71], s[0:1], 64")
        A("s_load_dwordx4 s[72:75], s[0:1], 96")
        if self.ts:
            A(f"v_mov_b32 v{vTS}, 0")
            A("s_memrealtime s[96:97]")
        A(f"v_lshrrev_b32 v{vA}, 6, v0")
        A(f"v_and_b32 v{vLane}, 63, v0")
        A(f"s_lshr_b32 s{sBH}, s2, 4")
        A(f"v_readfirstlane_b32 s{sW}, v{vA}")
        A(f"s_and_b32 s{sS}, s2, 15")
        A(f"s_lshr_b32 s{sB}, s{sBH}, 3")
        A(f"s_and_b32 s{sH}, s{sBH}, 7")
        A(f"v_lshrrev_b32 v{vA}, 2, v{vLane}")
        A(f"v_lshlrev_b32 v{vB}, 16, v{vA}")
        A(f"v_and_b32 v{vAl}, 3, v{vLane}")
        A(f"v_lshl_add_u32 v{vB}, v{vAl}, 4, v{vB}")
        A(f"v_lshlrev_b32 v{vA}, 4, v{vA}")
        A(f"s_and_b32 s{sT0}, s{sS}, 7")
        A(f"s_lshl_b32 s{sT0}, s{sT0}, 7")
        A(f"s_lshr_b32 s{sT1}, s{sS}, 3")
        A(f"s_lshl_b32 s{sT1}, s{sT1}, 6")
        A(f"s_add_u32 s{sT0}, s{sT0}, s{sT1}")
        A(f"s_lshl_b32 s{sT1}, s{sH}, 10")
        A(f"s_add_u32 s{sT1}, s{sT1}, s{sT0}")
        A(f"s_lshl_b32 s{sT2}, s{sW}, 20")
        A(f"s_add_u32 s{sT1}, s{sT1}, s{sT2}")
        A(f"s_lshl_b32 s{sT2}, s{sW}, 8")
        A(f"v_lshlrev_b32 v{vLin}, 4, v{vLane}")
        A(f"v_mov_b32 v{vx0}, {L_C}")
        A(f"v_mov_b32 v{vM}, 0")
        A(f"v_mov_b32 v{vM+1}, {R*NW}")
        A(f"v_mov_b32 v{vM+2}, -1")
        A(f"v_mov_b32 v{vM+3}, -1")
        A(f"ds_write_b128 v{vx0}, {vr(vM,4)}")
        A(f"s_cmp_eq_u32 s{sB}, 0")
        A("s_waitcnt lgkmcnt(0)")
        if self.ts:
            A(f"v_writelane_b32 v{vTS}, s96, 0")
            self.TS(63)
        A(f"s_cselect_b32 s{sWQ}, s54, s64")
        A(f"s_cselect_b32 s{sWQ+1}, s55, s65")
        A(f"s_cselect_b32 s{sWO}, s56, s66")
        A(f"s_cselect_b32 s{sWO+1}, s57, s67")
        A(f"s_mov_b32 s{sWQ+2}, 0x400000")
        A(f"s_mov_b32 s{sWQ+3}, 0x20000")
        A(f"s_mov_b32 s{sX}, s48")
        A(f"s_mov_b32 s{sX+1}, s49")
        A(f"s_mov_b32 s{sX+2}, 2048")
        A(f"s_mov_b32 s{sX+3}, 0x20000")
        A(f"s_mov_b32 s{sWS}, s74")
        A(f"s_mov_b32 s{sWS+1}, s75")
        A(f"s_mov_b32 s{sWS+2}, {WS_SIZE}")
        A(f"s_mov_b32 s{sWS+3}, 0x20000")
        vXd, vWd = DD, slot(R - 1, 0, 0)
        def wq_loads():
            if self.wqf:
                A(f"s_and_b32 s{sT1}, s2, 127")
                A(f"s_lshl_b32 s{sT1}, s{sT1}, 15")
                A(f"s_lshl_b32 s{sOff}, s{sW}, 13")
                A(f"s_add_u32 s{sT1}, s{sT1}, s{sOff}")
                A(f"buffer_load_dwordx4 {vr(vXd,4)}, v{vA}, {srd(sX)}, s{sT2} offen")
                A(f"buffer_load_dwordx4 {vr(vXd+4,4)}, v{vA}, {srd(sX)}, s{sT2} offen offset:1024")
                for i in range(8):
                    if self.wqf == 2:
                        A(f"s_mov_b32 s{sT1}, 0x7000000")
                    A(f"buffer_load_dwordx4 {vr(vWd+4*i,4)}, v{vLin}, {srd(sWQ)}, s{sT1} offen {self.wqpol}")
                    A(f"s_add_u32 s{sT1}, s{sT1}, 1024")
                return
            A(f"buffer_load_dwordx4 {vr(vXd,4)}, v{vA}, {srd(sX)}, s{sT2} offen")
            A(f"buffer_load_dwordx4 {vr(vXd+4,4)}, v{vA}, {srd(sX)}, s{sT2} offen offset:1024")
            for i in range(8):
                A(f"buffer_load_dwordx4 {vr(vWd+4*i,4)}, v{vB}, {srd(sWQ)}, s{sT1} offen {self.wqpol}")
                if i < 7:
                    A(f"s_add_u32 s{sT1}, s{sT1}, 8192")
        def prewarm():
            z = vXY
            for i in range(4):
                A(f"v_mov_b32 v{z+i}, 0")
            A(f"s_lshr_b32 s{sT3}, s{sW}, 1")
            A(f"s_lshl_b32 s{sT3}, s{sT3}, 8")
            A(f"s_add_u32 s{sIdx}, s{sT3}, s2")
            A(f"s_lshl_b32 s{sT3}, s{sIdx}, 11")
            A(f"s_and_b32 s{sOff}, s{sW}, 1")
            A(f"s_lshl_b32 s{sOff}, s{sOff}, 10")
            A(f"s_add_u32 s{sT3}, s{sT3}, s{sOff}")
            A(f"s_add_u32 s{sT3}, s{sT3}, {WS_PO}")
            op = "buffer_store_dwordx4" if self.pw & 1 else "buffer_load_dwordx4"
            pol = "sc1" if self.pw & 1 else ""
            A(f"{op} {vr(z,4)}, v{vLin}, {srd(sWS)}, s{sT3} offen {pol}")
            A(f"s_lshl_b32 s{sT3}, s{sW}, 10")
            A(f"s_lshl_b32 s{sOff}, s2, 12")
            A(f"s_add_u32 s{sT3}, s{sT3}, s{sOff}")
            A(f"s_add_u32 s{sT3}, s{sT3}, {WS_C}")
            A(f"{op} {vr(z,4)}, v{vLin}, {srd(sWS)}, s{sT3} offen {pol}")
            A(f"s_lshl_b32 s{sOff}, s{sIdx}, 7")
            A(f"s_add_u32 s{sOff}, s{sOff}, {WS_PML}")
            A("s_mov_b64 exec, 0xff")
            A(f"{op} {vr(z,4)}, v{vLin}, {srd(sWS)}, s{sOff} offen {pol}")
            A("s_mov_b64 exec, -1")
        if self.pw in (1, 2):
            prewarm()
        if not self.kvf:
            wq_loads()
        if self.pw in (3, 4):
            prewarm()
            F0x = 3
        else:
            F0x = 0
        A(f"s_load_dword s{sT}, s[74:75], {WS_EPOCH}")
        A(f"s_lshl_b32 s{sT3}, s{sBH}, 23")
        for (d, src) in ((sKB, 60), (sVB, 62), (sKAb, 50), (sVAb, 52)):
            A(f"s_add_u32 s{d}, s{src}, s{sT3}")
            A(f"s_addc_u32 s{d+1}, s{src+1}, 0")
        for d in (sKB, sVB, sKc, sVc):
            A(f"s_mov_b32 s{d+2}, 0x800000")
            A(f"s_mov_b32 s{d+3}, 0x20000")
        A(f"v_lshrrev_b32 v{vKoff}, 4, v{vLane}")
        A(f"v_lshlrev_b32 v{vKoff}, 6, v{vKoff}")
        A(f"v_lshl_add_u32 v{vKoff}, v{vAl}, 4, v{vKoff}")
        A(f"v_bfe_u32 v{vx1}, v{vLane}, 2, 2")
        A(f"v_lshl_add_u32 v{vKoff}, v{vx1}, 8, v{vKoff}")
        A(f"s_mul_i32 s{sBase}, s{sS}, {NTS*4096}")
        A(f"s_lshl_b32 s{sOff}, s{sW}, 12")
        A(f"s_add_u32 s{sOff}, s{sOff}, s{sBase}")

        fill = [(t, kv, b) for t in range(R) for kv in range(2) for b in range(4)]
        self.fill_pos = 0

        def issue_fill(paced):
            t, kv, b = fill[self.fill_pos]
            if paced:
                extra = self.qx if P1 <= self.fill_pos < P1 + self.qn else 0
                A(f"s_waitcnt vmcnt({DQ-1+extra})")
            if kv == 0 and b == 0 and t > 0:
                A(f"s_add_u32 s{sOff}, s{sOff}, {NW*4096}")
            kvload(t, kv, b, sKB, sVB)
            self.fill_pos += 1
            if self.ts == 2 and self.fill_pos % 2 == 0:
                self.TS(40 + self.fill_pos // 2)

        for _ in range(self.kvf):
            issue_fill(False)
        if self.kvf:
            wq_loads()
            if self.ts:
                A("s_waitcnt vmcnt(%d)" % (10 + self.kvf - 1))
                self.TS(62)
        if self.st:
            dst = 100
            if self.st & 1:
                A(f"s_load_dword s{dst}, s[{sKB}:{sKB+1}], s{sBase}")
                A(f"s_load_dword s{dst}, s[{sVB}:{sVB+1}], s{sBase}")
                A(f"s_add_u32 s{sIdx}, s{sBase}, {NTS*4096-4096}")
                A(f"s_load_dword s{dst}, s[{sKB}:{sKB+1}], s{sIdx}")
                A(f"s_load_dword s{dst}, s[{sVB}:{sVB+1}], s{sIdx}")
            if self.st & 2:
                A(f"s_lshl_b32 s{sT3}, s{sH}, 19")
                A(f"s_load_dword s{dst}, s[{sWO}:{sWO+1}], s{sT3}")
                A(f"s_mov_b32 s{sT3}, {WS_C + 0xff000}")
                A(f"s_load_dword s{dst}, s[74:75], s{sT3}")
                A(f"s_load_dword s{dst}, s[70:71], 0")
                A(f"s_load_dword s{dst}, s[68:69], 0")
            if self.st & 4:
                A(f"s_load_dword s{dst}, s[{sKA}:{sKA+1}], 0")
                A(f"s_load_dword s{dst}, s[{sVA}:{sVA+1}], 0")
        NT_ = 0
        if self.touch:
            A(f"s_mov_b32 s{sWO+2}, 0x400000")
            A(f"s_mov_b32 s{sWO+3}, 0x20000")
            A(f"s_mov_b32 s{sOUT}, s70")
            A(f"s_mov_b32 s{sOUT+1}, s71")
            A(f"s_mov_b32 s{sOUT+2}, 2048")
            A(f"s_mov_b32 s{sOUT+3}, 0x20000")
            A(f"v_mov_b32 v{vx1}, 0")
            A(f"s_lshl_b32 s{sT3}, s{sH}, 19")
            A(f"s_lshl_b32 s{sIdx}, s{sS}, 15")
            A(f"s_add_u32 s{sT3}, s{sT3}, s{sIdx}")
            A(f"s_add_u32 s{sIdx}, s{sBase}, {NTS*4096-4096}")
            A(f"s_mov_b32 s{sOff}, {WS_C + 0xff000}")
            A("s_mov_b64 exec, 1")
            tl = []
            if self.touch & 1:
                tl += [(sKA, 0), (sVA, 0), (sKB, f"s{sBase}"), (sVB, f"s{sBase}")]
            if self.touch & 2:
                tl += [(sKB, f"s{sIdx}"), (sVB, f"s{sIdx}")]
            if self.touch & 4:
                tl += [(sWO, f"s{sT3}"), (sWS, 0), (sWS, f"s{sOff}"), (sOUT, 0)]
            for (sr, so) in tl:
                A(f"buffer_load_dword v{slot(R-2,1,3)}, v{vx1}, {srd(sr)}, {so} offen nt")
            if self.touch & 4:
                A(f"global_load_dword v{slot(R-2,1,3)}, v{vx1}, s[68:69]")
            NT_ = len(tl) + (1 if self.touch & 4 else 0)
            A("s_mov_b64 exec, -1")
        for _ in range(F0):
            issue_fill(False)
        F0 += NT_ + F0x
        if self.fm == 2:
            A(f"s_memrealtime s[{sStart}:{sStart+1}]")
        A(f"s_getpc_b64 s[{sPC}:{sPC+1}]")
        A("L_pc:")
        A(f"s_mov_b32 s{sPC+2}, L_end-L_pc")
        A(f"s_mov_b32 s{sPC+3}, 0x20000")

        def code_prefetch():
            l = self.lab("nopf")
            A(f"s_cmp_lg_u32 s{sW}, {NW-1}")
            A(f"s_cbranch_scc1 {l}")
            A(f"v_lshlrev_b32 v{vx1}, 7, v{vLane}")
            A(f"s_movk_i32 s{sT1}, 0x2000")
            A(f"buffer_load_dword v66, v{vx1}, {srd(sPC)}, 0 offen")
            A(f"buffer_load_dword v67, v{vx1}, {srd(sPC)}, s{sT1} offen")
            A(f"{l}:")
        A(f"s_mov_b32 s{sC}, {f2u(128 ** -0.5 * 1.4426950408889634):#x}")
        A(f"s_mov_b32 s{sWO+2}, 0x400000")
        A(f"s_mov_b32 s{sWO+3}, 0x20000")
        A(f"s_mov_b32 s{sOUT}, s70")
        A(f"s_mov_b32 s{sOUT+1}, s71")
        A(f"s_mov_b32 s{sOUT+2}, 2048")
        A(f"s_mov_b32 s{sOUT+3}, 0x20000")
        A(f"s_mov_b32 s{sSelx}, 0x0c0c0400")
        A(f"s_mov_b32 s{sSely}, 0x04000c0c")
        A(f"s_mov_b32 s{sMaskHi}, 0xffffff00")
        A(f"s_mov_b32 s{sJ}, 0")
        A(f"s_mov_b32 s{sSpin}, {self.spin}")
        A(f"s_lshr_b32 s{sRed}, s2, 3")
        A(f"s_xor_b32 s{sRed}, s{sRed}, s2")
        A(f"s_and_b32 s{sRed}, s{sRed}, {self.LC-1}")
        A(f"v_and_b32 v{vA}, 1, v{vLane}")
        A(f"v_lshlrev_b32 v{vA}, 4, v{vA}")
        A(f"v_mov_b32 v{vmX}, 0xffff")
        A(f"v_lshlrev_b32 v{vmX}, v{vA}, v{vmX}")
        A(f"v_and_b32 v{vA}, 2, v{vLane}")
        A(f"v_cmp_eq_u32 vcc, 0, v{vA}")
        A(f"v_mov_b32 v{vM}, 0xff7fffff")
        A(f"v_mov_b32 v{vL}, 0")
        A(f"v_cndmask_b32 v{vmY}, v{vmX}, 0, vcc")
        A(f"v_cndmask_b32 v{vmX}, 0, v{vmX}, vcc")
        A(f"v_mov_b32 v{vMC}, 0xff7fffff")
        A(f"v_lshrrev_b32 v{vA}, 5, v{vLane}")
        A(f"v_lshlrev_b32 v{vA}, 7, v{vA}")
        A(f"v_lshl_add_u32 v{vA}, v{vAl}, 5, v{vA}")
        A(f"v_and_b32 v{vB}, 16, v{vLane}")
        A(f"s_lshl_b32 s{sT1}, s{sW}, 8")
        A(f"v_add3_u32 v{vA}, v{vA}, v{vB}, s{sT1}")
        A("s_waitcnt lgkmcnt(0)")
        A("s_barrier")
        A(f"s_mul_i32 s{sT}, s{sT}, 0x9e3779b1")
        A(f"s_add_u32 s{sT}, s{sT}, 0x7f4a7c15")
        A(f"s_or_b32 s{sT}, s{sT}, 1")
        A(f"v_mov_b32 v{vT}, s{sT}")
        A(f"s_waitcnt vmcnt({F0+7})")
        self.TS(1)
        acc = 52
        xs = 36
        tw = 20
        for b in range(2):
            for j in range(4):
                A(f"v_lshlrev_b32 v{xs+b*8+2*j}, 16, v{vXd+4*b+j}")
                A(f"v_and_b32 v{xs+b*8+2*j+1}, 0xffff0000, v{vXd+4*b+j}")
        for i in range(8):
            if i > 0:
                A(f"s_waitcnt vmcnt({F0+7})")
            issue_fill(False)
            for j in range(4):
                w = vWd + 4 * i + j
                lo, hi = tw + (j & 1) * 2, tw + (j & 1) * 2 + 1
                A(f"v_lshlrev_b32 v{lo}, 16, v{w}")
                A(f"v_and_b32 v{hi}, 0xffff0000, v{w}")
                for b in range(2):
                    op = "v_mul_f32" if i == 0 else "v_fmac_f32"
                    A(f"{op} v{acc+8*b+2*j}, v{lo}, v{xs+8*b+i}")
                    A(f"{op} v{acc+8*b+2*j+1}, v{hi}, v{xs+8*b+i}")
        A("s_nop 1")
        for i in range(8):
            A(f"v_permlane32_swap_b32 v{acc+i}, v{acc+i+8}")
        for i in range(8):
            A(f"v_add_f32 v{acc+i}, v{acc+i}, v{acc+i+8}")
        if self.ex >= 1:
            issue_fill(False)
        A("s_nop 1")
        for i in range(4):
            A(f"v_permlane16_swap_b32 v{acc+i}, v{acc+i+4}")
        for i in range(4):
            A(f"v_add_f32 v{acc+i}, v{acc+i}, v{acc+i+4}")
        A("s_nop 1")
        for i in range(4):
            A(f"v_add_f32_dpp v{acc+i}, v{acc+i}, v{acc+i} row_ror:8 {DPPM}")
        A("s_nop 1")
        for i in range(4):
            A(f"v_add_f32_dpp v{acc+i}, v{acc+i}, v{acc+i} row_ror:4 {DPPM}")
        A("s_mov_b32 exec_lo, 0x000f000f")
        A("s_mov_b32 exec_hi, 0x000f000f")
        A(f"ds_write_b128 v{vA}, {vr(acc,4)} offset:{L_Q}")
        A("s_mov_b64 exec, 1")
        A(f"v_mov_b32 v{vA}, {L_C}")
        A(f"v_mov_b32 v{vB}, 1")
        A("s_waitcnt lgkmcnt(0)")
        A(f"ds_add_rtn_u32 v{vB}, v{vA}, v{vB}")
        A("s_mov_b64 exec, -1")
        if self.ex >= 2:
            issue_fill(False)
        code_prefetch()
        A("s_waitcnt lgkmcnt(0)")
        if self.ex >= 3:
            issue_fill(False)
        A(f"v_readfirstlane_b32 s{sT1}, v{vB}")
        l = self.lab("nosvc")
        A(f"v_lshlrev_b32 v{vA}, 2, v{vLane}")
        A("s_nop 2")
        A(f"s_cmp_lg_u32 s{sT1}, {NW-1}")
        A(f"s_cbranch_scc1 {l}")
        for w in range(NW):
            A(f"ds_read_b32 v{acc+w}, v{vA} offset:{L_Q+w*256}")
        A(f"s_lshl_b32 s{sT1}, s{sB}, 4")
        A(f"s_add_u32 s{sT1}, s{sT1}, s{sH}")
        A(f"s_lshl_b32 s{sT1}, s{sT1}, 11")
        A(f"s_lshl_b32 s{sT2}, s{sT0}, 1")
        A(f"s_add_u32 s{sT1}, s{sT1}, s{sT2}")
        A(f"s_add_u32 s{sT1}, s{sT1}, {WS_Q}")
        A(f"v_lshrrev_b32 v{vB}, 5, v{vLane}")
        A(f"v_lshlrev_b32 v{vB}, 14, v{vB}")
        A(f"v_and_b32 v{vA}, 31, v{vLane}")
        A(f"v_lshl_add_u32 v{vB}, v{vA}, 2, v{vB}")
        A("s_waitcnt lgkmcnt(0)")
        A(f"v_add_f32 v{acc}, v{acc}, v{acc+1}")
        A(f"v_add_f32 v{acc+2}, v{acc+2}, v{acc+3}")
        A(f"v_add_f32 v{acc}, v{acc}, v{acc+2}")
        A(f"v_mov_b32 v{acc+9}, v{vT}")
        A(f"v_mov_b32 v{acc+11}, v{vT}")
        A(f"v_mov_b32_dpp v{acc+1}, v{acc} quad_perm:[1,1,3,3] {DPPM}")
        A("s_nop 0")
        A(f"v_cvt_pk_bf16_f32 v{acc+8}, v{acc}, v{acc+1}")
        A("s_nop 1")
        A(f"v_mov_b32_dpp v{acc+10}, v{acc+8} quad_perm:[2,2,2,2] {DPPM}")
        A("s_mov_b32 exec_lo, 0x11111111")
        A("s_mov_b32 exec_hi, 0x11111111")
        A(f"buffer_store_dwordx4 {vr(acc+8,4)}, v{vB}, {srd(sWS)}, s{sT1} offen sc1")
        A("s_mov_b64 exec, -1")
        self.TS(2)
        A(f"{l}:")
        vQg = DD
        A(f"v_lshlrev_b32 v{vA}, 1, v{vKoff}")
        A(f"s_lshl_b32 s{sT1}, s{sBH}, 11")
        A(f"s_add_u32 s{sT1}, s{sT1}, {WS_Q}")
        A(f"s_add_u32 s{sT2}, s{sT1}, 32768")

        def q_loads():
            A(f"buffer_load_dwordx4 {vr(vQg,4)}, v{vA}, {srd(sWS)}, s{sT1} offen sc1")
            A(f"buffer_load_dwordx4 {vr(vQg+4,4)}, v{vA}, {srd(sWS)}, s{sT1} offen offset:16 sc1")
            A(f"buffer_load_dwordx4 {vr(vQg+8,4)}, v{vA}, {srd(sWS)}, s{sT2} offen sc1")
            A(f"buffer_load_dwordx4 {vr(vQg+12,4)}, v{vA}, {srd(sWS)}, s{sT2} offen offset:16 sc1")

        assert 8 * R - P1 - (self.qn if self.qx else 0) >= 1 and 8 * R - P1 >= DQ
        first = True
        while self.fill_pos < 8 * R:
            if self.fill_pos == P1:
                q_loads()
            issue_fill(True)
            if first:
                for i in range(8):
                    A(f"v_mov_b32 v{vO1+i}, 0")
                    A(f"v_mov_b32 v{vAlt+i}, 0")
                A(f"v_mov_b32 v{vAlt+8}, 0xff7fffff")
                A(f"v_mov_b32 v{vAlt+9}, 0")
                A(f"v_mov_b32 v{vAlt+10}, 0xff7fffff")
                A(f"s_mul_i32 s{sCA}, s{sS}, {self.CAS}")
                A(f"s_add_u32 s{sCA}, s{sCA}, {self.CA0}")
                A(f"s_lshl_b32 s{sAoff}, s{sS}, 16")
                A(f"s_add_u32 s{sAoff}, s{sAoff}, {(32768-4096)*256}")
                A(f"s_mov_b32 s{sTypes}, 0")
                A(f"s_mov_b32 s{sCur}, 0")
                first = False
        self.TS(3)
        lchk, lok = self.lab("qchk"), self.lab("qok")
        A(f"{lchk}:")
        A(f"v_xor_b32 v{vAl}, v{vQg+1}, v{vT}")
        for i in range(1, 8):
            A(f"v_xor_b32 v{vB}, v{vQg+2*i+1}, v{vT}")
            A(f"v_or_b32 v{vAl}, v{vAl}, v{vB}")
        A(f"v_cmp_ne_u32 vcc, 0, v{vAl}")
        A(f"s_cbranch_vccz {lok}")
        A(f"s_sub_u32 s{sSpin}, s{sSpin}, 1")
        A("s_cbranch_scc1 L_end")
        q_loads()
        A("s_waitcnt vmcnt(0)")
        A(f"s_branch {lchk}")
        A(f"{lok}:")
        for i in range(4):
            A(f"v_mov_b32 v{vAlt+12+i}, v{vQg+2*i}")
        for i in range(4):
            A(f"v_mov_b32 v{vQ+i}, v{vQg+8+2*i}")
        self.TS(4)

        stubs = []
        if self.tkm:
            A("s_mov_b32 s59, 0\ns_mov_b32 s79, 0\ns_mov_b32 s57, 0")

        def tile_ts():
            if self.ts:
                lt = self.lab("nts")
                A("s_memrealtime s[96:97]")
                A(f"s_min_u32 s{sT1}, s{sJ}, {34 if self.ts == 1 else 20}")
                A(f"s_add_u32 m0, s{sT1}, 16")
                A("s_waitcnt lgkmcnt(0)")
                A(f"v_writelane_b32 v{vTS}, s96, m0")
                A(f"{lt}:")
                if self.tkm:
                    A("s_memrealtime s[100:101]")
                    A("s_waitcnt lgkmcnt(0)")
                    A("s_sub_u32 s100, s100, s96")
                    A(f"s_cmp_lt_u32 s{sJ}, {JS}")
                    A("s_cselect_b32 s96, 0, s100")
                    A("s_cselect_b32 s97, s100, 0")
                    A("s_cselect_b32 s100, 0, 1")
                    A("s_add_u32 s59, s59, s96")
                    A("s_add_u32 s79, s79, s97")
                    A("s_add_u32 s57, s57, s100")

        def claim():
            A(f"v_mov_b32 v{vTkV}, 1")
            A("s_mov_b64 exec, 1")
            A(f"ds_add_rtn_u32 v{vTkV}, v{vTkA}, v{vTkV}")
            A("s_mov_b64 exec, -1")
            if self.fm == 3:
                A(f"ds_read_b64 {vr(vPl,2)}, v{vTkA} offset:{L_PL-L_TK}")
            if self.fm >= 2:
                A(f"s_memrealtime s[{sNow}:{sNow+1}]")

        def body(p, pace):
            def IP(kv, b):
                if pace is None:
                    if kv == 0 and b == 0:
                        A("s_nop 0")
                    return
                A(f"s_waitcnt vmcnt({PACE(kv,b)-1})")
                kvload(p, kv, b, sKc, sVc)
            def PACE(kv, b):
                if self.dpat and pace == D:
                    return int(self.dpat[kv*4+b])
                return pace
            for b in range(4):
                A(f"v_mfma_f32_16x16x32_bf16 {vr(DD+4*b,4)}, {vr(slot(p,0,b),4)}, {vr(vQ,4)}, 0")
            IP(0, 0)
            A("s_nop 3")
            for b in range(4):
                d = DD + 4 * b
                A(f"v_mov_b32_dpp v{vS+b}, v{d} quad_perm:[0,0,0,0] {DPPM}")
                for q in range(1, 4):
                    A(f"v_add_f32_dpp v{vS+b}, v{d+q}, v{vS+b} quad_perm:[{q},{q},{q},{q}] {DPPM}")
                if b == 1:
                    IP(0, 1)
            A(f"v_max3_f32 v{vA}, v{vS}, v{vS+1}, v{vS+2}")
            A(f"v_max_f32 v{vA}, v{vA}, v{vS+3}")
            lr, lb = self.lab("rs"), self.lab("rsb")
            A(f"v_cmp_gt_f32 vcc, v{vA}, v{vM}")
            A(f"s_cbranch_vccnz {lr}")
            A(f"{lb}:")
            stubs.append((lr, lb))
            IP(0, 2)
            for b in range(4):
                A(f"v_fma_f32 v{vt+b}, v{vS+b}, s{sC}, -v{vMC}")
            for b in range(4):
                A(f"v_exp_f32 v{vt+b}, v{vt+b}")
            for b in range(4):
                A(f"v_cvt_pk_bf16_f32 v{vpd+b}, v{vt+b}, v{vt+b}")
            IP(0, 3)
            for b in range(4):
                A(f"v_and_b32 v{vXY+2*b}, v{vpd+b}, v{vmX}")
                A(f"v_and_b32 v{vXY+2*b+1}, v{vpd+b}, v{vmY}")
            A(f"v_add_f32 v{vA}, v{vt}, v{vt+1}")
            A(f"v_add_f32 v{vB}, v{vt+2}, v{vt+3}")
            for b in range(4):
                r = slot(p, 1, b)
                A(f"v_mfma_f32_16x16x16_bf16 {vr(vO1,4)}, {vr(r,2)}, {vr(vXY+2*b,2)}, {vr(vO1,4)}")
                A(f"v_mfma_f32_16x16x16_bf16 {vr(vO2,4)}, {vr(r+2,2)}, {vr(vXY+2*b,2)}, {vr(vO2,4)}")
                if b == 0:
                    A(f"v_add_f32 v{vL}, v{vL}, v{vA}")
                if b == 1:
                    A(f"v_add_f32 v{vL}, v{vL}, v{vB}")
                if b == 3 and pace is not None:
                    A(f"s_waitcnt vmcnt({PACE(1,3)-1})")
                    claim()
                    kvload(p, 1, 3, sKc, sVc)
                else:
                    IP(1, b)

        A(f"v_mov_b32 v{vTkA}, {L_TK}")
        A(f"s_mov_b32 s{sState}, 0")
        A(f"s_mov_b32 s{sJ2}, 0")
        A(f"s_mov_b32 s{sNT}, {NTS+16}")
        A(f"s_mov_b32 s{sPlanned}, {0 if self.dyn else 1}")
        claim()
        A(f"s_cmp_eq_u32 s{sW}, 0")
        A(f"s_cselect_b32 s{sSvc}, {J0 if SVC else 0x7fffffff}, 0x7fffffff")
        if self.fm == 2:
            A(f"s_add_u32 s{sSched}, s{sStart}, {self.TOFF}")
        A(".p2align 6")
        for (ln, other, pace) in (("a", "b", D), ("b", "a", DF)):
            if ln == "b" and not self.fm:
                break
            A(f"L_loop{ln}:")
            for p in range(R):
                tile_ts()
                A("s_waitcnt lgkmcnt(0)")
                A(f"v_readfirstlane_b32 s{sTk}, v{vTkV}")
                if self.fm == 3:
                    A(f"v_readfirstlane_b32 s{sSched}, v{vPl}")
                    A(f"v_readfirstlane_b32 s{sSched+1}, v{vPl+1}")
                if SVC:
                    A(f"s_cmp_ge_u32 s{sJ}, s{sSvc}")
                    A(f"s_cbranch_scc1 L_svc{ln}{p}")
                    A(f"L_svcret{ln}{p}:")
                else:
                    A("s_nop 1")
                A(f"s_cmp_ge_u32 s{sTk}, s{sNT}")
                A(f"s_cbranch_scc1 L_odd{p}")
                if ln == "a":
                    A(f"L_got{p}:")
                A(f"s_bfe_u32 s{sT1}, s{sTypes}, {(1<<16)|p}")
                A(f"s_cmp_lg_u32 s{sT1}, s{sCur}")
                A(f"s_cbranch_scc1 L_sw{ln}{p}")
                A(f"L_swr{ln}{p}:")
                A(f"s_sub_u32 s{sT1}, s{sTk}, s{sCA}")
                A(f"s_cselect_b32 s{sT2}, 0, 16")
                A(f"s_sub_u32 s{sT2}, s{sTk}, s{sT2}")
                A(f"s_lshl_b32 s{sT2}, s{sT2}, 12")
                A(f"s_add_u32 s{sT2}, s{sT2}, s{sBase}")
                A(f"s_lshl_b32 s{sOff}, s{sT1}, 12")
                A(f"s_add_u32 s{sOff}, s{sOff}, s{sAoff}")
                A(f"s_bitset0_b32 s{sTypes}, {p}")
                A(f"s_cmp_lt_u32 s{sT1}, 16")
                A(f"s_cselect_b32 s{sOff}, s{sOff}, s{sT2}")
                A(f"s_cselect_b64 s[{sKc}:{sKc+1}], s[{sKAb}:{sKAb+1}], s[{sKB}:{sKB+1}]")
                A(f"s_cselect_b64 s[{sVc}:{sVc+1}], s[{sVAb}:{sVAb+1}], s[{sVB}:{sVB+1}]")
                A(f"s_cselect_b32 s{sT1}, {1<<p}, 0")
                A(f"s_or_b32 s{sTypes}, s{sTypes}, s{sT1}")
                if self.fm == 1 and ln == "a":
                    A(f"s_add_u32 s{sT1}, s{sTk}, {self.KF}")
                    A(f"s_cmp_ge_u32 s{sT1}, s{sNT}")
                    A(f"s_cbranch_scc1 L_in{other}{p}")
                elif self.fm == 3:
                    A(f"s_mul_i32 s{sT1}, s{sTk}, s{sSched+1}")
                    A(f"s_lshr_b32 s{sT1}, s{sT1}, 8")
                    A(f"s_add_u32 s{sT1}, s{sT1}, s{sSched}")
                    A(f"s_sub_u32 s{sT1}, s{sNow}, s{sT1}")
                    A(f"s_cmp_eq_u32 s{sSched+1}, -1")
                    A(f"s_cselect_b32 s{sT1}, 0, s{sT1}")
                    A(f"s_cmp_gt_i32 s{sT1}, 0")
                    if self.ts:
                        A(f"s_addc_u32 s{sJ2}, s{sJ2}, 0")
                        A(f"s_cmp_gt_i32 s{sT1}, 0")
                    A(f"s_cbranch_scc{1 if ln == 'a' else 0} L_in{other}{p}")
                elif self.fm == 2:
                    A(f"s_mul_i32 s{sT1}, s{sTk}, {self.TAU}")
                    A(f"s_lshr_b32 s{sT1}, s{sT1}, 2")
                    A(f"s_add_u32 s{sT1}, s{sT1}, s{sSched}")
                    A(f"s_sub_u32 s{sT1}, s{sNow}, s{sT1}")
                    A(f"s_cmp_gt_i32 s{sT1}, 0")
                    A(f"s_cbranch_scc{1 if ln == 'a' else 0} L_in{other}{p}")
                A(f"L_in{ln}{p}:")
                body(p, pace)
                A(f"s_add_u32 s{sJ}, s{sJ}, 1")
            A(f"s_branch L_loop{ln}")
            for p in range(R):
                A(f"L_sw{ln}{p}:")
                A(f"s_call_b64 s[{sRet}:{sRet+1}], L_swap")
                A(f"s_branch L_swr{ln}{p}")
            if SVC:
                for p in range(R):
                    A(f"L_svc{ln}{p}:")
                    A(f"s_call_b64 s[{sRet}:{sRet+1}], L_service")
                    A(f"s_branch L_svcret{ln}{p}")
        for p in range(R):
            A(f"L_odd{p}:")
            A(f"s_cmp_lg_u32 s{sPlanned}, 0")
            A(f"s_cbranch_scc1 L_fdrain{p}")
            if self.dyn:
                A(f"s_call_b64 s[{sRet2}:{sRet2+1}], L_getplan")
                A(f"s_cmp_ge_u32 s{sTk}, s{sNT}")
                A(f"s_cbranch_scc1 L_fdrain{p}")
                A(f"s_branch L_got{p}")
        if self.dyn:
            lg = self.lab("gp")
            A("L_getplan:")
            A(f"s_sub_u32 s{sSpin}, s{sSpin}, 1")
            A("s_cbranch_scc1 L_end")
            A(f"s_cmp_eq_u32 s{sSvc}, 0x7fffffff")
            A(f"s_cbranch_scc1 {lg}")
            A(f"s_call_b64 s[{sRet}:{sRet+1}], L_service")
            A("s_waitcnt vmcnt(0)")
            A("s_branch L_getplan")
            A(f"{lg}:")
            A(f"ds_read_b64 {vr(DD,2)}, v{vTkA} offset:{L_PL-L_TK}")
            A("s_waitcnt lgkmcnt(0)")
            A(f"v_readfirstlane_b32 s{sNT}, v{DD}")
            A(f"v_readfirstlane_b32 s{sBase}, v{DD+1}")
            A("s_nop 3")
            A(f"s_cmp_eq_u32 s{sNT}, -1")
            A("s_cbranch_scc1 L_getplan")
            A(f"s_mov_b32 s{sPlanned}, 1")
            A(f"s_setpc_b64 s[{sRet2}:{sRet2+1}]")
        rec = vQB
        t0r, t1r, t2r, t3r, t4r = DD, DD + 1, DD + 2, DD + 3, DD + 4
        st1, lret, lchk, lld, leq = [self.lab("sv") for _ in range(5)]
        if SVC:
            assert J0 >= NA
            A("L_service:")
            A(f"s_cmp_eq_u32 s{sState}, 1")
            A(f"s_cbranch_scc1 {st1}")
            A(f"s_cmp_eq_u32 s{sState}, 2")
            A(f"s_cbranch_scc1 {lld}")
            A(f"s_cmp_eq_u32 s{sState}, 3")
            A(f"s_cbranch_scc1 {lchk}")
            A(f"s_memrealtime s[{sTa}:{sTa+1}]")
            A(f"s_mov_b32 s{sCa}, s{sTk}")
            A(f"s_mov_b32 s{sState}, 1")
            A(f"s_mov_b32 s{sSvc}, {J1}")
            A("s_waitcnt lgkmcnt(0)")
            A(f"s_setpc_b64 s[{sRet}:{sRet+1}]")
            A(f"{st1}:")
            A("s_memrealtime s[100:101]")
            A(f"s_lshl_b32 s{sT1}, s2, 4")
            A(f"s_add_u32 s{sT1}, s{sT1}, {WS_PLAN}")
            A(f"s_sub_u32 s{sCa}, s{sTk}, s{sCa}")
            A(f"s_lshl_b32 s{sT2}, s{sTk}, 16")
            A(f"s_or_b32 s{sCa}, s{sCa}, s{sT2}")
            A(f"v_mov_b32 v{rec+2}, s{sCa}")
            A(f"v_mov_b32 v{rec+3}, v{vT}")
            A(f"v_mov_b32 v{t0r}, 0")
            A(f"s_mov_b32 s{sState}, 2")
            A(f"s_add_u32 s{sSvc}, s{sJ}, 2")
            A("s_waitcnt lgkmcnt(0)")
            A(f"s_sub_u32 s{sTa}, s100, s{sTa}")
            A(f"v_mov_b32 v{rec}, s100")
            A(f"v_mov_b32 v{rec+1}, s{sTa}")
            A("s_mov_b64 exec, 1")
            A(f"buffer_store_dwordx4 {vr(rec,4)}, v{t0r}, {srd(sWS)}, s{sT1} offen sc1")
            A("s_mov_b64 exec, -1")
            A(f"s_setpc_b64 s[{sRet}:{sRet+1}]")
            A(f"{lld}:")
            A(f"s_lshl_b32 s{sT1}, s{sBH}, 8")
            A(f"s_add_u32 s{sT1}, s{sT1}, {WS_PLAN}")
            A(f"v_and_b32 v{t0r}, 15, v{vLane}")
            A(f"v_lshlrev_b32 v{t0r}, 4, v{t0r}")
            A(f"buffer_load_dwordx4 {vr(rec,4)}, v{t0r}, {srd(sWS)}, s{sT1} offen sc1")
            A(f"s_mov_b32 s{sState}, 3")
            A(f"s_add_u32 s{sSvc}, s{sJ}, 1")
            A(f"s_setpc_b64 s[{sRet}:{sRet+1}]")
            A(f"{lchk}:")
            A("s_waitcnt vmcnt(8)")
            A(f"v_cmp_ne_u32 vcc, v{rec+3}, v{vT}")
            A(f"s_cbranch_vccnz {lld}")
            A(f"v_readlane_b32 s{sT1}, v{rec}, 0")
            A(f"v_cvt_f32_u32 v{t1r}, v{rec+1}")
            A(f"v_and_b32 v{t2r}, 0xffff, v{rec+2}")
            A(f"v_lshrrev_b32 v{t4r}, 16, v{rec+2}")
            A(f"v_subrev_u32 v{t0r}, s{sT1}, v{rec}")
            A(f"v_rcp_f32 v{t1r}, v{t1r}")
            A(f"v_cvt_f32_u32 v{t2r}, v{t2r}")
            A(f"v_cvt_f32_i32 v{t0r}, v{t0r}")
            A(f"v_cvt_f32_u32 v{t4r}, v{t4r}")
            A(f"v_mul_f32 v{t1r}, v{t2r}, v{t1r}")
            A(f"v_sub_f32 v{t4r}, {f2u(float(NTS)):#x}, v{t4r}")
            A(f"v_fma_f32 v{t3r}, v{t0r}, v{t1r}, v{t4r}")
            A(f"v_mov_b32 v{t2r}, v{t1r}")
            for ror in (1, 2, 4, 8):
                A("s_nop 1")
                A(f"v_add_f32_dpp v{t2r}, v{t2r}, v{t2r} row_ror:{ror} {DPPM}")
                A(f"v_add_f32_dpp v{t3r}, v{t3r}, v{t3r} row_ror:{ror} {DPPM}")
            A(f"v_rcp_f32 v{t2r}, v{t2r}")
            A(f"v_add_f32 v{t3r}, {f2u(float(PU)):#x}, v{t3r}")
            A(f"v_mul_f32 v{t3r}, v{t3r}, v{t2r}")
            A("s_nop 0")
            A(f"v_readlane_b32 s{sT1}, v{t3r}, 0")
            A("s_nop 1")
            A(f"v_sub_f32 v{t0r}, s{sT1}, v{t0r}")
            if self.fm == 3:
                A(f"v_max_f32 v{t4r}, 1.0, v{t4r}")
                A(f"v_rcp_f32 v{t4r}, v{t4r}")
                A(f"v_add_f32 v{t0r}, {f2u(-float(self.BIAS)):#x}, v{t0r}")
                A(f"v_mul_f32 v{t0r}, {f2u(256.0*self.SCL):#x}, v{t0r}")
                A(f"v_mul_f32 v{t0r}, v{t0r}, v{t4r}")
                A(f"v_cvt_u32_f32 v{t0r}, v{t0r}")
                A(f"v_min_u32 v{t0r}, 0xffffff, v{t0r}")
                A(f"v_lshrrev_b32 v{t1r}, 16, v{rec+2}")
                A(f"v_mul_lo_u32 v{t1r}, v{t1r}, v{t0r}")
                A(f"v_lshrrev_b32 v{t1r}, 8, v{t1r}")
                A(f"v_sub_u32 v{t1r}, v{rec}, v{t1r}")
                A("s_nop 0")
                A(f"v_readlane_b32 s{sT1}, v{t1r}, s{sS}")
                A(f"v_readlane_b32 s{sT2}, v{t0r}, s{sS}")
                A("s_nop 3")
                if self.ts:
                    A(f"v_writelane_b32 v{vTS}, s{sT2}, 15")
                A(f"v_mov_b32 v{t0r}, s{sT1}")
                A(f"v_mov_b32 v{t1r}, s{sT2}")
                A(f"ds_write_b64 v{vTkA}, {vr(t0r,2)} offset:{L_PL-L_TK}")
                A(f"s_mov_b32 s{sSvc}, 0x7fffffff")
                A(f"s_setpc_b64 s[{sRet}:{sRet+1}]")
            A(f"v_fma_f32 v{t0r}, v{t0r}, v{t1r}, -v{t4r}")
            A(f"v_max_f32 v{t0r}, {f2u(2.0**-10):#x}, v{t0r}")
            A(f"v_mov_b32 v{t2r}, v{t0r}")
            for ror in (1, 2, 4, 8):
                A("s_nop 1")
                A(f"v_add_f32_dpp v{t2r}, v{t2r}, v{t2r} row_ror:{ror} {DPPM}")
            A(f"v_rcp_f32 v{t2r}, v{t2r}")
            A("s_nop 0")
            A(f"v_mul_f32 v{t2r}, {f2u(PU*(1-2.0**-14)):#x}, v{t2r}")
            A("s_nop 0")
            A(f"v_readlane_b32 s{sT1}, v{t2r}, 0")
            A("s_nop 1")
            A(f"v_mul_f32 v{t0r}, s{sT1}, v{t0r}")
            A(f"v_cvt_u32_f32 v{t0r}, v{t0r}")
            A(f"v_min_u32 v{t0r}, {PU}, v{t0r}")
            A(f"v_mov_b32 v{t2r}, v{t0r}")
            for ror in (1, 2, 4, 8):
                A("s_nop 1")
                A(f"v_add_u32_dpp v{t2r}, v{t2r}, v{t2r} row_ror:{ror} {DPPM}")
            A(f"v_sub_u32 v{t2r}, {PU}, v{t2r}")
            A(f"v_and_b32 v{t1r}, 15, v{vLane}")
            A(f"v_cmp_lt_u32 vcc, 16, v{t2r}")
            A(f"s_cbranch_vccz {leq}")
            A(f"v_mov_b32 v{t0r}, {PU//16}")
            A(f"v_mov_b32 v{t2r}, 0")
            A(f"{leq}:")
            A(f"v_cmp_lt_u32 vcc, v{t1r}, v{t2r}")
            A("s_nop 1")
            A(f"v_addc_co_u32 v{t0r}, vcc, 0, v{t0r}, vcc")
            A(f"v_mov_b32 v{t2r}, v{t0r}")
            for sh in (1, 2, 4, 8):
                A("s_nop 1")
                A(f"v_add_u32_dpp v{t2r}, v{t2r}, v{t2r} row_shr:{sh} {DPPM} bound_ctrl:0")
            A("s_nop 0")
            A(f"v_readlane_b32 s{sT1}, v{t2r}, s{sS}")
            A(f"v_readlane_b32 s{sT2}, v{t0r}, s{sS}")
            A("s_nop 3")
            if self.ts:
                A(f"v_writelane_b32 v{vTS}, s{sT2}, 15")
            A(f"s_sub_u32 s{sT1}, s{sT1}, s{sT2}")
            A(f"s_lshl_b32 s{sT1}, s{sT1}, 12")
            A(f"s_add_u32 s{sT1}, s{sT1}, {DYNBASE - NTS*4096}")
            A(f"s_add_u32 s{sT2}, s{sT2}, {NTS}")
            A(f"v_mov_b32 v{t0r}, s{sT2}")
            A(f"v_mov_b32 v{t1r}, s{sT1}")
            A(f"ds_write_b64 v{vTkA}, {vr(t0r,2)} offset:{L_PL-L_TK}")
            A(f"s_mov_b32 s{sSvc}, 0x7fffffff")
            A(f"s_setpc_b64 s[{sRet}:{sRet+1}]")

        per = 8
        assert (R - 1) * per >= max(D, DF, DQ)
        for p in range(R):
            A(f"L_fdrain{p}:")
            A(f"s_mov_b32 s{sDrain}, {R-1}")
            if self.wl:
                A(f"s_call_b64 s[{sRet}:{sRet+1}], L_warm")
            A(f"s_branch L_dgo{p}")
        if self.wl:
            A("L_warm:")
            A(f"s_lshr_b32 s{sT3}, s{sW}, 1")
            A(f"s_lshl_b32 s{sT3}, s{sT3}, 8")
            A(f"s_add_u32 s{sIdx}, s{sT3}, s2")
            A(f"s_lshl_b32 s{sT3}, s{sIdx}, 11")
            A(f"s_and_b32 s{sOff}, s{sW}, 1")
            A(f"s_lshl_b32 s{sOff}, s{sOff}, 10")
            A(f"s_add_u32 s{sT3}, s{sT3}, s{sOff}")
            A(f"s_add_u32 s{sT3}, s{sT3}, {WS_PO}")
            A(f"v_lshlrev_b32 v{vA}, 7, v{vLane}")
            A("s_mov_b64 exec, 0xff")
            if self.wl & 1:
                A(f"buffer_load_dword v66, v{vA}, {srd(sWS)}, s{sT3} offen {self.wlpol}")
            A(f"s_lshl_b32 s{sT3}, s{sW}, 10")
            A(f"s_lshl_b32 s{sOff}, s2, 12")
            A(f"s_add_u32 s{sT3}, s{sT3}, s{sOff}")
            A(f"s_add_u32 s{sT3}, s{sT3}, {WS_C}")
            if self.wl & 2:
                A(f"buffer_load_dword v66, v{vA}, {srd(sWS)}, s{sT3} offen {self.wlpol}")
            A(f"s_lshl_b32 s{sOff}, s{sIdx}, 7")
            A(f"s_add_u32 s{sOff}, s{sOff}, {WS_PML}")
            A("s_mov_b64 exec, 1")
            if self.wl & 1:
                A(f"buffer_load_dword v66, v{vA}, {srd(sWS)}, s{sOff} offen {self.wlpol}")
            A("s_mov_b64 exec, -1")
            A(f"s_setpc_b64 s[{sRet}:{sRet+1}]")
        A("L_dloop:")
        for p in range(R):
            tile_ts()
            A(f"s_sub_u32 s{sDrain}, s{sDrain}, 1")
            A("s_cbranch_scc1 L_exit")
            labs = [self.lab("dw") for _ in range(R)]
            for r in range(R - 2, 0, -1):
                A(f"s_cmp_eq_u32 s{sDrain}, {r}")
                A(f"s_cbranch_scc1 {labs[r]}")
            A("s_waitcnt vmcnt(0)")
            for r in range(1, R - 1):
                A(f"{labs[r]}:")
                A(f"s_waitcnt vmcnt({min(63, per*r)})")
            A(f"L_dgo{p}:")
            lsk = self.lab("nsw")
            A(f"s_bfe_u32 s{sT1}, s{sTypes}, {(1<<16)|p}")
            A(f"s_cmp_eq_u32 s{sT1}, s{sCur}")
            A(f"s_cbranch_scc1 {lsk}")
            A(f"s_call_b64 s[{sRet}:{sRet+1}], L_swap")
            A(f"{lsk}:")
            body(p, None)
            A(f"s_add_u32 s{sJ}, s{sJ}, 1")
        A("s_branch L_dloop")

        for lr, lb in stubs:
            A(f"{lr}:")
            A(f"s_call_b64 s[{sRet}:{sRet+1}], L_resc")
            A(f"s_branch {lb}")

        A("L_resc:")
        A(f"v_max_f32 v{vA}, v{vA}, v{vM}")
        A(f"v_mov_b32 v{vB}, v{vA}")
        A("s_nop 1")
        A(f"v_permlane16_swap_b32 v{vA}, v{vB}")
        A(f"v_max_f32 v{vA}, v{vA}, v{vB}")
        A(f"v_mov_b32 v{vB}, v{vA}")
        A("s_nop 1")
        A(f"v_permlane32_swap_b32 v{vA}, v{vB}")
        A(f"v_max_f32 v{vM}, v{vA}, v{vB}")
        A(f"v_mul_f32 v{vA}, s{sC}, v{vM}")
        A(f"v_sub_f32 v{vAl}, v{vMC}, v{vA}")
        A(f"v_exp_f32 v{vAl}, v{vAl}")
        A(f"v_mov_b32 v{vMC}, v{vA}")
        for i in range(8):
            A(f"v_mul_f32 v{vO1+i}, v{vO1+i}, v{vAl}")
        A(f"v_mul_f32 v{vL}, v{vL}, v{vAl}")
        A(f"s_setpc_b64 s[{sRet}:{sRet+1}]")

        A("L_swap:")
        A("s_nop 3")
        A(f"s_xor_b32 s{sCur}, s{sCur}, 1")
        for i in range(3):
            A(f"v_swap_b32 v{vM+i}, v{vAlt+8+i}")
        for i in range(4):
            A(f"v_swap_b32 v{vQ+i}, v{vAlt+12+i}")
        for i in range(8):
            A(f"v_swap_b32 v{vO1+i}, v{vAlt+i}")
        A(f"s_setpc_b64 s[{sRet}:{sRet+1}]")

        def states_to_lds():
            L2 = vAlt + 9
            A(f"v_mov_b32 v{vB}, v{vL}")
            A(f"v_mov_b32 v{vAl}, v{L2}")
            A(f"s_mul_i32 s{sT1}, s{sW}, {W_STR}")
            A(f"s_mul_i32 s{sT2}, s{sCur}, {NW*W_STR}")
            A(f"v_permlane16_swap_b32 v{vL}, v{vB}")
            A(f"v_permlane16_swap_b32 v{L2}, v{vAl}")
            A(f"v_add_f32 v{vL}, v{vL}, v{vB}")
            A(f"v_add_f32 v{L2}, v{L2}, v{vAl}")
            A(f"v_mov_b32 v{vB}, v{vL}")
            A(f"v_mov_b32 v{vAl}, v{L2}")
            A(f"s_add_u32 s{sT3}, s{sT1}, s{sT2}")
            A(f"s_sub_u32 s{sT1}, s{sT1}, s{sT2}")
            A(f"s_add_u32 s{sT1}, s{sT1}, {NW*W_STR}")
            A(f"v_permlane32_swap_b32 v{vL}, v{vB}")
            A(f"v_permlane32_swap_b32 v{L2}, v{vAl}")
            A(f"v_add_f32 v{vL}, v{vL}, v{vB}")
            A(f"v_add_f32 v{L2}, v{L2}, v{vAl}")
            A(f"v_add_u32 v{vA}, s{sT1}, v{vLin}")
            A(f"v_add_u32 v{vAl}, s{sT3}, v{vLin}")
            A(f"ds_write_b128 v{vA}, {vr(vO1,4)} offset:{L_O}")
            A(f"ds_write_b128 v{vA}, {vr(vO2,4)} offset:{L_O+U_STR}")
            A(f"ds_write_b128 v{vAl}, {vr(vAlt,4)} offset:{L_O}")
            A(f"ds_write_b128 v{vAl}, {vr(vAlt+4,4)} offset:{L_O+U_STR}")
            A(f"s_lshl_b32 s{sT1}, s{sW}, 3")
            A(f"s_lshl_b32 s{sT2}, s{sCur}, 7")
            A(f"s_add_u32 s{sT3}, s{sT1}, s{sT2}")
            A(f"s_sub_u32 s{sT1}, s{sT1}, s{sT2}")
            A(f"s_add_u32 s{sT1}, s{sT1}, 128")
            A(f"v_bfe_u32 v{vB}, v{vLane}, 2, 2")
            A(f"v_lshlrev_b32 v{vB}, 5, v{vB}")
            A(f"v_add_u32 v{vA}, s{sT1}, v{vB}")
            A(f"v_add_u32 v{vAl}, s{sT3}, v{vB}")
            A("s_mov_b64 exec, 0x1111")
            A(f"ds_write_b64 v{vA}, {vr(vM,2)} offset:{L_ML}")
            A(f"ds_write_b64 v{vAl}, {vr(vAlt+8,2)} offset:{L_ML}")
            A("s_mov_b64 exec, -1")

        A("L_exit:")
        self.TS(5)
        if self.ts:
            A(f"v_writelane_b32 v{vTS}, s{sJ2}, 62")
        states_to_lds()
        A(f"s_lshl_b32 s{sT1}, s{sH}, 19")
        A(f"s_lshl_b32 s{sT2}, s{sS}, 15")
        A(f"s_add_u32 s{sT1}, s{sT1}, s{sT2}")
        A(f"s_lshl_b32 s{sT2}, s{sW}, 8")
        A(f"s_add_u32 s{sT1}, s{sT1}, s{sT2}")
        A(f"s_add_u32 s{sT2}, s{sT1}, 4096")
        A(f"v_lshrrev_b32 v{vA}, 4, v{vLane}")
        A(f"v_lshlrev_b32 v{vA}, 13, v{vA}")
        A(f"v_and_b32 v{vB}, 15, v{vLane}")
        A(f"v_lshl_add_u32 v{vA}, v{vB}, 4, v{vA}")
        vWO = slot(R - 1, 0, 0)
        for i in range(8):
            A(f"buffer_load_dwordx4 {vr(vWO+4*i,4)}, v{vA}, {srd(sWO)}, s{(sT1, sT2)[i>>2]} offen offset:{(i&3)*1024} {self.wopol}")
        if self.pf2:
            code_prefetch()
        vG = slot(R - 2, 0, 0)
        l = self.lab("nogate")
        A(f"s_lshl_b32 s{sT1}, s{sRed}, 3")
        A(f"s_or_b32 s{sT1}, s{sT1}, s{sW}")
        A(f"s_cmp_lg_u32 s{sT1}, 3")
        A(f"s_cbranch_scc1 {l}")
        A(f"s_lshl_b32 s{sT1}, s2, 7")
        A(f"s_and_b32 s{sT1}, s{sT1}, 1024")
        A(f"buffer_load_dwordx4 {vr(vG,4)}, v{vLin}, {srd(sX)}, s{sT1} offen")
        A(f"global_load_dwordx4 {vr(vG+4,4)}, v{vLin}, s[68:69]")
        A(f"{l}:")
        ml = RING
        od = RING + 8
        A(f"s_lshr_b32 s{sT1}, s{sW}, 1")
        A(f"s_and_b32 s{sT2}, s{sW}, 1")
        A(f"s_lshl_b32 s{sT3}, s{sT1}, 7")
        A(f"v_bfe_u32 v{vB}, v{vLane}, 3, 2")
        A(f"v_lshlrev_b32 v{vB}, 5, v{vB}")
        A(f"v_add_u32 v{vB}, s{sT3}, v{vB}")
        A(f"s_mul_i32 s{sT3}, s{sT1}, {NW*W_STR}")
        A(f"s_lshl_b32 s{sT0}, s{sT2}, 9")
        A(f"s_add_u32 s{sT3}, s{sT3}, s{sT0}")
        A(f"v_lshrrev_b32 v{vA}, 3, v{vLane}")
        A(f"v_lshlrev_b32 v{vA}, 6, v{vA}")
        A(f"v_and_b32 v{vAl}, 3, v{vLane}")
        A(f"v_lshl_add_u32 v{vA}, v{vAl}, 4, v{vA}")
        A(f"v_bfe_u32 v{vAl}, v{vLane}, 2, 1")
        A(f"v_mul_u32_u24 v{vAl}, {U_STR}, v{vAl}")
        A(f"v_add3_u32 v{vA}, v{vA}, v{vAl}, s{sT3}")
        A(f"s_lshl_b32 s{sIdx}, s{sT1}, 8")
        A(f"s_add_u32 s{sIdx}, s{sIdx}, s2")
        A(f"s_lshl_b32 s{sT3}, s{sIdx}, 11")
        A(f"s_lshl_b32 s{sT0}, s{sT2}, 10")
        A(f"s_add_u32 s{sT3}, s{sT3}, s{sT0}")
        A(f"s_add_u32 s{sT3}, s{sT3}, {WS_PO}")
        A(f"s_lshl_b32 s{sT0}, s{sIdx}, 7")
        A(f"s_add_u32 s{sT0}, s{sT0}, {WS_PML}")
        tb = DD
        A(f"v_and_b32 v{tb}, 0xff, v{vT}")
        A(f"v_bfe_u32 v{tb+1}, v{vT}, 8, 8")
        A(f"v_bfe_u32 v{tb+2}, v{vT}, 16, 8")
        A(f"v_lshrrev_b32 v{tb+3}, 24, v{vT}")
        Mx, Ls = DD + 4, DD + 5
        res = DD + 8
        A(f"v_mov_b32 v{DD+6}, v{vT}")
        A(f"v_mov_b32 v{DD+7}, v{vT}")
        A(f"v_lshlrev_b32 v{vx0}, 1, v{vLane}")
        A("s_waitcnt lgkmcnt(0)")
        A("s_barrier")
        self.TS(6)
        for i in range(2):
            A(f"ds_read_b128 {vr(ml+4*i,4)}, v{vB} offset:{L_ML+16*i}")
        for w in range(NW):
            A(f"ds_read_b128 {vr(od+4*w,4)}, v{vA} offset:{L_O+W_STR*w}")
        A("s_waitcnt lgkmcnt(4)")
        A(f"v_max3_f32 v{Mx}, v{ml}, v{ml+2}, v{ml+4}")
        A(f"v_max_f32 v{Mx}, v{Mx}, v{ml+6}")
        A(f"v_mul_f32 v{vAl}, s{sC}, v{Mx}")
        for w in range(NW):
            A(f"v_fma_f32 v{ml+2*w}, v{ml+2*w}, s{sC}, -v{vAl}")
        for w in range(NW):
            A(f"v_exp_f32 v{ml+2*w}, v{ml+2*w}")
        A("s_waitcnt lgkmcnt(0)")
        for i in range(4):
            A(f"v_mul_f32 v{res+i}, v{ml}, v{od+i}")
        for w in range(1, NW):
            for i in range(4):
                A(f"v_fmac_f32 v{res+i}, v{ml+2*w}, v{od+4*w+i}")
        for i in range(4):
            A(f"v_and_or_b32 v{res+i}, v{res+i}, s{sMaskHi}, v{tb+i}")
        A(f"buffer_store_dwordx4 {vr(res,4)}, v{vLin}, {srd(sWS)}, s{sT3} offen {self.sp}")
        l = self.lab("noml")
        A(f"s_cmp_lg_u32 s{sT2}, 0")
        A(f"s_cbranch_scc1 {l}")
        A(f"v_mul_f32 v{Ls}, v{ml}, v{ml+1}")
        for w in range(1, NW):
            A(f"v_fmac_f32 v{Ls}, v{ml+2*w}, v{ml+2*w+1}")
        A("s_mov_b32 exec_lo, 0x01010101")
        A("s_mov_b32 exec_hi, 0x01010101")
        A(f"buffer_store_dwordx4 {vr(Mx,4)}, v{vx0}, {srd(sWS)}, s{sT0} offen {self.sp}")
        A("s_mov_b64 exec, -1")
        A(f"{l}:")
        self.TS(7)

        def tagcheck(regs, extra):
            n = 0
            for r in regs:
                A(f"v_perm_b32 v{vD+n}, v{r+1}, v{r}, s{sSelx}")
                A(f"v_perm_b32 v{vD+n+1}, v{r+3}, v{r+2}, s{sSely}")
                A(f"v_or_b32 v{vD+n}, v{vD+n}, v{vD+n+1}")
                A(f"v_xor_b32 v{vD+n}, v{vD+n}, v{vT}")
                n += 1
            for r in extra:
                A(f"v_xor_b32 v{vD+n}, v{r}, v{vT}")
                n += 1
            for i in range(1, n):
                A(f"v_or_b32 v{vD}, v{vD}, v{vD+i}")
            A(f"v_cmp_ne_u32 vcc, 0, v{vD}")

        def poll(loads, check, delay, lane0=None):
            lp, lok = self.lab("poll"), self.lab("pok")
            if delay:
                A(f"s_sleep {delay}")
            if self.ts == 1 and lane0:
                A(f"s_mov_b32 s{sJ2}, {lane0}")
            A(f"{lp}:")
            if self.ts == 1 and lane0:
                A("s_memrealtime s[96:97]")
                A(f"s_min_u32 m0, s{sJ2}, {lane0+4}")
                A(f"s_add_u32 s{sJ2}, s{sJ2}, 1")
                A("s_waitcnt lgkmcnt(0)")
                A(f"v_writelane_b32 v{vTS}, s96, m0")
            loads()
            A("s_mov_b64 exec, -1")
            A(f"s_sub_u32 s{sSpin}, s{sSpin}, 1")
            A("s_cbranch_scc1 L_end")
            A("s_waitcnt vmcnt(0)")
            check()
            A(f"s_cbranch_vccz {lok}")
            A("s_mov_b64 exec, vcc")
            if self.rs:
                A(f"s_sleep {self.rs}")
            A(f"s_branch {lp}")
            A(f"{lok}:")

        def xreduce(regs, op, tmp):
            A("s_nop 1")
            for r in regs:
                A(f"{op}_dpp v{r}, v{r}, v{r} row_ror:8 {DPPM}")
            for sw in ("v_permlane16_swap_b32", "v_permlane32_swap_b32"):
                for i, r in enumerate(regs):
                    A(f"v_mov_b32 v{tmp+i}, v{r}")
                A("s_nop 1")
                for i, r in enumerate(regs):
                    A(f"{sw} v{r}, v{tmp+i}")
                for i, r in enumerate(regs):
                    A(f"{op} v{r}, v{r}, v{tmp+i}")

        A(f"s_cmp_eq_u32 s{sT2}, 0")
        A("s_cbranch_scc1 L_t3")
        oa, obb, mla, mlb = RING, RING + 4, RING + 8, RING + 12
        A(f"s_lshl_b32 s{sT1}, s{sT1}, 7")
        A(f"s_lshl_b32 s{sT2}, s{sB}, 8")
        A(f"s_add_u32 s{sT1}, s{sT1}, s{sT2}")
        A(f"s_lshl_b32 s{sT2}, s{sH}, 4")
        A(f"s_add_u32 s{sT1}, s{sT1}, s{sT2}")
        A(f"s_and_b32 s{sT2}, s{sS}, 3")
        A(f"s_lshl_b32 s{sT2}, s{sT2}, 9")
        A(f"s_lshr_b32 s{sT3}, s{sS}, 2")
        A(f"s_lshl_b32 s{sT0}, s{sT3}, 7")
        A(f"s_add_u32 s{sT2}, s{sT2}, s{sT0}")
        A(f"s_lshl_b32 s{sT0}, s{sT1}, 11")
        A(f"s_add_u32 s{sT2}, s{sT2}, s{sT0}")
        A(f"s_add_u32 s{sT2}, s{sT2}, {WS_PO}")
        A(f"s_add_u32 s{sIdx}, s{sT2}, 16384")
        A(f"s_lshl_b32 s{sT1}, s{sT1}, 7")
        A(f"s_lshl_b32 s{sT3}, s{sT3}, 4")
        A(f"s_add_u32 s{sT1}, s{sT1}, s{sT3}")
        A(f"s_add_u32 s{sT1}, s{sT1}, {WS_PML}")
        A(f"v_lshrrev_b32 v{vB}, 3, v{vLane}")
        A(f"v_lshlrev_b32 v{vA}, 11, v{vB}")
        A(f"v_and_b32 v{vAl}, 7, v{vLane}")
        A(f"v_lshl_add_u32 v{vA}, v{vAl}, 4, v{vA}")
        A(f"v_lshlrev_b32 v{vB}, 7, v{vB}")

        def h1loads():
            A(f"buffer_load_dwordx4 {vr(mla,4)}, v{vB}, {srd(sWS)}, s{sT1} offen {self.pp}")
            A(f"buffer_load_dwordx4 {vr(mlb,4)}, v{vB}, {srd(sWS)}, s{sT1} offen offset:1024 {self.pp}")
            A(f"buffer_load_dwordx4 {vr(oa,4)}, v{vA}, {srd(sWS)}, s{sT2} offen {self.pp}")
            A(f"buffer_load_dwordx4 {vr(obb,4)}, v{vA}, {srd(sWS)}, s{sIdx} offen {self.pp}")
        poll(h1loads, lambda: tagcheck([oa, obb], [mla + 2, mlb + 2]), self.d1, 51)
        self.TS(8)
        Mg = vD
        A(f"v_max_f32 v{Mg}, v{mla}, v{mlb}")
        xreduce([Mg], "v_max_f32", vD + 8)
        A(f"v_mul_f32 v{Mg}, s{sC}, v{Mg}")
        A(f"v_fma_f32 v{mla}, v{mla}, s{sC}, -v{Mg}")
        A(f"v_fma_f32 v{mlb}, v{mlb}, s{sC}, -v{Mg}")
        A(f"v_exp_f32 v{mla}, v{mla}")
        A(f"v_exp_f32 v{mlb}, v{mlb}")
        A(f"s_lshr_b32 s{sT1}, s{sW}, 1")
        A(f"v_mul_f32 v{vD+1}, v{mla}, v{mla+1}")
        A(f"v_fmac_f32 v{vD+1}, v{mlb}, v{mlb+1}")
        for i in range(4):
            A(f"v_mul_f32 v{vD+2+i}, v{mla}, v{oa+i}")
        for i in range(4):
            A(f"v_fmac_f32 v{vD+2+i}, v{mlb}, v{obb+i}")
        xreduce([vD + 1 + i for i in range(5)], "v_add_f32", vD + 8)
        A(f"v_rcp_f32 v{vD+1}, v{vD+1}")
        A(f"s_lshl_b32 s{sT1}, s{sT1}, 7")
        A(f"v_lshlrev_b32 v{vA}, 2, v{vAl}")
        A(f"v_add_u32 v{vA}, s{sT1}, v{vA}")
        for i in range(4):
            A(f"v_mul_f32 v{vD+2+i}, v{vD+2+i}, v{vD+1}")
        for i in range(4):
            A(f"v_cvt_pk_bf16_f32 v{vD+2+i}, v{vD+2+i}, v{vD+2+i}")
        A("s_mov_b64 exec, 0xff")
        for i in range(4):
            A(f"ds_write_b32 v{vA}, v{vD+2+i} offset:{L_OF+32*i}")
        A("s_mov_b64 exec, -1")

        A("L_t3:")
        mk = 52
        A(f"v_and_b32 v{vA}, 1, v{vLane}")
        A(f"v_lshlrev_b32 v{vA}, 4, v{vA}")
        A(f"v_mov_b32 v{vB}, 0xffff")
        A(f"v_lshlrev_b32 v{vB}, v{vA}, v{vB}")
        A(f"v_bfe_u32 v{vA}, v{vLane}, 1, 2")
        for j in range(4):
            A(f"v_cmp_eq_u32 vcc, {j}, v{vA}")
            A("s_nop 1")
            A(f"v_cndmask_b32 v{mk+j}, 0, v{vB}, vcc")
        A(f"v_bfe_u32 v{vA}, v{vLane}, 3, 1")
        A(f"v_lshlrev_b32 v{vA}, 7, v{vA}")
        A(f"v_lshrrev_b32 v{vB}, 4, v{vLane}")
        A(f"v_lshl_add_u32 v{vA}, v{vB}, 5, v{vA}")
        A(f"s_lshl_b32 s{sT3}, s{sW}, 10")
        A(f"s_lshl_b32 s{sT0}, s2, 12")
        A(f"s_add_u32 s{sT3}, s{sT3}, s{sT0}")
        A(f"s_add_u32 s{sT3}, s{sT3}, {WS_C}")
        A("s_waitcnt vmcnt(0) lgkmcnt(0)")
        A("s_barrier")
        ob = RING
        bo = RING + 8
        A(f"ds_read_b128 {vr(ob,4)}, v{vA} offset:{L_OF}")
        A(f"ds_read_b128 {vr(ob+4,4)}, v{vA} offset:{L_OF+16}")
        for i in range(8):
            if i == 0:
                A("s_waitcnt lgkmcnt(1)")
            if i == 4:
                A("s_waitcnt lgkmcnt(0)")
            for j in range(4):
                A(f"v_and_b32 v{bo+4*i+j}, v{ob+i}, v{mk+j}")
            if i > 0:
                c = "0" if i == 1 else vr(res, 4)
                A(f"v_mfma_f32_16x16x32_bf16 {vr(res,4)}, {vr(vWO+4*(i-1),4)}, {vr(bo+4*(i-1),4)}, {c}")
        A("s_nop 0")
        A(f"v_mfma_f32_16x16x32_bf16 {vr(res,4)}, {vr(vWO+28,4)}, {vr(bo+28,4)}, {vr(res,4)}")
        A("s_nop 7")
        for i in range(4):
            A(f"v_and_or_b32 v{res+i}, v{res+i}, s{sMaskHi}, v{tb+i}")
        A(f"buffer_store_dwordx4 {vr(res,4)}, v{vLin}, {srd(sWS)}, s{sT3} offen {self.sp}")
        self.TS(9)

        LC = self.LC
        lg = LC.bit_length() - 1
        if self.ts:
            la = self.lab("ack")
            A(f"s_cmp_eq_u32 s{sRed}, 0")
            A(f"s_cbranch_scc1 {la}")
            A("s_waitcnt vmcnt(0)")
            self.TS(61)
            A(f"{la}:")
        A(f"s_cmp_lg_u32 s{sRed}, 0")
        A("s_cbranch_scc1 L_fin")
        ca = RING
        A(f"s_lshr_b32 s{sT1}, s2, 3")
        A(f"s_lshl_b32 s{sT2}, s{sT1}, 7")
        A(f"s_lshl_b32 s{sT3}, s{sW}, 18")
        A(f"s_add_u32 s{sT2}, s{sT2}, s{sT3}")
        A(f"s_and_b32 s{sIdx}, s2, {8-LC}")
        A(f"s_lshl_b32 s{sT3}, s{sIdx}, 4")
        A(f"s_add_u32 s{sT2}, s{sT2}, s{sT3}")
        A(f"s_add_u32 s{sT2}, s{sT2}, {WS_C}")
        A(f"v_lshrrev_b32 v{vA}, {lg}, v{vLane}")
        A(f"v_lshlrev_b32 v{vA}, 12, v{vA}")
        A(f"v_and_b32 v{vB}, {LC-1}, v{vLane}")
        A(f"v_lshl_add_u32 v{vA}, v{vB}, 4, v{vA}")
        for k in range(LC):
            A(f"s_add_u32 s{48+k}, s{sT2}, {k*(64//LC)*4096}")
        l = self.lab("nog2")
        A(f"s_cmp_lg_u32 s{sW}, 3")
        A(f"s_cbranch_scc1 {l}")
        g0 = RING + 40
        for j in range(4):
            A(f"v_lshlrev_b32 v{g0+4*j}, 16, v{vG+j}")
            A(f"v_and_b32 v{g0+4*j+1}, 0xffff0000, v{vG+j}")
            A(f"v_lshlrev_b32 v{g0+4*j+2}, 16, v{vG+4+j}")
            A(f"v_and_b32 v{g0+4*j+3}, 0xffff0000, v{vG+4+j}")
        for j in range(4):
            A(f"v_mul_f32 v{g0+4*j}, v{g0+4*j}, v{g0+4*j+2}")
            A(f"v_mul_f32 v{g0+4*j+1}, v{g0+4*j+1}, v{g0+4*j+3}")
        for j in range(4):
            A(f"v_cvt_pk_bf16_f32 v{g0+4*j}, v{g0+4*j}, v{g0+4*j+1}")
        for j in range(4):
            A(f"v_and_b32 v{g0+4*j+1}, 0xffff0000, v{g0+4*j}")
            A(f"v_lshlrev_b32 v{g0+4*j}, 16, v{g0+4*j}")
        for j in range(4):
            A(f"v_add_f32 v{g0+4*j}, v{g0+4*j}, v{g0+4*j+1}")
        A(f"v_add_f32 v{g0}, v{g0}, v{g0+4}")
        A(f"v_add_f32 v{g0+8}, v{g0+8}, v{g0+12}")
        A(f"v_add_f32 v{g0}, v{g0}, v{g0+8}")
        for ror in (1, 2, 4):
            A("s_nop 1")
            A(f"v_add_f32_dpp v{g0}, v{g0}, v{g0} row_ror:{ror} {DPPM}")
        xreduce([g0], "v_add_f32", g0 + 1)
        A(f"v_cvt_pk_bf16_f32 v{g0}, v{g0}, v{g0}")
        A(f"v_and_b32 v{g0}, 0xffff0000, v{g0}")
        A(f"v_mul_f32 v{g0}, {f2u(-1.4426950408889634):#x}, v{g0}")
        A(f"v_exp_f32 v{g0}, v{g0}")
        A("s_nop 0")
        A(f"v_add_f32 v{g0}, 1.0, v{g0}")
        A(f"v_rcp_f32 v{g0}, v{g0}")
        A("s_nop 0")
        A(f"v_cvt_pk_bf16_f32 v{g0}, v{g0}, v{g0}")
        A(f"v_and_b32 v{g0}, 0xffff0000, v{g0}")
        A(f"v_mov_b32 v{g0+1}, {L_G}")
        A("s_mov_b64 exec, 1")
        A(f"ds_write_b32 v{g0+1}, v{g0}")
        A("s_mov_b64 exec, -1")
        A(f"{l}:")

        def h2loads():
            for k in range(LC):
                A(f"buffer_load_dwordx4 {vr(ca+4*k,4)}, v{vA}, {srd(sWS)}, s{48+k} offen {self.pp}")
        poll(h2loads, lambda: tagcheck([ca + 4 * k for k in range(LC)], []), self.d2, 56)
        self.TS(10)
        st = 2 * LC
        while st >= 4:
            for i in range(st):
                A(f"v_add_f32 v{ca+i}, v{ca+i}, v{ca+st+i}")
            st //= 2
        A("s_nop 1")
        A(f"v_permlane32_swap_b32 v{ca}, v{ca+2}")
        A(f"v_permlane32_swap_b32 v{ca+1}, v{ca+3}")
        A(f"v_add_f32 v{ca}, v{ca}, v{ca+2}")
        A(f"v_add_f32 v{ca+1}, v{ca+1}, v{ca+3}")
        A("s_nop 1")
        A(f"v_permlane16_swap_b32 v{ca}, v{ca+1}")
        A(f"v_add_f32 v{ca}, v{ca}, v{ca+1}")
        A(f"v_lshrrev_b32 v{vA}, 4, v{vLane}")
        A(f"v_lshlrev_b32 v{vA}, 5, v{vA}")
        A(f"v_add_f32_dpp v{ca}, v{ca}, v{ca} row_ror:8 {DPPM}")
        A(f"v_lshl_add_u32 v{vA}, v{vB}, 2, v{vA}")
        A(f"s_lshl_b32 s{sT2}, s{sW}, 7")
        ror = 4
        while ror >= LC:
            A(f"v_add_f32_dpp v{ca}, v{ca}, v{ca} row_ror:{ror} {DPPM}")
            A("s_nop 1")
            ror //= 2
        A(f"v_add_u32 v{vA}, s{sT2}, v{vA}")
        m16 = (1 << LC) - 1
        A(f"s_mov_b32 exec_lo, {m16 | (m16 << 16):#x}")
        A(f"s_mov_b32 exec_hi, {m16 | (m16 << 16):#x}")
        A(f"ds_write_b32 v{vA}, v{ca} offset:{L_R}")
        A("s_mov_b64 exec, -1")
        A(f"v_and_b32 v{vB}, 31, v{vLane}")
        A(f"v_lshlrev_b32 v{vA}, 2, v{vB}")
        A(f"v_add_u32 v{vAl}, {L_R}, v{vA}")
        A(f"v_mov_b32 v{vD}, {L_G}")
        A(f"s_lshr_b32 s{sT2}, s{sT1}, 1")
        A(f"s_lshl_b32 s{sT2}, s{sT2}, 6")
        A(f"s_and_b32 s{sT3}, s{sT1}, 1")
        A(f"s_lshl_b32 s{sT3}, s{sT3}, 10")
        A(f"s_add_u32 s{sT2}, s{sT2}, s{sT3}")
        A(f"s_lshl_b32 s{sT3}, s{sIdx}, 1")
        A(f"s_add_u32 s{sT2}, s{sT2}, s{sT3}")
        A(f"v_lshlrev_b32 v{vA}, 1, v{vB}")
        A("s_waitcnt lgkmcnt(0)")
        A("s_barrier")
        A(f"s_cmp_lg_u32 s{sW}, 0")
        A("s_cbranch_scc1 L_fin")
        fa = RING
        for w in range(2):
            A(f"ds_read2_b32 {vr(fa+2*w,2)}, v{vAl} offset0:{w*32} offset1:{w*32+64}")
        A(f"ds_read_b32 v{vD}, v{vD}")
        A("s_waitcnt lgkmcnt(0)")
        A(f"v_add_f32 v{fa}, v{fa}, v{fa+2}")
        A(f"v_add_f32 v{fa+1}, v{fa+1}, v{fa+3}")
        A(f"v_sub_f32 v{vD+1}, 1.0, v{vD}")
        A(f"v_cvt_pk_bf16_f32 v{fa}, v{fa}, v{fa+1}")
        A(f"v_cvt_pk_bf16_f32 v{vD+1}, v{vD+1}, v{vD+1}")
        A(f"v_and_b32 v{fa+1}, 0xffff0000, v{fa}")
        A(f"v_lshlrev_b32 v{fa}, 16, v{fa}")
        A(f"v_and_b32 v{vD+1}, 0xffff0000, v{vD+1}")
        A(f"v_mul_f32 v{fa}, v{fa}, v{vD}")
        A(f"v_mul_f32 v{fa+1}, v{fa+1}, v{vD+1}")
        A(f"v_cvt_pk_bf16_f32 v{fa}, v{fa}, v{fa+1}")
        A(f"v_and_b32 v{fa+1}, 0xffff0000, v{fa}")
        A(f"v_lshlrev_b32 v{fa}, 16, v{fa}")
        A(f"v_add_f32 v{fa}, v{fa}, v{fa+1}")
        A(f"v_cvt_pk_bf16_f32 v{fa}, v{fa}, v{fa}")
        A("s_mov_b32 exec_hi, 0")
        A(f"s_mov_b32 exec_lo, {m16 * 0x01010101:#x}")
        A(f"buffer_store_short v{fa}, v{vA}, {srd(sOUT)}, s{sT2} offen")
        A("s_cmp_lg_u32 s2, 0")
        A("s_cbranch_scc1 L_fin")
        A("s_mov_b64 exec, 1")
        A(f"v_mov_b32 v{vA}, {WS_EPOCH}")
        A(f"buffer_store_dword v{vT}, v{vA}, {srd(sWS)}, 0 offen sc1")
        A("L_fin:")
        if self.ts:
            A("s_mov_b64 exec, -1")
            self.TS(11)
            A(f"v_writelane_b32 v{vTS}, s{sJ}, 12")
            A("s_getreg_b32 s96, hwreg(HW_REG_XCC_ID)")
            A("s_nop 0")
            A(f"v_writelane_b32 v{vTS}, s96, 13")
            A(f"s_sub_u32 s96, {self.spin}, s{sSpin}")
            A(f"v_writelane_b32 v{vTS}, s96, 14")
            if self.tkm:
                A(f"v_writelane_b32 v{vTS}, s59, 15")
                A(f"v_writelane_b32 v{vTS}, s79, 62")
                A(f"v_writelane_b32 v{vTS}, s57, 63")
            A(f"s_lshl_b32 s{sT1}, s2, 2")
            A(f"s_add_u32 s{sT1}, s{sT1}, s{sW}")
            A(f"s_lshl_b32 s{sT1}, s{sT1}, 8")
            A(f"s_add_u32 s{sT1}, s{sT1}, {WS_TS}")
            A(f"v_lshlrev_b32 v{vA}, 2, v{vLane}")
            A(f"buffer_store_dword v{vTS}, v{vA}, {srd(sWS)}, s{sT1} offen")
            A("s_mov_b64 exec, 0xffff")
            if self.echo >= 0:
                A(f"s_or_b32 s{sT1}, s{sW}, s2")
                A(f"s_cmp_lg_u32 s{sT1}, 0")
                A("s_cbranch_scc1 L_end")
                A("s_nop 1")
                A(f"v_readlane_b32 s{sT1}, v{vTS}, {self.echo}")
                A(f"v_readlane_b32 s{sT2}, v{vTS}, {self.echob}")
                A(f"v_readlane_b32 s{sT3}, v{vTS}, 11")
                A("s_nop 3")
                A(f"s_sub_u32 s{sT1}, s{sT1}, s{sT2}")
                A(f"s_mul_i32 s{sT1}, s{sT1}, {self.echog}")
                A(f"s_min_u32 s{sT1}, s{sT1}, 30000")
                A("L_echo:")
                A("s_memrealtime s[96:97]")
                A("s_waitcnt lgkmcnt(0)")
                A(f"s_sub_u32 s96, s96, s{sT3}")
                A(f"s_cmp_lt_u32 s96, s{sT1}")
                A("s_cbranch_scc1 L_echo")
            if self.dbgts:
                for (src, dst) in ((0, 13), (5, 14), (4, 15)):
                    A("s_nop 0")
                    A(f"v_readlane_b32 s96, v{vTS}, {src}")
                    A("s_nop 3")
                    A("s_not_b32 s96, s96")
                    A(f"v_writelane_b32 v{vTS}, s96, {dst}")
                A(f"global_atomic_umax v{vA}, v{vTS}, s[72:73] sc1")
        A("L_end:")
        A("s_endpgm")
        body_txt = "\n".join(self.L)
        out = HDR + f"; @launch grid=(256,1,1) block=({64*NW},1,1) lds={LDS_BYTES}\n"
        out += '.amdgcn_target "amdgcn-amd-amdhsa--gfx950"\n.text\n'
        out += f".globl {name}\n.p2align 8\n.type {name},@function\n" + body_txt + "\n"
        assert not self.dyn and self.fm in (0, 1) and not self.touch and not self.st and not self.kvf and self.CA0 >= R * NW and self.CA0 + 15 * self.CAS + 16 <= NTS + 16
        assert NV <= 232 and 2 * R <= 10 and not self.tkm
        out += f""".section .rodata,"a"
.p2align 6
.amdhsa_kernel {name}
  .amdhsa_next_free_vgpr 264
  .amdhsa_next_free_sgpr 102
  .amdhsa_accum_offset 256
  .amdhsa_group_segment_fixed_size 0
  .amdhsa_kernarg_size 112
  .amdhsa_user_sgpr_count 2
  .amdhsa_user_sgpr_kernarg_segment_ptr 1
  .amdhsa_system_sgpr_workgroup_id_x 1
.end_amdhsa_kernel
"""
        return out


if __name__ == "__main__":
    out = sys.argv[1]
    kw = {}
    for a in sys.argv[2:]:
        k, v = a.split("=")
        assert k in DEFAULTS, k
        kw[k] = type(DEFAULTS[k])(v.replace("+", " "))
    open(out, "w").write(Gen(**kw).gen())
    print("lds", LDS_BYTES)
```

```python
import sys, struct

NAME = "gated_mix__sliding_block_cached__gqa_block_cached__decode_kernel"

HDR = """; Kernarg layout for this problem (112 bytes, ptrs only, base s[0:1]):
"""

def f2u(x):
    return struct.unpack("<I", struct.pack("<f", x))[0]

WS_EPOCH = 0
WS_Q = 0x10000
WS_PML = 0x20000
WS_PO = 0x40000
WS_C = 0x140000
WS_TS = 0x300000
WS_SIZE = 0x400000

NW = 4
NU = 72
L_S = 0
U_STR = 1024 + 64
W_STR = 2 * U_STR
L_O = NU * 512
L_ML = L_O + 2 * NW * W_STR
L_Q = L_ML + 256
L_OF = L_Q + 1024
L_R = L_OF + 256
L_G = L_R + 512
L_C = L_G + 16
L_TK = L_C + 4
LDS_BYTES = L_C + 48
SENT = 0x7fc0dead

DEFAULTS = dict(D=5, DF=8, DQ=6, DE=10, R=5, P1=26, F0=2, fm=1, KF=4, d1=20, d2=24, ts=0, dbgts=0,
                kvpol="nt", wqpol="nt", wopol="nt", LC=8, qx=4, qn=8, ex=3, CA0=20, CAS=2, dk="", dv="", wod=0)

class Gen:
    def __init__(self, **kw):
        self.o = dict(DEFAULTS)
        self.o.update(kw)
        for k, v in self.o.items():
            setattr(self, k, v)
        if self.dbgts:
            self.ts = self.ts or 1
        self.L = []
        self.name = NAME
        self.spin = 1 << 20
        self.uid = 0

    def A(self, s):
        for line in s.split("\n"):
            line = line.strip()
            self.L.append(line if line.endswith(":") else "    " + line)

    def lab(self, base):
        self.uid += 1
        return f"L{base}_{self.uid}"

    def TS(self, k):
        if not self.ts:
            return
        A = self.A
        A("s_memrealtime s[96:97]")
        A("s_waitcnt lgkmcnt(0)")
        A(f"v_writelane_b32 v69, s96, {k}")

    def gen(self):
        A = self.A
        D, DF, DQ, R, P1, F0 = self.D, self.DF, self.DQ, self.R, self.P1, self.F0
        name = self.name
        DPPM = "row_mask:0xf bank_mask:0xf"
        sIdx = 3
        sRet = 4
        sDrain, sRed = 6, 7
        sF = 8
        sFB, sFA = 12, 14
        sVB, sVA = 16, 18
        sSlot = 20
        sWQ = 60
        sWO, sWS, sX, sOUT = 28, 32, 36, 40
        sW, sBH, sS, sB, sH = 44, 45, 46, 47, 76
        sPC = 52
        sCur, sJ2, sSw, sSub = 56, 57, 58, 59
        sBase, sAoff, sCA = 64, 65, 66
        sC, sJ, sOff2, sOff, sTk, sT, sSpin = 77, 78, 80, 81, 82, 83, 84
        sT0, sT1, sT2, sT3 = 85, 86, 87, 88
        sSelx, sSely, sMaskHi = 89, 90, 91
        sQm = 92
        vKoff, vLin, vLane = 1, 2, 3
        vQ, vQ2, DD = 4, 8, 12
        vM, vL, vMC, vmX, vmY, vA, vB, vAl = 28, 29, 30, 31, 32, 33, 34, 35
        vS, vt, vpd, vXY = 36, 40, 44, 48
        vO1, vO2 = 56, 60
        vTkA, vTkV, vF, vSl = 64, 65, 0, 71
        vT, vTS, vx0 = 68, 69, 70
        RING = 72
        vAlt = 232
        vD = 36
        assert R <= 5

        def srd(s):
            return f"s[{s}:{s+3}]"

        def sp(s):
            return f"s[{s}:{s+1}]"

        def vr(r, n):
            return f"v[{r}:{r+n-1}]"

        def slot(p, i):
            return RING + (p * 8 + i) * 4

        def fetch(p, i):
            A(f"buffer_load_dwordx4 {vr(slot(p,i),4)}, v{vF}, {srd(sF)}, s{(sOff, sOff2)[i>>2]} offen offset:{(i&3)*1024} {self.kvpol}")

        self.L.append(f"{name}:")
        A("s_cmp_ge_u32 s2, 256")
        A("s_cbranch_scc1 L_end")
        A("s_load_dwordx16 s[48:63], s[0:1], 0")
        A("s_load_dwordx8 s[64:71], s[0:1], 64")
        A("s_load_dwordx4 s[72:75], s[0:1], 96")
        if self.ts:
            A(f"v_mov_b32 v{vTS}, 0")
            A("s_memrealtime s[96:97]")
        A(f"v_lshrrev_b32 v{vA}, 6, v0")
        A(f"v_and_b32 v{vLane}, 63, v0")
        A(f"s_lshr_b32 s{sBH}, s2, 4")
        A(f"v_readfirstlane_b32 s{sW}, v{vA}")
        A(f"s_and_b32 s{sS}, s2, 15")
        A(f"s_lshr_b32 s{sB}, s{sBH}, 3")
        A(f"s_and_b32 s{sH}, s{sBH}, 7")
        A(f"v_lshrrev_b32 v{vA}, 2, v{vLane}")
        A(f"v_lshlrev_b32 v{vB}, 16, v{vA}")
        A(f"v_and_b32 v{vAl}, 3, v{vLane}")
        A(f"v_lshl_add_u32 v{vB}, v{vAl}, 4, v{vB}")
        A(f"v_lshlrev_b32 v{vSl}, 4, v{vA}")
        A(f"s_and_b32 s{sT0}, s{sS}, 7")
        A(f"s_lshl_b32 s{sT0}, s{sT0}, 7")
        A(f"s_lshr_b32 s{sT1}, s{sS}, 3")
        A(f"s_lshl_b32 s{sT1}, s{sT1}, 6")
        A(f"s_add_u32 s{sT0}, s{sT0}, s{sT1}")
        A(f"s_lshl_b32 s{sT1}, s{sH}, 10")
        A(f"s_add_u32 s{sT1}, s{sT1}, s{sT0}")
        A(f"s_lshl_b32 s{sT2}, s{sW}, 20")
        A(f"s_add_u32 s{sT1}, s{sT1}, s{sT2}")
        A(f"s_lshl_b32 s{sT2}, s{sW}, 8")
        A(f"v_lshlrev_b32 v{vLin}, 4, v{vLane}")
        A(f"v_lshrrev_b32 v{vKoff}, 4, v{vLane}")
        A(f"v_lshlrev_b32 v{vKoff}, 6, v{vKoff}")
        A(f"v_lshl_add_u32 v{vKoff}, v{vAl}, 4, v{vKoff}")
        A(f"v_bfe_u32 v{vA}, v{vLane}, 2, 2")
        A(f"v_lshl_add_u32 v{vKoff}, v{vA}, 8, v{vKoff}")
        A(f"v_mov_b32 v{vF}, v{vKoff}")
        A(f"s_lshl_b32 s{sT3}, s{sBH}, 23")
        A(f"s_lshl_b32 s{sOff}, s{sS}, 19")
        A(f"s_lshl_b32 s{sOff2}, s{sW}, 12")
        A(f"s_add_u32 s{sOff}, s{sOff}, s{sOff2}")
        A(f"s_add_u32 s{sOff2}, s{sOff}, 16384")
        A(f"s_cmp_eq_u32 s{sB}, 0")
        A("s_waitcnt lgkmcnt(0)")
        if self.ts:
            A(f"v_writelane_b32 v{vTS}, s96, 0")
        A(f"s_cselect_b64 {sp(24)}, s[54:55], s[64:65]")
        A(f"s_cselect_b64 {sp(sWO)}, s[56:57], s[66:67]")
        A("s_mov_b32 s26, 0x400000")
        A("s_mov_b32 s27, 0x20000")
        A(f"s_mov_b64 {sp(sX)}, s[48:49]")
        A(f"s_mov_b32 s{sX+2}, 2048")
        A(f"s_mov_b32 s{sX+3}, 0x20000")
        vXd, vWd = DD, slot(R - 1, 0)
        A(f"buffer_load_dwordx4 {vr(vXd,4)}, v{vSl}, {srd(sX)}, s{sT2} offen")
        A(f"buffer_load_dwordx4 {vr(vXd+4,4)}, v{vSl}, {srd(sX)}, s{sT2} offen offset:1024")
        for i in range(8):
            A(f"buffer_load_dwordx4 {vr(vWd+4*i,4)}, v{vB}, {srd(24)}, s{sT1} offen {self.wqpol}")
            if i < 7:
                A(f"s_add_u32 s{sT1}, s{sT1}, 8192")
        A(f"s_load_dword s{sT}, s[74:75], {WS_EPOCH}")
        for (d, src) in ((sFB, 60), (sFA, 50), (sVB, 62), (sVA, 52)):
            A(f"s_add_u32 s{d}, s{src}, s{sT3}")
            A(f"s_addc_u32 s{d+1}, s{src+1}, 0")
        A(f"s_mov_b64 {sp(sF)}, {sp(sFB)}")
        A(f"s_mov_b32 s{sF+2}, 0x800000")
        A(f"s_mov_b32 s{sF+3}, 0x20000")

        self.fill_pos = 0

        def issue_fill(paced):
            t, i = divmod(self.fill_pos, 8)
            if paced:
                extra = self.qx if P1 <= self.fill_pos < P1 + self.qn else 0
                dq = DQ + extra if self.fill_pos < 8 * R - 4 else self.DE
                A(f"s_waitcnt vmcnt({dq-1})")
            if i == 0 and t > 0:
                A(f"s_add_u32 s{sOff}, s{sOff}, 32768")
                A(f"s_add_u32 s{sOff2}, s{sOff2}, 32768")
            fetch(t, i)
            self.fill_pos += 1
            if self.ts == 2 and self.fill_pos % 2 == 0:
                self.TS(40 + self.fill_pos // 2)

        for _ in range(F0):
            issue_fill(False)
        A(f"s_getpc_b64 {sp(sPC)}")
        A("L_pc:")
        A(f"s_mov_b32 s{sPC+2}, L_end-L_pc")
        A(f"s_mov_b32 s{sPC+3}, 0x20000")
        A(f"v_mov_b32 v{vx0}, {L_C}")
        A(f"v_mov_b32 v{vM}, 0")
        A(f"v_mov_b32 v{vM+1}, {R*NW}")
        A(f"ds_write_b64 v{vx0}, {vr(vM,2)}")
        for i in range(4):
            A(f"v_mov_b32 v{vS+i}, {SENT:#x}")
        A(f"s_mul_i32 s{sT1}, s{sW}, {NU*512//NW}")
        A(f"v_add_u32 v{vx0}, s{sT1}, v{vLin}")
        for i in range(NU * 512 // NW // 1024):
            A(f"ds_write_b128 v{vx0}, {vr(vS,4)} offset:{L_S+i*1024}")
        A(f"s_mov_b64 {sp(sWS)}, s[74:75]")
        A(f"s_mov_b32 s{sWS+2}, {WS_SIZE}")
        A(f"s_mov_b32 s{sWS+3}, 0x20000")
        A(f"s_mov_b32 s{sC}, {f2u(128 ** -0.5 * 1.4426950408889634):#x}")
        A(f"s_mov_b32 s{sWO+2}, 0x400000")
        A(f"s_mov_b32 s{sWO+3}, 0x20000")
        A(f"s_mov_b64 {sp(sOUT)}, s[70:71]")
        A(f"s_mov_b32 s{sOUT+2}, 2048")
        A(f"s_mov_b32 s{sOUT+3}, 0x20000")
        A(f"s_mov_b32 s{sSelx}, 0x0c0c0400")
        A(f"s_mov_b32 s{sSely}, 0x04000c0c")
        A(f"s_mov_b32 s{sMaskHi}, 0xffffff00")
        A(f"s_mov_b32 s{sQm}, 0x11111111")
        A(f"s_mov_b32 s{sQm+1}, 0x11111111")
        A(f"s_mov_b32 s{sJ}, 0")
        A(f"s_mov_b32 s{sCur}, 0")
        A(f"s_mov_b32 s{sSw}, {NU}")
        A(f"s_mov_b32 s{sSub}, 0")
        A(f"s_mov_b32 s{sSpin}, {self.spin}")
        A(f"s_lshr_b32 s{sRed}, s2, 3")
        A(f"s_xor_b32 s{sRed}, s{sRed}, s2")
        A(f"s_and_b32 s{sRed}, s{sRed}, {self.LC-1}")
        A(f"s_lshl_b32 s{sBase}, s{sS}, 19")
        A(f"s_lshl_b32 s{sAoff}, s{sS}, 16")
        A(f"s_add_u32 s{sAoff}, s{sAoff}, {(32768-4096)*256}")
        A(f"s_mul_i32 s{sCA}, s{sS}, {self.CAS}")
        A(f"s_add_u32 s{sCA}, s{sCA}, {self.CA0}")
        assert self.CA0 >= R * NW and self.CA0 + 15 * self.CAS + 8 <= NU
        A(f"v_and_b32 v{vA}, 1, v{vLane}")
        A(f"v_lshlrev_b32 v{vA}, 4, v{vA}")
        A(f"v_mov_b32 v{vmX}, 0xffff")
        A(f"v_lshlrev_b32 v{vmX}, v{vA}, v{vmX}")
        A(f"v_and_b32 v{vA}, 2, v{vLane}")
        A(f"v_cmp_eq_u32 vcc, 0, v{vA}")
        A(f"v_mov_b32 v{vTkA}, {L_TK}")
        A(f"v_mov_b32 v{vMC}, 0xff7fffff")
        A(f"v_cndmask_b32 v{vmY}, v{vmX}, 0, vcc")
        A(f"v_cndmask_b32 v{vmX}, 0, v{vmX}, vcc")
        A(f"v_lshrrev_b32 v{vA}, 5, v{vLane}")
        A(f"v_lshlrev_b32 v{vA}, 7, v{vA}")
        A(f"v_lshl_add_u32 v{vA}, v{vAl}, 5, v{vA}")
        A(f"v_and_b32 v{vB}, 16, v{vLane}")
        A(f"s_lshl_b32 s{sT1}, s{sW}, 8")
        A(f"v_add3_u32 v{vA}, v{vA}, v{vB}, s{sT1}")
        A("s_waitcnt lgkmcnt(0)")
        A("s_barrier")
        A(f"s_mul_i32 s{sT}, s{sT}, 0x9e3779b1")
        A(f"s_add_u32 s{sT}, s{sT}, 0x7f4a7c15")
        A(f"s_or_b32 s{sT}, s{sT}, 1")
        A(f"v_mov_b32 v{vT}, s{sT}")
        A(f"v_mov_b32 v{vM}, 0xff7fffff")
        A(f"v_mov_b32 v{vL}, 0")
        A(f"s_waitcnt vmcnt({F0+7})")
        self.TS(1)
        acc = vAlt
        xs = 36
        tw = 20
        for b in range(2):
            for j in range(4):
                A(f"v_lshlrev_b32 v{xs+b*8+2*j}, 16, v{vXd+4*b+j}")
                A(f"v_and_b32 v{xs+b*8+2*j+1}, 0xffff0000, v{vXd+4*b+j}")
        for i in range(8):
            if i > 0:
                A(f"s_waitcnt vmcnt({F0+7})")
            issue_fill(False)
            for j in range(4):
                w = vWd + 4 * i + j
                lo, hi = tw + (j & 1) * 2, tw + (j & 1) * 2 + 1
                A(f"v_lshlrev_b32 v{lo}, 16, v{w}")
                A(f"v_and_b32 v{hi}, 0xffff0000, v{w}")
                for b in range(2):
                    op = "v_mul_f32" if i == 0 else "v_fmac_f32"
                    A(f"{op} v{acc+8*b+2*j}, v{lo}, v{xs+8*b+i}")
                    A(f"{op} v{acc+8*b+2*j+1}, v{hi}, v{xs+8*b+i}")
        A("s_nop 1")
        for i in range(8):
            A(f"v_permlane32_swap_b32 v{acc+i}, v{acc+i+8}")
        for i in range(8):
            A(f"v_add_f32 v{acc+i}, v{acc+i}, v{acc+i+8}")
        if self.ex >= 1:
            issue_fill(False)
        A("s_nop 1")
        for i in range(4):
            A(f"v_permlane16_swap_b32 v{acc+i}, v{acc+i+4}")
        for i in range(4):
            A(f"v_add_f32 v{acc+i}, v{acc+i}, v{acc+i+4}")
        A("s_nop 1")
        for i in range(4):
            A(f"v_add_f32_dpp v{acc+i}, v{acc+i}, v{acc+i} row_ror:8 {DPPM}")
        A("s_nop 1")
        for i in range(4):
            A(f"v_add_f32_dpp v{acc+i}, v{acc+i}, v{acc+i} row_ror:4 {DPPM}")
        A("s_mov_b32 exec_lo, 0x000f000f")
        A("s_mov_b32 exec_hi, 0x000f000f")
        A(f"ds_write_b128 v{vA}, {vr(acc,4)} offset:{L_Q}")
        A("s_mov_b64 exec, 1")
        A(f"v_mov_b32 v{vA}, {L_C}")
        A(f"v_mov_b32 v{vB}, 1")
        A("s_waitcnt lgkmcnt(0)")
        A(f"ds_add_rtn_u32 v{vB}, v{vA}, v{vB}")
        A("s_mov_b64 exec, -1")
        if self.ex >= 2:
            issue_fill(False)
        l = self.lab("nopf")
        A(f"s_cmp_lg_u32 s{sW}, {NW-1}")
        A(f"s_cbranch_scc1 {l}")
        A(f"v_lshlrev_b32 v{vx0}, 7, v{vLane}")
        A(f"s_movk_i32 s{sT1}, 0x2000")
        A(f"buffer_load_dword v66, v{vx0}, {srd(sPC)}, 0 offen")
        A(f"buffer_load_dword v67, v{vx0}, {srd(sPC)}, s{sT1} offen")
        A(f"s_movk_i32 s{sT1}, 0x4000")
        A(f"buffer_load_dword v67, v{vx0}, {srd(sPC)}, s{sT1} offen")
        A(f"{l}:")
        A("s_waitcnt lgkmcnt(0)")
        if self.ex >= 3:
            issue_fill(False)
        A(f"v_readfirstlane_b32 s{sT1}, v{vB}")
        l = self.lab("nosvc")
        A(f"v_lshlrev_b32 v{vA}, 2, v{vLane}")
        A("s_nop 2")
        A(f"s_cmp_lg_u32 s{sT1}, {NW-1}")
        A(f"s_cbranch_scc1 {l}")
        for w in range(NW):
            A(f"ds_read_b32 v{acc+w}, v{vA} offset:{L_Q+w*256}")
        A(f"s_lshl_b32 s{sT1}, s{sB}, 4")
        A(f"s_add_u32 s{sT1}, s{sT1}, s{sH}")
        A(f"s_lshl_b32 s{sT1}, s{sT1}, 11")
        A(f"s_lshl_b32 s{sT2}, s{sT0}, 1")
        A(f"s_add_u32 s{sT1}, s{sT1}, s{sT2}")
        A(f"s_add_u32 s{sT1}, s{sT1}, {WS_Q}")
        A(f"v_lshrrev_b32 v{vB}, 5, v{vLane}")
        A(f"v_lshlrev_b32 v{vB}, 14, v{vB}")
        A(f"v_and_b32 v{vA}, 31, v{vLane}")
        A(f"v_lshl_add_u32 v{vB}, v{vA}, 2, v{vB}")
        A("s_waitcnt lgkmcnt(0)")
        A(f"v_add_f32 v{acc}, v{acc}, v{acc+1}")
        A(f"v_add_f32 v{acc+2}, v{acc+2}, v{acc+3}")
        A(f"v_add_f32 v{acc}, v{acc}, v{acc+2}")
        A(f"v_mov_b32 v{acc+13}, v{vT}")
        A(f"v_mov_b32 v{acc+15}, v{vT}")
        A(f"v_mov_b32_dpp v{acc+1}, v{acc} quad_perm:[1,1,3,3] {DPPM}")
        A("s_nop 0")
        A(f"v_cvt_pk_bf16_f32 v{acc+12}, v{acc}, v{acc+1}")
        A("s_nop 1")
        A(f"v_mov_b32_dpp v{acc+14}, v{acc+12} quad_perm:[2,2,2,2] {DPPM}")
        A(f"s_mov_b64 exec, {sp(sQm)}")
        A(f"buffer_store_dwordx4 {vr(acc+12,4)}, v{vB}, {srd(sWS)}, s{sT1} offen sc1")
        A("s_mov_b64 exec, -1")
        self.TS(2)
        A(f"{l}:")
        vQg = DD
        A(f"v_lshlrev_b32 v{vA}, 1, v{vKoff}")
        A(f"s_lshl_b32 s{sT1}, s{sBH}, 11")
        A(f"s_add_u32 s{sT1}, s{sT1}, {WS_Q}")
        A(f"s_add_u32 s{sT2}, s{sT1}, 32768")
        for i in range(8):
            A(f"v_mov_b32 v{vO1+i}, 0")
            A(f"v_mov_b32 v{vAlt+i}, 0")
        A(f"v_mov_b32 v{vAlt+8}, 0xff7fffff")
        A(f"v_mov_b32 v{vAlt+9}, 0")
        A(f"v_mov_b32 v{vAlt+10}, 0xff7fffff")
        for p in range(R):
            A(f"s_add_u32 s{sSlot+p}, s{sW}, {NW*p}")

        def q_loads():
            A(f"buffer_load_dwordx4 {vr(vQg,4)}, v{vA}, {srd(sWS)}, s{sT1} offen sc1")
            A(f"buffer_load_dwordx4 {vr(vQg+4,4)}, v{vA}, {srd(sWS)}, s{sT1} offen offset:16 sc1")
            A(f"buffer_load_dwordx4 {vr(vQg+8,4)}, v{vA}, {srd(sWS)}, s{sT2} offen sc1")
            A(f"buffer_load_dwordx4 {vr(vQg+12,4)}, v{vA}, {srd(sWS)}, s{sT2} offen offset:16 sc1")

        def claim():
            A(f"v_mov_b32 v{vTkV}, 1")
            A("s_mov_b64 exec, 1")
            A(f"ds_add_rtn_u32 v{vTkV}, v{vTkA}, v{vTkV}")
            A("s_mov_b64 exec, -1")

        assert 8 * R - P1 >= self.DE and self.DE <= 16
        while self.fill_pos < 8 * R:
            if self.fill_pos == P1:
                q_loads()
            issue_fill(True)
        claim()
        self.TS(3)
        lchk, lok = self.lab("qchk"), self.lab("qok")
        A(f"{lchk}:")
        A(f"v_xor_b32 v{vAl}, v{vQg+1}, v{vT}")
        for i in range(1, 8):
            A(f"v_xor_b32 v{vB}, v{vQg+2*i+1}, v{vT}")
            A(f"v_or_b32 v{vAl}, v{vAl}, v{vB}")
        A(f"v_cmp_ne_u32 vcc, 0, v{vAl}")
        A(f"s_cbranch_vccz {lok}")
        A(f"s_sub_u32 s{sSpin}, s{sSpin}, 1")
        A("s_cbranch_scc1 L_end")
        q_loads()
        A("s_waitcnt vmcnt(0)")
        A(f"s_branch {lchk}")
        A(f"{lok}:")
        for i in range(4):
            A(f"v_mov_b32 v{vQ2+i}, v{vQg+2*i}")
        for i in range(4):
            A(f"v_mov_b32 v{vQ+i}, v{vQg+8+2*i}")
        self.TS(4)

        vWO = slot(1, 0)
        def wo_loads():
            A(f"s_lshl_b32 s{sT1}, s{sH}, 19")
            A(f"s_lshl_b32 s{sT2}, s{sS}, 15")
            A(f"s_add_u32 s{sT1}, s{sT1}, s{sT2}")
            A(f"s_lshl_b32 s{sT2}, s{sW}, 8")
            A(f"s_add_u32 s{sT1}, s{sT1}, s{sT2}")
            A(f"s_add_u32 s{sT2}, s{sT1}, 4096")
            A(f"v_lshrrev_b32 v{vA}, 4, v{vLane}")
            A(f"v_lshlrev_b32 v{vA}, 13, v{vA}")
            A(f"v_and_b32 v{vB}, 15, v{vLane}")
            A(f"v_lshl_add_u32 v{vA}, v{vB}, 4, v{vA}")
            for i in range(8):
                A(f"buffer_load_dwordx4 {vr(vWO+4*i,4)}, v{vA}, {srd(sWO)}, s{(sT1, sT2)[i>>2]} offen offset:{(i&3)*1024} {self.wopol}")

        side = []

        def tile_ts():
            if self.ts:
                A("s_memrealtime s[96:97]")
                A(f"s_min_u32 s{sT1}, s{sJ}, {34 if self.ts == 1 else 20}")
                A(f"s_add_u32 m0, s{sT1}, 16")
                A("s_waitcnt lgkmcnt(0)")
                A(f"v_writelane_b32 v{vTS}, s96, m0")

        def type_check(p, sub, routine):
            l1, l2 = self.lab("sw"), self.lab("swr")
            if sub:
                A(f"s_sub_u32 s{sT1}, s{sSlot+p}, {sub}")
                src = sT1
            else:
                src = sSlot + p
            A(f"s_lshl_b32 s{sT2}, s{src}, 9")
            A(f"v_add_u32 v{vx0}, s{sT2}, v{vSl}")
            A(f"s_sub_u32 s{sT1}, s{src}, s{sCA}")
            A(f"s_cmp_lt_u32 s{sT1}, 8")
            A(f"s_cselect_b32 s{sT1}, 1, 0")
            A(f"s_cmp_lg_u32 s{sT1}, s{sCur}")
            A(f"s_cbranch_scc1 {l1}")
            A(f"{l2}:")
            side.append([f"{l1}:", f"s_call_b64 {sp(sRet)}, {routine}", f"s_branch {l2}"])

        def decode(p):
            A(f"s_mov_b32 s{sSlot+p}, s{sTk}")
            A(f"s_sub_u32 s{sT3}, s{sTk}, s{sSub}")
            A(f"s_sub_u32 s{sT1}, s{sT3}, s{sCA}")
            A(f"s_cselect_b32 s{sT2}, 0, 8")
            A(f"s_sub_u32 s{sT2}, s{sT3}, s{sT2}")
            A(f"s_cmp_lt_u32 s{sT1}, 8")
            A(f"s_cselect_b32 s{sT1}, s{sT1}, s{sT2}")
            A(f"s_cselect_b32 s{sT2}, s{sAoff}, s{sBase}")
            A(f"s_cselect_b64 {sp(sF)}, {sp(sFA)}, {sp(sFB)}")
            A(f"s_lshr_b32 s{sT3}, s{sT1}, 2")
            A(f"s_lshl_b32 s{sT3}, s{sT3}, 15")
            A(f"s_and_b32 s{sT1}, s{sT1}, 3")
            A(f"s_lshl_b32 s{sT1}, s{sT1}, 12")
            A(f"s_add_u32 s{sT2}, s{sT2}, s{sT3}")
            A(f"s_add_u32 s{sOff}, s{sT2}, s{sT1}")
            A(f"s_add_u32 s{sOff2}, s{sOff}, 16384")

        def issue(q, i, pace, pat):
            d = int(pat[i]) if (pat and pace == D) else pace
            A(f"s_waitcnt vmcnt({d-1})")
            if i == 7:
                claim()
            fetch(q, i)

        def kbody(p, q):
            def I(i):
                if q is not None:
                    issue(q, i, D, self.dk)
            for hf in range(2):
                I(4 * hf)
                for b in range(4):
                    A(f"v_mfma_f32_16x16x32_bf16 {vr(DD+4*b,4)}, {vr(slot(p,4*hf+b),4)}, {vr(vQ,4)}, 0")
                I(4 * hf + 1)
                A("s_nop 2" if q is not None else "s_nop 4")
                for b in range(4):
                    d, t = DD + 4 * b, vS + 4 * hf + b
                    A(f"v_mov_b32_dpp v{t}, v{d} quad_perm:[0,0,0,0] {DPPM}")
                    for k in range(1, 4):
                        A(f"v_add_f32_dpp v{t}, v{d+k}, v{t} quad_perm:[{k},{k},{k},{k}] {DPPM}")
                    if b == 0:
                        I(4 * hf + 2)
                    if b == 2:
                        I(4 * hf + 3)
                A(f"s_mov_b64 exec, {sp(sQm)}")
                A(f"ds_write_b128 v{vx0}, {vr(vS+4*hf,4)} offset:{L_S+256*hf}")
                A("s_mov_b64 exec, -1")

        def sread():
            A(f"ds_read_b128 {vr(DD,4)}, v{vx0} offset:{L_S}")
            A(f"ds_read_b128 {vr(DD+4,4)}, v{vx0} offset:{L_S+256}")

        def vbody(p, q, pace):
            def I(i):
                if q is not None:
                    issue(q, i, pace, self.dv)
            lw, lwb = self.lab("nr"), self.lab("nrb")
            I(0)
            A("s_waitcnt lgkmcnt(0)")
            A(f"{lwb}:")
            A(f"v_max3_f32 v{vA}, v{DD}, v{DD+1}, v{DD+2}")
            A(f"v_cmp_eq_u32 vcc, {SENT:#x}, v{DD+3}")
            A(f"v_max3_f32 v{vA}, v{vA}, v{DD+3}, v{DD+4}")
            A(f"s_cbranch_vccnz {lw}")
            A(f"v_cmp_eq_u32 vcc, {SENT:#x}, v{DD+7}")
            A(f"v_max3_f32 v{vA}, v{vA}, v{DD+5}, v{DD+6}")
            A(f"s_cbranch_vccnz {lw}")
            side.append([f"{lw}:", f"s_call_b64 {sp(sRet)}, L_reread", f"s_branch {lwb}"])
            A(f"v_max_f32 v{vA}, v{vA}, v{DD+7}")
            lr, lb = self.lab("rs"), self.lab("rsb")
            A(f"v_cmp_gt_f32 vcc, v{vA}, v{vM}")
            A(f"s_cbranch_vccnz {lr}")
            A(f"{lb}:")
            side.append([f"{lr}:", f"s_call_b64 {sp(sRet)}, L_resc", f"s_branch {lb}"])
            for hf in range(2):
                for b in range(4):
                    A(f"v_fma_f32 v{vt+b}, v{DD+4*hf+b}, s{sC}, -v{vMC}")
                if hf == 0:
                    I(1)
                for b in range(4):
                    A(f"v_exp_f32 v{vt+b}, v{vt+b}")
                if hf == 1:
                    I(5)
                for b in range(4):
                    A(f"v_cvt_pk_bf16_f32 v{vpd+b}, v{vt+b}, v{vt+b}")
                if hf == 0:
                    I(2)
                for b in range(4):
                    A(f"v_and_b32 v{vXY+2*b}, v{vpd+b}, v{vmX}")
                    A(f"v_and_b32 v{vXY+2*b+1}, v{vpd+b}, v{vmY}")
                A(f"v_add_f32 v{vA}, v{vt}, v{vt+1}")
                A(f"v_add_f32 v{vB}, v{vt+2}, v{vt+3}")
                I(3 if hf == 0 else 6)
                for b in range(4):
                    r = slot(p, 4 * hf + b)
                    A(f"v_mfma_f32_16x16x16_bf16 {vr(vO1,4)}, {vr(r,2)}, {vr(vXY+2*b,2)}, {vr(vO1,4)}")
                    A(f"v_mfma_f32_16x16x16_bf16 {vr(vO2,4)}, {vr(r+2,2)}, {vr(vXY+2*b,2)}, {vr(vO2,4)}")
                    if b == 0:
                        A(f"v_add_f32 v{vL}, v{vL}, v{vA}")
                    if b == 1:
                        A(f"v_add_f32 v{vL}, v{vL}, v{vB}")
                I(4 if hf == 0 else 7)

        for p in range(R - 2):
            tile_ts()
            A(f"s_lshl_b32 s{sT2}, s{sSlot+p}, 9")
            A(f"v_add_u32 v{vx0}, s{sT2}, v{vSl}")
            kbody(p, None)
            A(f"s_add_u32 s{sJ}, s{sJ}, 1")
        CYC = [(R - 2, R - 3), (R - 1, R - 2), (R - 3, R - 1)]
        A(".p2align 6")
        A("L_kloop:")
        for (p, q) in CYC:
            l1, l2 = self.lab("tov"), self.lab("tovr")
            tile_ts()
            A("s_waitcnt lgkmcnt(0)")
            A(f"v_readfirstlane_b32 s{sTk}, v{vTkV}")
            A(f"s_cmp_ge_u32 s{sSlot+p}, {NU}")
            A(f"s_cbranch_scc1 L_v0_{p}")
            type_check(p, 0, "L_swapq")
            A(f"s_cmp_ge_u32 s{sTk}, s{sSw}")
            A(f"s_cbranch_scc1 {l1}")
            A(f"{l2}:")
            side.append([f"{l1}:", f"s_call_b64 {sp(sRet)}, L_tov", f"s_branch {l2}"])
            decode(q)
            kbody(p, q)
            A(f"s_add_u32 s{sJ}, s{sJ}, 1")
        A("s_branch L_kloop")
        for (p, q) in CYC:
            A(f"L_v0_{p}:")
            A(f"s_mov_b32 s{sCur}, 0")
            A(f"s_branch L_vina{p}")
        for (ln, pace) in (("a", D), ("b", DF)):
            if ln == "b" and not self.fm:
                break
            A(f"L_vloop{ln}:")
            for (p, q) in CYC:
                tile_ts()
                A("s_waitcnt lgkmcnt(0)")
                A(f"v_readfirstlane_b32 s{sTk}, v{vTkV}")
                A(f"L_vin{ln}{p}:")
                type_check(p, NU, "L_swap")
                sread()
                A(f"s_cmp_ge_u32 s{sTk}, {2*NU}")
                A(f"s_cbranch_scc1 L_fdrain{p}")
                decode(q)
                if self.fm and ln == "a":
                    A(f"s_cmp_ge_u32 s{sTk}, {2*NU-self.KF}")
                    A(f"s_cbranch_scc1 L_vgob{p}")
                A(f"L_vgo{ln}{p}:")
                vbody(p, q, pace)
                A(f"s_add_u32 s{sJ}, s{sJ}, 1")
            A(f"s_branch L_vloop{ln}")
        assert max(D, DF) <= 8
        for (p, q) in CYC:
            A(f"L_fdrain{p}:")
            A(f"s_mov_b32 s{sDrain}, 1")
            if self.wod:
                A(f"s_call_b64 {sp(sRet)}, L_wo")
            A(f"s_branch L_dgo{p}")
        A("L_dloop:")
        for (p, q) in CYC:
            tile_ts()
            A(f"s_sub_u32 s{sDrain}, s{sDrain}, 1")
            A("s_cbranch_scc1 L_exit")
            type_check(p, NU, "L_swap")
            sread()
            A("s_waitcnt vmcnt(8)" if self.wod else "s_waitcnt vmcnt(0)")
            A(f"L_dgo{p}:")
            vbody(p, None, None)
            A(f"s_add_u32 s{sJ}, s{sJ}, 1")
        A("s_branch L_dloop")

        for piece in side:
            for ln in piece:
                A(ln)

        A("L_tov:")
        A(f"s_mov_b64 {sp(sFB)}, {sp(sVB)}")
        A(f"s_mov_b64 {sp(sFA)}, {sp(sVA)}")
        A(f"s_mov_b32 s{sSub}, {NU}")
        A(f"s_mov_b32 s{sSw}, 0x7fffffff")
        A(f"v_mov_b32 v{vF}, v{vLin}")
        A(f"s_setpc_b64 {sp(sRet)}")

        if self.wod:
            A("L_wo:")
            wo_loads()
            A(f"s_setpc_b64 {sp(sRet)}")

        A("L_swapq:")
        A(f"s_xor_b32 s{sCur}, s{sCur}, 1")
        for i in range(4):
            A(f"v_swap_b32 v{vQ+i}, v{vQ2+i}")
        A(f"s_setpc_b64 {sp(sRet)}")

        A("L_swap:")
        A("s_nop 3")
        A(f"s_xor_b32 s{sCur}, s{sCur}, 1")
        for i in range(3):
            A(f"v_swap_b32 v{vM+i}, v{vAlt+8+i}")
        for i in range(8):
            A(f"v_swap_b32 v{vO1+i}, v{vAlt+i}")
        A(f"s_setpc_b64 {sp(sRet)}")

        A("L_reread:")
        A(f"s_sub_u32 s{sSpin}, s{sSpin}, 1")
        A("s_cbranch_scc1 L_end")
        sread()
        A("s_waitcnt lgkmcnt(0)")
        A(f"s_setpc_b64 {sp(sRet)}")

        A("L_resc:")
        A(f"v_max_f32 v{vA}, v{vA}, v{vM}")
        A(f"v_mov_b32 v{vB}, v{vA}")
        A("s_nop 1")
        A(f"v_permlane16_swap_b32 v{vA}, v{vB}")
        A(f"v_max_f32 v{vA}, v{vA}, v{vB}")
        A(f"v_mov_b32 v{vB}, v{vA}")
        A("s_nop 1")
        A(f"v_permlane32_swap_b32 v{vA}, v{vB}")
        A(f"v_max_f32 v{vM}, v{vA}, v{vB}")
        A(f"v_mul_f32 v{vA}, s{sC}, v{vM}")
        A(f"v_sub_f32 v{vAl}, v{vMC}, v{vA}")
        A(f"v_exp_f32 v{vAl}, v{vAl}")
        A(f"v_mov_b32 v{vMC}, v{vA}")
        for i in range(8):
            A(f"v_mul_f32 v{vO1+i}, v{vO1+i}, v{vAl}")
        A(f"v_mul_f32 v{vL}, v{vL}, v{vAl}")
        A(f"s_setpc_b64 {sp(sRet)}")

        A("L_exit:")
        self.TS(5)
        L2 = vAlt + 9
        A(f"v_mov_b32 v{vB}, v{vL}")
        A(f"v_mov_b32 v{vAl}, v{L2}")
        A(f"s_mul_i32 s{sT1}, s{sW}, {W_STR}")
        A(f"s_mul_i32 s{sT2}, s{sCur}, {NW*W_STR}")
        A(f"v_permlane16_swap_b32 v{vL}, v{vB}")
        A(f"v_permlane16_swap_b32 v{L2}, v{vAl}")
        A(f"v_add_f32 v{vL}, v{vL}, v{vB}")
        A(f"v_add_f32 v{L2}, v{L2}, v{vAl}")
        A(f"v_mov_b32 v{vB}, v{vL}")
        A(f"v_mov_b32 v{vAl}, v{L2}")
        A(f"s_add_u32 s{sT3}, s{sT1}, s{sT2}")
        A(f"s_sub_u32 s{sT1}, s{sT1}, s{sT2}")
        A(f"s_add_u32 s{sT1}, s{sT1}, {NW*W_STR}")
        A(f"v_permlane32_swap_b32 v{vL}, v{vB}")
        A(f"v_permlane32_swap_b32 v{L2}, v{vAl}")
        A(f"v_add_f32 v{vL}, v{vL}, v{vB}")
        A(f"v_add_f32 v{L2}, v{L2}, v{vAl}")
        A(f"v_add_u32 v{vA}, s{sT1}, v{vLin}")
        A(f"v_add_u32 v{vAl}, s{sT3}, v{vLin}")
        A(f"ds_write_b128 v{vA}, {vr(vO1,4)} offset:{L_O}")
        A(f"ds_write_b128 v{vA}, {vr(vO2,4)} offset:{L_O+U_STR}")
        A(f"ds_write_b128 v{vAl}, {vr(vAlt,4)} offset:{L_O}")
        A(f"ds_write_b128 v{vAl}, {vr(vAlt+4,4)} offset:{L_O+U_STR}")
        A(f"s_lshl_b32 s{sT1}, s{sW}, 3")
        A(f"s_lshl_b32 s{sT2}, s{sCur}, 7")
        A(f"s_add_u32 s{sT3}, s{sT1}, s{sT2}")
        A(f"s_sub_u32 s{sT1}, s{sT1}, s{sT2}")
        A(f"s_add_u32 s{sT1}, s{sT1}, 128")
        A(f"v_bfe_u32 v{vB}, v{vLane}, 2, 2")
        A(f"v_lshlrev_b32 v{vB}, 5, v{vB}")
        A(f"v_add_u32 v{vA}, s{sT1}, v{vB}")
        A(f"v_add_u32 v{vAl}, s{sT3}, v{vB}")
        A("s_mov_b64 exec, 0x1111")
        A(f"ds_write_b64 v{vA}, {vr(vM,2)} offset:{L_ML}")
        A(f"ds_write_b64 v{vAl}, {vr(vAlt+8,2)} offset:{L_ML}")
        A("s_mov_b64 exec, -1")
        if not self.wod:
            wo_loads()
        vG = slot(R - 2, 0)
        l = self.lab("nogate")
        A(f"s_lshl_b32 s{sT1}, s{sRed}, 3")
        A(f"s_or_b32 s{sT1}, s{sT1}, s{sW}")
        A(f"s_cmp_lg_u32 s{sT1}, 3")
        A(f"s_cbranch_scc1 {l}")
        A(f"s_lshl_b32 s{sT1}, s2, 7")
        A(f"s_and_b32 s{sT1}, s{sT1}, 1024")
        A(f"buffer_load_dwordx4 {vr(vG,4)}, v{vLin}, {srd(sX)}, s{sT1} offen")
        A(f"global_load_dwordx4 {vr(vG+4,4)}, v{vLin}, s[68:69]")
        A(f"{l}:")
        ml = RING
        od = RING + 8
        A(f"s_lshr_b32 s{sT1}, s{sW}, 1")
        A(f"s_and_b32 s{sT2}, s{sW}, 1")
        A(f"s_lshl_b32 s{sT3}, s{sT1}, 7")
        A(f"v_bfe_u32 v{vB}, v{vLane}, 3, 2")
        A(f"v_lshlrev_b32 v{vB}, 5, v{vB}")
        A(f"v_add_u32 v{vB}, s{sT3}, v{vB}")
        A(f"s_mul_i32 s{sT3}, s{sT1}, {NW*W_STR}")
        A(f"s_lshl_b32 s{sT0}, s{sT2}, 9")
        A(f"s_add_u32 s{sT3}, s{sT3}, s{sT0}")
        A(f"v_lshrrev_b32 v{vA}, 3, v{vLane}")
        A(f"v_lshlrev_b32 v{vA}, 6, v{vA}")
        A(f"v_and_b32 v{vAl}, 3, v{vLane}")
        A(f"v_lshl_add_u32 v{vA}, v{vAl}, 4, v{vA}")
        A(f"v_bfe_u32 v{vAl}, v{vLane}, 2, 1")
        A(f"v_mul_u32_u24 v{vAl}, {U_STR}, v{vAl}")
        A(f"v_add3_u32 v{vA}, v{vA}, v{vAl}, s{sT3}")
        A(f"s_lshl_b32 s{sIdx}, s{sT1}, 8")
        A(f"s_add_u32 s{sIdx}, s{sIdx}, s2")
        A(f"s_lshl_b32 s{sT3}, s{sIdx}, 11")
        A(f"s_lshl_b32 s{sT0}, s{sT2}, 10")
        A(f"s_add_u32 s{sT3}, s{sT3}, s{sT0}")
        A(f"s_add_u32 s{sT3}, s{sT3}, {WS_PO}")
        A(f"s_lshl_b32 s{sT0}, s{sIdx}, 7")
        A(f"s_add_u32 s{sT0}, s{sT0}, {WS_PML}")
        tb = DD
        A(f"v_and_b32 v{tb}, 0xff, v{vT}")
        A(f"v_bfe_u32 v{tb+1}, v{vT}, 8, 8")
        A(f"v_bfe_u32 v{tb+2}, v{vT}, 16, 8")
        A(f"v_lshrrev_b32 v{tb+3}, 24, v{vT}")
        Mx, Ls = DD + 4, DD + 5
        res = DD + 8
        A(f"v_mov_b32 v{DD+6}, v{vT}")
        A(f"v_mov_b32 v{DD+7}, v{vT}")
        A(f"v_lshlrev_b32 v{vx0}, 1, v{vLane}")
        A("s_waitcnt lgkmcnt(0)")
        A("s_barrier")
        self.TS(6)
        for i in range(2):
            A(f"ds_read_b128 {vr(ml+4*i,4)}, v{vB} offset:{L_ML+16*i}")
        for w in range(NW):
            A(f"ds_read_b128 {vr(od+4*w,4)}, v{vA} offset:{L_O+W_STR*w}")
        A("s_waitcnt lgkmcnt(4)")
        A(f"v_max3_f32 v{Mx}, v{ml}, v{ml+2}, v{ml+4}")
        A(f"v_max_f32 v{Mx}, v{Mx}, v{ml+6}")
        A(f"v_mul_f32 v{vAl}, s{sC}, v{Mx}")
        for w in range(NW):
            A(f"v_fma_f32 v{ml+2*w}, v{ml+2*w}, s{sC}, -v{vAl}")
        for w in range(NW):
            A(f"v_exp_f32 v{ml+2*w}, v{ml+2*w}")
        A("s_waitcnt lgkmcnt(0)")
        for i in range(4):
            A(f"v_mul_f32 v{res+i}, v{ml}, v{od+i}")
        for w in range(1, NW):
            for i in range(4):
                A(f"v_fmac_f32 v{res+i}, v{ml+2*w}, v{od+4*w+i}")
        for i in range(4):
            A(f"v_and_or_b32 v{res+i}, v{res+i}, s{sMaskHi}, v{tb+i}")
        A(f"buffer_store_dwordx4 {vr(res,4)}, v{vLin}, {srd(sWS)}, s{sT3} offen sc1")
        l = self.lab("noml")
        A(f"s_cmp_lg_u32 s{sT2}, 0")
        A(f"s_cbranch_scc1 {l}")
        A(f"v_mul_f32 v{Ls}, v{ml}, v{ml+1}")
        for w in range(1, NW):
            A(f"v_fmac_f32 v{Ls}, v{ml+2*w}, v{ml+2*w+1}")
        A("s_mov_b32 exec_lo, 0x01010101")
        A("s_mov_b32 exec_hi, 0x01010101")
        A(f"buffer_store_dwordx4 {vr(Mx,4)}, v{vx0}, {srd(sWS)}, s{sT0} offen sc1")
        A("s_mov_b64 exec, -1")
        A(f"{l}:")
        self.TS(7)

        def tagcheck(regs, extra):
            n = 0
            for r in regs:
                A(f"v_perm_b32 v{vD+n}, v{r+1}, v{r}, s{sSelx}")
                A(f"v_perm_b32 v{vD+n+1}, v{r+3}, v{r+2}, s{sSely}")
                A(f"v_or_b32 v{vD+n}, v{vD+n}, v{vD+n+1}")
                A(f"v_xor_b32 v{vD+n}, v{vD+n}, v{vT}")
                n += 1
            for r in extra:
                A(f"v_xor_b32 v{vD+n}, v{r}, v{vT}")
                n += 1
            for i in range(1, n):
                A(f"v_or_b32 v{vD}, v{vD}, v{vD+i}")
            A(f"v_cmp_ne_u32 vcc, 0, v{vD}")

        def poll(loads, check, delay, lane0=None):
            lp, lok = self.lab("poll"), self.lab("pok")
            if delay:
                A(f"s_sleep {delay}")
            if self.ts == 1 and lane0:
                A(f"s_mov_b32 s{sJ2}, {lane0}")
            A(f"{lp}:")
            if self.ts == 1 and lane0:
                A("s_memrealtime s[96:97]")
                A(f"s_min_u32 m0, s{sJ2}, {lane0+4}")
                A(f"s_add_u32 s{sJ2}, s{sJ2}, 1")
                A("s_waitcnt lgkmcnt(0)")
                A(f"v_writelane_b32 v{vTS}, s96, m0")
            loads()
            A("s_mov_b64 exec, -1")
            A(f"s_sub_u32 s{sSpin}, s{sSpin}, 1")
            A("s_cbranch_scc1 L_end")
            A("s_waitcnt vmcnt(0)")
            check()
            A(f"s_cbranch_vccz {lok}")
            A("s_mov_b64 exec, vcc")
            A(f"s_branch {lp}")
            A(f"{lok}:")

        def xreduce(regs, op, tmp):
            A("s_nop 1")
            for r in regs:
                A(f"{op}_dpp v{r}, v{r}, v{r} row_ror:8 {DPPM}")
            for sw in ("v_permlane16_swap_b32", "v_permlane32_swap_b32"):
                for i, r in enumerate(regs):
                    A(f"v_mov_b32 v{tmp+i}, v{r}")
                A("s_nop 1")
                for i, r in enumerate(regs):
                    A(f"{sw} v{r}, v{tmp+i}")
                for i, r in enumerate(regs):
                    A(f"{op} v{r}, v{r}, v{tmp+i}")

        A(f"s_cmp_eq_u32 s{sT2}, 0")
        A("s_cbranch_scc1 L_t3")
        oa, obb, mla, mlb = RING, RING + 4, RING + 8, RING + 12
        A(f"s_lshl_b32 s{sT1}, s{sT1}, 7")
        A(f"s_lshl_b32 s{sT2}, s{sB}, 8")
        A(f"s_add_u32 s{sT1}, s{sT1}, s{sT2}")
        A(f"s_lshl_b32 s{sT2}, s{sH}, 4")
        A(f"s_add_u32 s{sT1}, s{sT1}, s{sT2}")
        A(f"s_and_b32 s{sT2}, s{sS}, 3")
        A(f"s_lshl_b32 s{sT2}, s{sT2}, 9")
        A(f"s_lshr_b32 s{sT3}, s{sS}, 2")
        A(f"s_lshl_b32 s{sT0}, s{sT3}, 7")
        A(f"s_add_u32 s{sT2}, s{sT2}, s{sT0}")
        A(f"s_lshl_b32 s{sT0}, s{sT1}, 11")
        A(f"s_add_u32 s{sT2}, s{sT2}, s{sT0}")
        A(f"s_add_u32 s{sT2}, s{sT2}, {WS_PO}")
        A(f"s_add_u32 s{sIdx}, s{sT2}, 16384")
        A(f"s_lshl_b32 s{sT1}, s{sT1}, 7")
        A(f"s_lshl_b32 s{sT3}, s{sT3}, 4")
        A(f"s_add_u32 s{sT1}, s{sT1}, s{sT3}")
        A(f"s_add_u32 s{sT1}, s{sT1}, {WS_PML}")
        A(f"v_lshrrev_b32 v{vB}, 3, v{vLane}")
        A(f"v_lshlrev_b32 v{vA}, 11, v{vB}")
        A(f"v_and_b32 v{vAl}, 7, v{vLane}")
        A(f"v_lshl_add_u32 v{vA}, v{vAl}, 4, v{vA}")
        A(f"v_lshlrev_b32 v{vB}, 7, v{vB}")

        def h1loads():
            A(f"buffer_load_dwordx4 {vr(mla,4)}, v{vB}, {srd(sWS)}, s{sT1} offen sc1")
            A(f"buffer_load_dwordx4 {vr(mlb,4)}, v{vB}, {srd(sWS)}, s{sT1} offen offset:1024 sc1")
            A(f"buffer_load_dwordx4 {vr(oa,4)}, v{vA}, {srd(sWS)}, s{sT2} offen sc1")
            A(f"buffer_load_dwordx4 {vr(obb,4)}, v{vA}, {srd(sWS)}, s{sIdx} offen sc1")
        poll(h1loads, lambda: tagcheck([oa, obb], [mla + 2, mlb + 2]), self.d1, 51)
        self.TS(8)
        Mg = vD
        A(f"v_max_f32 v{Mg}, v{mla}, v{mlb}")
        xreduce([Mg], "v_max_f32", vD + 8)
        A(f"v_mul_f32 v{Mg}, s{sC}, v{Mg}")
        A(f"v_fma_f32 v{mla}, v{mla}, s{sC}, -v{Mg}")
        A(f"v_fma_f32 v{mlb}, v{mlb}, s{sC}, -v{Mg}")
        A(f"v_exp_f32 v{mla}, v{mla}")
        A(f"v_exp_f32 v{mlb}, v{mlb}")
        A(f"s_lshr_b32 s{sT1}, s{sW}, 1")
        A(f"v_mul_f32 v{vD+1}, v{mla}, v{mla+1}")
        A(f"v_fmac_f32 v{vD+1}, v{mlb}, v{mlb+1}")
        for i in range(4):
            A(f"v_mul_f32 v{vD+2+i}, v{mla}, v{oa+i}")
        for i in range(4):
            A(f"v_fmac_f32 v{vD+2+i}, v{mlb}, v{obb+i}")
        xreduce([vD + 1 + i for i in range(5)], "v_add_f32", vD + 8)
        A(f"v_rcp_f32 v{vD+1}, v{vD+1}")
        A(f"s_lshl_b32 s{sT1}, s{sT1}, 7")
        A(f"v_lshlrev_b32 v{vA}, 2, v{vAl}")
        A(f"v_add_u32 v{vA}, s{sT1}, v{vA}")
        for i in range(4):
            A(f"v_mul_f32 v{vD+2+i}, v{vD+2+i}, v{vD+1}")
        for i in range(4):
            A(f"v_cvt_pk_bf16_f32 v{vD+2+i}, v{vD+2+i}, v{vD+2+i}")
        A("s_mov_b64 exec, 0xff")
        for i in range(4):
            A(f"ds_write_b32 v{vA}, v{vD+2+i} offset:{L_OF+32*i}")
        A("s_mov_b64 exec, -1")

        A("L_t3:")
        mk = 52
        A(f"v_and_b32 v{vA}, 1, v{vLane}")
        A(f"v_lshlrev_b32 v{vA}, 4, v{vA}")
        A(f"v_mov_b32 v{vB}, 0xffff")
        A(f"v_lshlrev_b32 v{vB}, v{vA}, v{vB}")
        A(f"v_bfe_u32 v{vA}, v{vLane}, 1, 2")
        for j in range(4):
            A(f"v_cmp_eq_u32 vcc, {j}, v{vA}")
            A("s_nop 1")
            A(f"v_cndmask_b32 v{mk+j}, 0, v{vB}, vcc")
        A(f"v_bfe_u32 v{vA}, v{vLane}, 3, 1")
        A(f"v_lshlrev_b32 v{vA}, 7, v{vA}")
        A(f"v_lshrrev_b32 v{vB}, 4, v{vLane}")
        A(f"v_lshl_add_u32 v{vA}, v{vB}, 5, v{vA}")
        A(f"s_lshl_b32 s{sT3}, s{sW}, 10")
        A(f"s_lshl_b32 s{sT0}, s2, 12")
        A(f"s_add_u32 s{sT3}, s{sT3}, s{sT0}")
        A(f"s_add_u32 s{sT3}, s{sT3}, {WS_C}")
        A("s_waitcnt vmcnt(0) lgkmcnt(0)")
        A("s_barrier")
        ob = RING
        bo = slot(2, 0)
        A(f"ds_read_b128 {vr(ob,4)}, v{vA} offset:{L_OF}")
        A(f"ds_read_b128 {vr(ob+4,4)}, v{vA} offset:{L_OF+16}")
        for i in range(8):
            if i == 0:
                A("s_waitcnt lgkmcnt(1)")
            if i == 4:
                A("s_waitcnt lgkmcnt(0)")
            for j in range(4):
                A(f"v_and_b32 v{bo+4*i+j}, v{ob+i}, v{mk+j}")
            if i > 0:
                c = "0" if i == 1 else vr(res, 4)
                A(f"v_mfma_f32_16x16x32_bf16 {vr(res,4)}, {vr(vWO+4*(i-1),4)}, {vr(bo+4*(i-1),4)}, {c}")
        A("s_nop 0")
        A(f"v_mfma_f32_16x16x32_bf16 {vr(res,4)}, {vr(vWO+28,4)}, {vr(bo+28,4)}, {vr(res,4)}")
        A("s_nop 7")
        for i in range(4):
            A(f"v_and_or_b32 v{res+i}, v{res+i}, s{sMaskHi}, v{tb+i}")
        A(f"buffer_store_dwordx4 {vr(res,4)}, v{vLin}, {srd(sWS)}, s{sT3} offen sc1")
        self.TS(9)

        LC = self.LC
        lg = LC.bit_length() - 1
        if self.ts:
            la = self.lab("ack")
            A(f"s_cmp_eq_u32 s{sRed}, 0")
            A(f"s_cbranch_scc1 {la}")
            A("s_waitcnt vmcnt(0)")
            self.TS(61)
            A(f"{la}:")
        A(f"s_cmp_lg_u32 s{sRed}, 0")
        A("s_cbranch_scc1 L_fin")
        ca = RING
        A(f"s_lshr_b32 s{sT1}, s2, 3")
        A(f"s_lshl_b32 s{sT2}, s{sT1}, 7")
        A(f"s_lshl_b32 s{sT3}, s{sW}, 18")
        A(f"s_add_u32 s{sT2}, s{sT2}, s{sT3}")
        A(f"s_and_b32 s{sIdx}, s2, {8-LC}")
        A(f"s_lshl_b32 s{sT3}, s{sIdx}, 4")
        A(f"s_add_u32 s{sT2}, s{sT2}, s{sT3}")
        A(f"s_add_u32 s{sT2}, s{sT2}, {WS_C}")
        A(f"v_lshrrev_b32 v{vA}, {lg}, v{vLane}")
        A(f"v_lshlrev_b32 v{vA}, 12, v{vA}")
        A(f"v_and_b32 v{vB}, {LC-1}, v{vLane}")
        A(f"v_lshl_add_u32 v{vA}, v{vB}, 4, v{vA}")
        for k in range(LC):
            A(f"s_add_u32 s{12+k}, s{sT2}, {k*(64//LC)*4096}")
        l = self.lab("nog2")
        A(f"s_cmp_lg_u32 s{sW}, 3")
        A(f"s_cbranch_scc1 {l}")
        g0 = slot(4, 0)
        for j in range(4):
            A(f"v_lshlrev_b32 v{g0+4*j}, 16, v{vG+j}")
            A(f"v_and_b32 v{g0+4*j+1}, 0xffff0000, v{vG+j}")
            A(f"v_lshlrev_b32 v{g0+4*j+2}, 16, v{vG+4+j}")
            A(f"v_and_b32 v{g0+4*j+3}, 0xffff0000, v{vG+4+j}")
        for j in range(4):
            A(f"v_mul_f32 v{g0+4*j}, v{g0+4*j}, v{g0+4*j+2}")
            A(f"v_mul_f32 v{g0+4*j+1}, v{g0+4*j+1}, v{g0+4*j+3}")
        for j in range(4):
            A(f"v_cvt_pk_bf16_f32 v{g0+4*j}, v{g0+4*j}, v{g0+4*j+1}")
        for j in range(4):
            A(f"v_and_b32 v{g0+4*j+1}, 0xffff0000, v{g0+4*j}")
            A(f"v_lshlrev_b32 v{g0+4*j}, 16, v{g0+4*j}")
        for j in range(4):
            A(f"v_add_f32 v{g0+4*j}, v{g0+4*j}, v{g0+4*j+1}")
        A(f"v_add_f32 v{g0}, v{g0}, v{g0+4}")
        A(f"v_add_f32 v{g0+8}, v{g0+8}, v{g0+12}")
        A(f"v_add_f32 v{g0}, v{g0}, v{g0+8}")
        for ror in (1, 2, 4):
            A("s_nop 1")
            A(f"v_add_f32_dpp v{g0}, v{g0}, v{g0} row_ror:{ror} {DPPM}")
        xreduce([g0], "v_add_f32", g0 + 1)
        A(f"v_cvt_pk_bf16_f32 v{g0}, v{g0}, v{g0}")
        A(f"v_and_b32 v{g0}, 0xffff0000, v{g0}")
        A(f"v_mul_f32 v{g0}, {f2u(-1.4426950408889634):#x}, v{g0}")
        A(f"v_exp_f32 v{g0}, v{g0}")
        A("s_nop 0")
        A(f"v_add_f32 v{g0}, 1.0, v{g0}")
        A(f"v_rcp_f32 v{g0}, v{g0}")
        A("s_nop 0")
        A(f"v_cvt_pk_bf16_f32 v{g0}, v{g0}, v{g0}")
        A(f"v_and_b32 v{g0}, 0xffff0000, v{g0}")
        A(f"v_mov_b32 v{g0+1}, {L_G}")
        A("s_mov_b64 exec, 1")
        A(f"ds_write_b32 v{g0+1}, v{g0}")
        A("s_mov_b64 exec, -1")
        A(f"{l}:")

        def h2loads():
            for k in range(LC):
                A(f"buffer_load_dwordx4 {vr(ca+4*k,4)}, v{vA}, {srd(sWS)}, s{12+k} offen sc1")
        poll(h2loads, lambda: tagcheck([ca + 4 * k for k in range(LC)], []), self.d2, 56)
        self.TS(10)
        st = 2 * LC
        while st >= 4:
            for i in range(st):
                A(f"v_add_f32 v{ca+i}, v{ca+i}, v{ca+st+i}")
            st //= 2
        A("s_nop 1")
        A(f"v_permlane32_swap_b32 v{ca}, v{ca+2}")
        A(f"v_permlane32_swap_b32 v{ca+1}, v{ca+3}")
        A(f"v_add_f32 v{ca}, v{ca}, v{ca+2}")
        A(f"v_add_f32 v{ca+1}, v{ca+1}, v{ca+3}")
        A("s_nop 1")
        A(f"v_permlane16_swap_b32 v{ca}, v{ca+1}")
        A(f"v_add_f32 v{ca}, v{ca}, v{ca+1}")
        A(f"v_lshrrev_b32 v{vA}, 4, v{vLane}")
        A(f"v_lshlrev_b32 v{vA}, 5, v{vA}")
        A(f"v_add_f32_dpp v{ca}, v{ca}, v{ca} row_ror:8 {DPPM}")
        A(f"v_lshl_add_u32 v{vA}, v{vB}, 2, v{vA}")
        A(f"s_lshl_b32 s{sT2}, s{sW}, 7")
        ror = 4
        while ror >= LC:
            A(f"v_add_f32_dpp v{ca}, v{ca}, v{ca} row_ror:{ror} {DPPM}")
            A("s_nop 1")
            ror //= 2
        A(f"v_add_u32 v{vA}, s{sT2}, v{vA}")
        m16 = (1 << LC) - 1
        A(f"s_mov_b32 exec_lo, {m16 | (m16 << 16):#x}")
        A(f"s_mov_b32 exec_hi, {m16 | (m16 << 16):#x}")
        A(f"ds_write_b32 v{vA}, v{ca} offset:{L_R}")
        A("s_mov_b64 exec, -1")
        A(f"v_and_b32 v{vB}, 31, v{vLane}")
        A(f"v_lshlrev_b32 v{vA}, 2, v{vB}")
        A(f"v_add_u32 v{vAl}, {L_R}, v{vA}")
        A(f"v_mov_b32 v{vD}, {L_G}")
        A(f"s_lshr_b32 s{sT2}, s{sT1}, 1")
        A(f"s_lshl_b32 s{sT2}, s{sT2}, 6")
        A(f"s_and_b32 s{sT3}, s{sT1}, 1")
        A(f"s_lshl_b32 s{sT3}, s{sT3}, 10")
        A(f"s_add_u32 s{sT2}, s{sT2}, s{sT3}")
        A(f"s_lshl_b32 s{sT3}, s{sIdx}, 1")
        A(f"s_add_u32 s{sT2}, s{sT2}, s{sT3}")
        A(f"v_lshlrev_b32 v{vA}, 1, v{vB}")
        A("s_waitcnt lgkmcnt(0)")
        A("s_barrier")
        A(f"s_cmp_lg_u32 s{sW}, 0")
        A("s_cbranch_scc1 L_fin")
        fa = RING
        for w in range(2):
            A(f"ds_read2_b32 {vr(fa+2*w,2)}, v{vAl} offset0:{w*32} offset1:{w*32+64}")
        A(f"ds_read_b32 v{vD}, v{vD}")
        A("s_waitcnt lgkmcnt(0)")
        A(f"v_add_f32 v{fa}, v{fa}, v{fa+2}")
        A(f"v_add_f32 v{fa+1}, v{fa+1}, v{fa+3}")
        A(f"v_sub_f32 v{vD+1}, 1.0, v{vD}")
        A(f"v_cvt_pk_bf16_f32 v{fa}, v{fa}, v{fa+1}")
        A(f"v_cvt_pk_bf16_f32 v{vD+1}, v{vD+1}, v{vD+1}")
        A(f"v_and_b32 v{fa+1}, 0xffff0000, v{fa}")
        A(f"v_lshlrev_b32 v{fa}, 16, v{fa}")
        A(f"v_and_b32 v{vD+1}, 0xffff0000, v{vD+1}")
        A(f"v_mul_f32 v{fa}, v{fa}, v{vD}")
        A(f"v_mul_f32 v{fa+1}, v{fa+1}, v{vD+1}")
        A(f"v_cvt_pk_bf16_f32 v{fa}, v{fa}, v{fa+1}")
        A(f"v_and_b32 v{fa+1}, 0xffff0000, v{fa}")
        A(f"v_lshlrev_b32 v{fa}, 16, v{fa}")
        A(f"v_add_f32 v{fa}, v{fa}, v{fa+1}")
        A(f"v_cvt_pk_bf16_f32 v{fa}, v{fa}, v{fa}")
        A("s_mov_b32 exec_hi, 0")
        A(f"s_mov_b32 exec_lo, {m16 * 0x01010101:#x}")
        A(f"buffer_store_short v{fa}, v{vA}, {srd(sOUT)}, s{sT2} offen")
        A("s_cmp_lg_u32 s2, 0")
        A("s_cbranch_scc1 L_fin")
        A("s_mov_b64 exec, 1")
        A(f"v_mov_b32 v{vA}, {WS_EPOCH}")
        A(f"buffer_store_dword v{vT}, v{vA}, {srd(sWS)}, 0 offen sc1")
        A("L_fin:")
        if self.ts:
            A("s_mov_b64 exec, -1")
            self.TS(11)
            A(f"v_writelane_b32 v{vTS}, s{sJ}, 12")
            A("s_getreg_b32 s96, hwreg(HW_REG_XCC_ID)")
            A("s_nop 0")
            A(f"v_writelane_b32 v{vTS}, s96, 13")
            A(f"s_sub_u32 s96, {self.spin}, s{sSpin}")
            A(f"v_writelane_b32 v{vTS}, s96, 14")
            A(f"s_lshl_b32 s{sT1}, s2, 2")
            A(f"s_add_u32 s{sT1}, s{sT1}, s{sW}")
            A(f"s_lshl_b32 s{sT1}, s{sT1}, 8")
            A(f"s_add_u32 s{sT1}, s{sT1}, {WS_TS}")
            A(f"v_lshlrev_b32 v{vA}, 2, v{vLane}")
            A(f"buffer_store_dword v{vTS}, v{vA}, {srd(sWS)}, s{sT1} offen")
        A("L_end:")
        A("s_endpgm")
        body_txt = "\n".join(self.L)
        out = HDR + f"; @launch grid=(256,1,1) block=({64*NW},1,1) lds={LDS_BYTES}\n"
        out += '.amdgcn_target "amdgcn-amd-amdhsa--gfx950"\n.text\n'
        out += f".globl {name}\n.p2align 8\n.type {name},@function\n" + body_txt + "\n"
        out += f""".section .rodata,"a"
.p2align 6
.amdhsa_kernel {name}
  .amdhsa_next_free_vgpr 264
  .amdhsa_next_free_sgpr 102
  .amdhsa_accum_offset 256
  .amdhsa_group_segment_fixed_size 0
  .amdhsa_kernarg_size 112
  .amdhsa_user_sgpr_count 2
  .amdhsa_user_sgpr_kernarg_segment_ptr 1
  .amdhsa_system_sgpr_workgroup_id_x 1
.end_amdhsa_kernel
"""
        return out


if __name__ == "__main__":
    out = sys.argv[1]
    kw = {}
    for a in sys.argv[2:]:
        k, v = a.split("=")
        assert k in DEFAULTS, k
        kw[k] = type(DEFAULTS[k])(v.replace("+", " "))
    open(out, "w").write(Gen(**kw).gen())
    print("lds", LDS_BYTES)
```

```python
import sys, struct

NAME = "gated_mix__sliding_block_cached__gqa_block_cached__decode_kernel"

HDR = """; Kernarg layout for this problem (112 bytes, ptrs only, base s[0:1]):
"""

def f2u(x):
    return struct.unpack("<I", struct.pack("<f", x))[0]

WS_EPOCH = 0
WS_PLAN = 4096
WS_Q = 0x10000
WS_PML = 0x20000
WS_PO = 0x40000
WS_C = 0x140000
WS_TS = 0x300000
WS_SIZE = 0x400000

NW = 4
U_STR = 1024 + 64
W_STR = 2 * U_STR
L_O = 0
L_ML = 2 * NW * W_STR
L_Q = L_ML + 256
L_OF = L_Q + 1024
L_R = L_OF + 256
L_G = L_R + 512
L_C = L_G + 16
L_TK = L_C + 4
L_PL = L_C + 8
LDS_BYTES = L_C + 48

DEFAULTS = dict(D=5, DF=8, DQ=8, R=5, NS=28, dyn=0, P1=26, F0=0, fm=0, KF=12, TAU=110, TOFF=800, d1=0, d2=0, ts=0, dbgts=0, echo=-1,
                kvpol="nt", wqpol="nt", wopol="nt", pf2=1, smap=0, dmap=0, tkm=0, echob=0, echog=1, N2=0, N3=0, fake=0, J0=4, J1=20, kvf=0, touch=0, LC=8, pp="sc1", sp="sc1", pw=0, BIAS=0, SCL=1.0, dpat="", st=0, wl=0, wlpol="", rs=0, qx=0, qn=8, ex=0, wqf=0, CA0=20, CAS=7, rot=0, rota=13, rotb=5)

class Gen:
    def __init__(self, **kw):
        self.o = dict(DEFAULTS)
        self.o.update(kw)
        for k, v in self.o.items():
            setattr(self, k, v)
        if not self.dyn:
            self.NS = 32
        if self.dbgts or self.echo >= 0:
            self.ts = self.ts or 1
        self.L = []
        self.name = NAME
        self.spin = 1 << 20
        self.uid = 0
        self.tailcode = []

    def A(self, s):
        for line in s.split("\n"):
            line = line.strip()
            self.L.append(line if line.endswith(":") else "    " + line)

    def lab(self, base):
        self.uid += 1
        return f"L{base}_{self.uid}"

    def TS(self, k):
        if not self.ts:
            return
        A = self.A
        A("s_memrealtime s[96:97]")
        A("s_waitcnt lgkmcnt(0)")
        A(f"v_writelane_b32 v69, s96, {k}")

    def gen(self):
        A = self.A
        D, DF, DQ, R, NS, P1, F0 = self.D, self.DF, self.DQ, self.R, self.NS, self.P1, self.F0
        name = self.name
        DPPM = "row_mask:0xf bank_mask:0xf"
        NA = 16 // NW
        sKA, sVA, sKB, sVB, sWQ, sWO, sWS, sX, sOUT = 8, 12, 16, 20, 24, 28, 32, 36, 40
        sW, sBH, sS, sB, sH = 44, 45, 46, 47, 76
        sC, sJ, sStat, sOff, sTk, sT, sSpin = 77, 78, 80, 81, 82, 83, 84
        sT0, sT1, sT2, sT3 = 85, 86, 87, 88
        sSelx, sSely, sMaskHi = 89, 90, 91
        sIdx, sAoff = 3, 65
        sPC = 52
        sRet2, sStart = 48, 50
        sRet = 4
        sPool, sCnt, sTkN = 3, 98, 58
        sJ2 = 79
        sSvc, sState, sTa, sCa = 59, 58, 98, 60
        sBase, sNT, sPlanned, sSched, sNow = 61, 62, 63, 98, 66
        sOff1 = 79
        sBias = 48
        vPl = 70
        vTkA, vTkV = 64, 65
        sDrain, sRed = 6, 7
        vKoff, vLin, vLane = 1, 2, 3
        vQ, vQB, DD = 4, 8, 12
        vM, vL, vMC, vmX, vmY, vA, vB, vAl = 28, 29, 30, 31, 32, 33, 34, 35
        vS, vt, vpd, vXY = 36, 40, 44, 48
        vO1, vO2 = 56, 60
        vT, vTS, vx0, vx1 = 68, 69, 70, 71
        RING = 72
        vAlt = 232
        sKc, sVc = 8, 12
        sKAb, sVAb = 92, 94
        sCA, sTypes, sCur = 80, 56, 57
        sRot, sFt = 64, 82
        NV = RING + 32 * R
        vD = 36

        def srd(s):
            return f"s[{s}:{s+3}]"

        def vr(r, n):
            return f"v[{r}:{r+n-1}]"

        def slot(p, kv, b):
            return RING + (p * 8 + 4 * kv + b) * 4

        def kvload(p, kv, b, sK, sV):
            A(f"buffer_load_dwordx4 {vr(slot(p,kv,b),4)}, v{(vKoff, vLin)[kv]}, {srd((sK, sV)[kv])}, s{sOff} offen offset:{b*1024} {self.kvpol}")

        SVC = bool(self.dyn or self.fm == 3)
        NTS = NW * NS
        PU = 64 * (32 - NS)
        DYNBASE = 64 * NS * 4096
        J0, J1 = self.J0, self.J1

        self.L.append(f"{name}:")
        A("s_cmp_ge_u32 s2, 256")
        A("s_cbranch_scc1 L_end")
        A("s_load_dwordx16 s[48:63], s[0:1], 0")
        A("s_load_dwordx8 s[64:71], s[0:1], 64")
        A("s_load_dwordx4 s[72:75], s[0:1], 96")
        if self.ts:
            A(f"v_mov_b32 v{vTS}, 0")
            A("s_memrealtime s[96:97]")
        A(f"v_lshrrev_b32 v{vA}, 6, v0")
        A(f"v_and_b32 v{vLane}, 63, v0")
        A(f"s_lshr_b32 s{sBH}, s2, 4")
        A(f"v_readfirstlane_b32 s{sW}, v{vA}")
        A(f"s_and_b32 s{sS}, s2, 15")
        A(f"s_lshr_b32 s{sB}, s{sBH}, 3")
        A(f"s_and_b32 s{sH}, s{sBH}, 7")
        A(f"v_lshrrev_b32 v{vA}, 2, v{vLane}")
        A(f"v_lshlrev_b32 v{vB}, 16, v{vA}")
        A(f"v_and_b32 v{vAl}, 3, v{vLane}")
        A(f"v_lshl_add_u32 v{vB}, v{vAl}, 4, v{vB}")
        A(f"v_lshlrev_b32 v{vA}, 4, v{vA}")
        A(f"s_and_b32 s{sT0}, s{sS}, 7")
        A(f"s_lshl_b32 s{sT0}, s{sT0}, 7")
        A(f"s_lshr_b32 s{sT1}, s{sS}, 3")
        A(f"s_lshl_b32 s{sT1}, s{sT1}, 6")
        A(f"s_add_u32 s{sT0}, s{sT0}, s{sT1}")
        A(f"s_lshl_b32 s{sT1}, s{sH}, 10")
        A(f"s_add_u32 s{sT1}, s{sT1}, s{sT0}")
        A(f"s_lshl_b32 s{sT2}, s{sW}, 20")
        A(f"s_add_u32 s{sT1}, s{sT1}, s{sT2}")
        A(f"s_lshl_b32 s{sT2}, s{sW}, 8")
        A(f"v_lshlrev_b32 v{vLin}, 4, v{vLane}")
        A(f"v_mov_b32 v{vx0}, {L_C}")
        A(f"v_mov_b32 v{vM}, 0")
        A(f"v_mov_b32 v{vM+1}, {R*NW}")
        A(f"v_mov_b32 v{vM+2}, -1")
        A(f"v_mov_b32 v{vM+3}, -1")
        A(f"ds_write_b128 v{vx0}, {vr(vM,4)}")
        A(f"s_cmp_eq_u32 s{sB}, 0")
        A("s_waitcnt lgkmcnt(0)")
        if self.ts:
            A(f"v_writelane_b32 v{vTS}, s96, 0")
            self.TS(63)
        A(f"s_cselect_b32 s{sWQ}, s54, s64")
        A(f"s_cselect_b32 s{sWQ+1}, s55, s65")
        A(f"s_cselect_b32 s{sWO}, s56, s66")
        A(f"s_cselect_b32 s{sWO+1}, s57, s67")
        A(f"s_mov_b32 s{sWQ+2}, 0x400000")
        A(f"s_mov_b32 s{sWQ+3}, 0x20000")
        A(f"s_mov_b32 s{sX}, s48")
        A(f"s_mov_b32 s{sX+1}, s49")
        A(f"s_mov_b32 s{sX+2}, 2048")
        A(f"s_mov_b32 s{sX+3}, 0x20000")
        A(f"s_mov_b32 s{sWS}, s74")
        A(f"s_mov_b32 s{sWS+1}, s75")
        A(f"s_mov_b32 s{sWS+2}, {WS_SIZE}")
        A(f"s_mov_b32 s{sWS+3}, 0x20000")
        vXd, vWd = DD, slot(R - 1, 0, 0)
        def wq_loads():
            if self.wqf:
                A(f"s_and_b32 s{sT1}, s2, 127")
                A(f"s_lshl_b32 s{sT1}, s{sT1}, 15")
                A(f"s_lshl_b32 s{sOff}, s{sW}, 13")
                A(f"s_add_u32 s{sT1}, s{sT1}, s{sOff}")
                A(f"buffer_load_dwordx4 {vr(vXd,4)}, v{vA}, {srd(sX)}, s{sT2} offen")
                A(f"buffer_load_dwordx4 {vr(vXd+4,4)}, v{vA}, {srd(sX)}, s{sT2} offen offset:1024")
                for i in range(8):
                    if self.wqf == 2:
                        A(f"s_mov_b32 s{sT1}, 0x7000000")
                    A(f"buffer_load_dwordx4 {vr(vWd+4*i,4)}, v{vLin}, {srd(sWQ)}, s{sT1} offen {self.wqpol}")
                    A(f"s_add_u32 s{sT1}, s{sT1}, 1024")
                return
            A(f"buffer_load_dwordx4 {vr(vXd,4)}, v{vA}, {srd(sX)}, s{sT2} offen")
            A(f"buffer_load_dwordx4 {vr(vXd+4,4)}, v{vA}, {srd(sX)}, s{sT2} offen offset:1024")
            for i in range(8):
                A(f"buffer_load_dwordx4 {vr(vWd+4*i,4)}, v{vB}, {srd(sWQ)}, s{sT1} offen {self.wqpol}")
                if i < 7:
                    A(f"s_add_u32 s{sT1}, s{sT1}, 8192")
        def prewarm():
            z = vXY
            for i in range(4):
                A(f"v_mov_b32 v{z+i}, 0")
            A(f"s_lshr_b32 s{sT3}, s{sW}, 1")
            A(f"s_lshl_b32 s{sT3}, s{sT3}, 8")
            A(f"s_add_u32 s{sIdx}, s{sT3}, s2")
            A(f"s_lshl_b32 s{sT3}, s{sIdx}, 11")
            A(f"s_and_b32 s{sOff}, s{sW}, 1")
            A(f"s_lshl_b32 s{sOff}, s{sOff}, 10")
            A(f"s_add_u32 s{sT3}, s{sT3}, s{sOff}")
            A(f"s_add_u32 s{sT3}, s{sT3}, {WS_PO}")
            op = "buffer_store_dwordx4" if self.pw & 1 else "buffer_load_dwordx4"
            pol = "sc1" if self.pw & 1 else ""
            A(f"{op} {vr(z,4)}, v{vLin}, {srd(sWS)}, s{sT3} offen {pol}")
            A(f"s_lshl_b32 s{sT3}, s{sW}, 10")
            A(f"s_lshl_b32 s{sOff}, s2, 12")
            A(f"s_add_u32 s{sT3}, s{sT3}, s{sOff}")
            A(f"s_add_u32 s{sT3}, s{sT3}, {WS_C}")
            A(f"{op} {vr(z,4)}, v{vLin}, {srd(sWS)}, s{sT3} offen {pol}")
            A(f"s_lshl_b32 s{sOff}, s{sIdx}, 7")
            A(f"s_add_u32 s{sOff}, s{sOff}, {WS_PML}")
            A("s_mov_b64 exec, 0xff")
            A(f"{op} {vr(z,4)}, v{vLin}, {srd(sWS)}, s{sOff} offen {pol}")
            A("s_mov_b64 exec, -1")
        if self.pw in (1, 2):
            prewarm()
        if not self.kvf:
            wq_loads()
        if self.pw in (3, 4):
            prewarm()
            F0x = 3
        else:
            F0x = 0
        A(f"s_load_dword s{sT}, s[74:75], {WS_EPOCH}")
        A(f"s_lshl_b32 s{sT3}, s{sBH}, 23")
        for (d, src) in ((sKB, 60), (sVB, 62), (sKAb, 50), (sVAb, 52)):
            A(f"s_add_u32 s{d}, s{src}, s{sT3}")
            A(f"s_addc_u32 s{d+1}, s{src+1}, 0")
        for d in (sKB, sVB, sKc, sVc):
            A(f"s_mov_b32 s{d+2}, 0x800000")
            A(f"s_mov_b32 s{d+3}, 0x20000")
        A(f"v_lshrrev_b32 v{vKoff}, 4, v{vLane}")
        A(f"v_lshlrev_b32 v{vKoff}, 6, v{vKoff}")
        A(f"v_lshl_add_u32 v{vKoff}, v{vAl}, 4, v{vKoff}")
        A(f"v_bfe_u32 v{vx1}, v{vLane}, 2, 2")
        A(f"v_lshl_add_u32 v{vKoff}, v{vx1}, 8, v{vKoff}")
        A(f"s_mul_i32 s{sBase}, s{sS}, {NTS*4096}")
        if self.rot:
            A(f"s_mul_i32 s{sRot}, s2, {self.rota}")
            A(f"s_lshr_b32 s{sOff}, s2, {self.rotb}")
            A(f"s_add_u32 s{sRot}, s{sRot}, s{sOff}")
            A(f"s_and_b32 s{sRot}, s{sRot}, 31")
            A(f"s_lshl_b32 s{sRot}, s{sRot}, 2")
            A(f"s_add_u32 s{sFt}, s{sRot}, s{sW}")
            A(f"s_lshl_b32 s{sOff}, s{sFt}, 12")
            A(f"s_add_u32 s{sOff}, s{sOff}, s{sBase}")
        else:
            A(f"s_lshl_b32 s{sOff}, s{sW}, 12")
            A(f"s_add_u32 s{sOff}, s{sOff}, s{sBase}")

        fill = [(t, kv, b) for t in range(R) for kv in range(2) for b in range(4)]
        self.fill_pos = 0

        def issue_fill(paced):
            t, kv, b = fill[self.fill_pos]
            if paced:
                extra = self.qx if P1 <= self.fill_pos < P1 + self.qn else 0
                A(f"s_waitcnt vmcnt({DQ-1+extra})")
            if kv == 0 and b == 0 and t > 0:
                if self.rot:
                    A(f"s_add_u32 s{sFt}, s{sFt}, {NW}")
                    A(f"s_and_b32 s{sFt}, s{sFt}, 127")
                    A(f"s_lshl_b32 s{sOff}, s{sFt}, 12")
                    A(f"s_add_u32 s{sOff}, s{sOff}, s{sBase}")
                else:
                    A(f"s_add_u32 s{sOff}, s{sOff}, {NW*4096}")
            kvload(t, kv, b, sKB, sVB)
            self.fill_pos += 1
            if self.ts == 2 and self.fill_pos % 2 == 0:
                self.TS(40 + self.fill_pos // 2)

        for _ in range(self.kvf):
            issue_fill(False)
        if self.kvf:
            wq_loads()
            if self.ts:
                A("s_waitcnt vmcnt(%d)" % (10 + self.kvf - 1))
                self.TS(62)
        if self.st:
            dst = 100
            if self.st & 1:
                A(f"s_load_dword s{dst}, s[{sKB}:{sKB+1}], s{sBase}")
                A(f"s_load_dword s{dst}, s[{sVB}:{sVB+1}], s{sBase}")
                A(f"s_add_u32 s{sIdx}, s{sBase}, {NTS*4096-4096}")
                A(f"s_load_dword s{dst}, s[{sKB}:{sKB+1}], s{sIdx}")
                A(f"s_load_dword s{dst}, s[{sVB}:{sVB+1}], s{sIdx}")
            if self.st & 2:
                A(f"s_lshl_b32 s{sT3}, s{sH}, 19")
                A(f"s_load_dword s{dst}, s[{sWO}:{sWO+1}], s{sT3}")
                A(f"s_mov_b32 s{sT3}, {WS_C + 0xff000}")
                A(f"s_load_dword s{dst}, s[74:75], s{sT3}")
                A(f"s_load_dword s{dst}, s[70:71], 0")
                A(f"s_load_dword s{dst}, s[68:69], 0")
            if self.st & 4:
                A(f"s_load_dword s{dst}, s[{sKA}:{sKA+1}], 0")
                A(f"s_load_dword s{dst}, s[{sVA}:{sVA+1}], 0")
        NT_ = 0
        if self.touch:
            A(f"s_mov_b32 s{sWO+2}, 0x400000")
            A(f"s_mov_b32 s{sWO+3}, 0x20000")
            A(f"s_mov_b32 s{sOUT}, s70")
            A(f"s_mov_b32 s{sOUT+1}, s71")
            A(f"s_mov_b32 s{sOUT+2}, 2048")
            A(f"s_mov_b32 s{sOUT+3}, 0x20000")
            A(f"v_mov_b32 v{vx1}, 0")
            A(f"s_lshl_b32 s{sT3}, s{sH}, 19")
            A(f"s_lshl_b32 s{sIdx}, s{sS}, 15")
            A(f"s_add_u32 s{sT3}, s{sT3}, s{sIdx}")
            A(f"s_add_u32 s{sIdx}, s{sBase}, {NTS*4096-4096}")
            A(f"s_mov_b32 s{sOff}, {WS_C + 0xff000}")
            A("s_mov_b64 exec, 1")
            tl = []
            if self.touch & 1:
                tl += [(sKA, 0), (sVA, 0), (sKB, f"s{sBase}"), (sVB, f"s{sBase}")]
            if self.touch & 2:
                tl += [(sKB, f"s{sIdx}"), (sVB, f"s{sIdx}")]
            if self.touch & 4:
                tl += [(sWO, f"s{sT3}"), (sWS, 0), (sWS, f"s{sOff}"), (sOUT, 0)]
            for (sr, so) in tl:
                A(f"buffer_load_dword v{slot(R-2,1,3)}, v{vx1}, {srd(sr)}, {so} offen nt")
            if self.touch & 4:
                A(f"global_load_dword v{slot(R-2,1,3)}, v{vx1}, s[68:69]")
            NT_ = len(tl) + (1 if self.touch & 4 else 0)
            A("s_mov_b64 exec, -1")
        for _ in range(F0):
            issue_fill(False)
        F0 += NT_ + F0x
        if self.fm == 2:
            A(f"s_memrealtime s[{sStart}:{sStart+1}]")
        A(f"s_getpc_b64 s[{sPC}:{sPC+1}]")
        A("L_pc:")
        A(f"s_mov_b32 s{sPC+2}, L_end-L_pc")
        A(f"s_mov_b32 s{sPC+3}, 0x20000")

        def code_prefetch():
            l = self.lab("nopf")
            A(f"s_cmp_lg_u32 s{sW}, {NW-1}")
            A(f"s_cbranch_scc1 {l}")
            A(f"v_lshlrev_b32 v{vx1}, 7, v{vLane}")
            A(f"s_movk_i32 s{sT1}, 0x2000")
            A(f"buffer_load_dword v66, v{vx1}, {srd(sPC)}, 0 offen")
            A(f"buffer_load_dword v67, v{vx1}, {srd(sPC)}, s{sT1} offen")
            A(f"{l}:")
        A(f"s_mov_b32 s{sC}, {f2u(128 ** -0.5 * 1.4426950408889634):#x}")
        A(f"s_mov_b32 s{sWO+2}, 0x400000")
        A(f"s_mov_b32 s{sWO+3}, 0x20000")
        A(f"s_mov_b32 s{sOUT}, s70")
        A(f"s_mov_b32 s{sOUT+1}, s71")
        A(f"s_mov_b32 s{sOUT+2}, 2048")
        A(f"s_mov_b32 s{sOUT+3}, 0x20000")
        A(f"s_mov_b32 s{sSelx}, 0x0c0c0400")
        A(f"s_mov_b32 s{sSely}, 0x04000c0c")
        A(f"s_mov_b32 s{sMaskHi}, 0xffffff00")
        A(f"s_mov_b32 s{sJ}, 0")
        A(f"s_mov_b32 s{sSpin}, {self.spin}")
        A(f"s_lshr_b32 s{sRed}, s2, 3")
        A(f"s_xor_b32 s{sRed}, s{sRed}, s2")
        A(f"s_and_b32 s{sRed}, s{sRed}, {self.LC-1}")
        A(f"v_and_b32 v{vA}, 1, v{vLane}")
        A(f"v_lshlrev_b32 v{vA}, 4, v{vA}")
        A(f"v_mov_b32 v{vmX}, 0xffff")
        A(f"v_lshlrev_b32 v{vmX}, v{vA}, v{vmX}")
        A(f"v_and_b32 v{vA}, 2, v{vLane}")
        A(f"v_cmp_eq_u32 vcc, 0, v{vA}")
        A(f"v_mov_b32 v{vM}, 0xff7fffff")
        A(f"v_mov_b32 v{vL}, 0")
        A(f"v_cndmask_b32 v{vmY}, v{vmX}, 0, vcc")
        A(f"v_cndmask_b32 v{vmX}, 0, v{vmX}, vcc")
        A(f"v_mov_b32 v{vMC}, 0xff7fffff")
        A(f"v_lshrrev_b32 v{vA}, 5, v{vLane}")
        A(f"v_lshlrev_b32 v{vA}, 7, v{vA}")
        A(f"v_lshl_add_u32 v{vA}, v{vAl}, 5, v{vA}")
        A(f"v_and_b32 v{vB}, 16, v{vLane}")
        A(f"s_lshl_b32 s{sT1}, s{sW}, 8")
        A(f"v_add3_u32 v{vA}, v{vA}, v{vB}, s{sT1}")
        A("s_waitcnt lgkmcnt(0)")
        A("s_barrier")
        A(f"s_mul_i32 s{sT}, s{sT}, 0x9e3779b1")
        A(f"s_add_u32 s{sT}, s{sT}, 0x7f4a7c15")
        A(f"s_or_b32 s{sT}, s{sT}, 1")
        A(f"v_mov_b32 v{vT}, s{sT}")
        A(f"s_waitcnt vmcnt({F0+7})")
        self.TS(1)
        acc = 52
        xs = 36
        tw = 20
        for b in range(2):
            for j in range(4):
                A(f"v_lshlrev_b32 v{xs+b*8+2*j}, 16, v{vXd+4*b+j}")
                A(f"v_and_b32 v{xs+b*8+2*j+1}, 0xffff0000, v{vXd+4*b+j}")
        for i in range(8):
            if i > 0:
                A(f"s_waitcnt vmcnt({F0+7})")
            issue_fill(False)
            for j in range(4):
                w = vWd + 4 * i + j
                lo, hi = tw + (j & 1) * 2, tw + (j & 1) * 2 + 1
                A(f"v_lshlrev_b32 v{lo}, 16, v{w}")
                A(f"v_and_b32 v{hi}, 0xffff0000, v{w}")
                for b in range(2):
                    op = "v_mul_f32" if i == 0 else "v_fmac_f32"
                    A(f"{op} v{acc+8*b+2*j}, v{lo}, v{xs+8*b+i}")
                    A(f"{op} v{acc+8*b+2*j+1}, v{hi}, v{xs+8*b+i}")
        A("s_nop 1")
        for i in range(8):
            A(f"v_permlane32_swap_b32 v{acc+i}, v{acc+i+8}")
        for i in range(8):
            A(f"v_add_f32 v{acc+i}, v{acc+i}, v{acc+i+8}")
        if self.ex >= 1:
            issue_fill(False)
        A("s_nop 1")
        for i in range(4):
            A(f"v_permlane16_swap_b32 v{acc+i}, v{acc+i+4}")
        for i in range(4):
            A(f"v_add_f32 v{acc+i}, v{acc+i}, v{acc+i+4}")
        A("s_nop 1")
        for i in range(4):
            A(f"v_add_f32_dpp v{acc+i}, v{acc+i}, v{acc+i} row_ror:8 {DPPM}")
        A("s_nop 1")
        for i in range(4):
            A(f"v_add_f32_dpp v{acc+i}, v{acc+i}, v{acc+i} row_ror:4 {DPPM}")
        A("s_mov_b32 exec_lo, 0x000f000f")
        A("s_mov_b32 exec_hi, 0x000f000f")
        A(f"ds_write_b128 v{vA}, {vr(acc,4)} offset:{L_Q}")
        A("s_mov_b64 exec, 1")
        A(f"v_mov_b32 v{vA}, {L_C}")
        A(f"v_mov_b32 v{vB}, 1")
        A("s_waitcnt lgkmcnt(0)")
        A(f"ds_add_rtn_u32 v{vB}, v{vA}, v{vB}")
        A("s_mov_b64 exec, -1")
        if self.ex >= 2:
            issue_fill(False)
        code_prefetch()
        A("s_waitcnt lgkmcnt(0)")
        if self.ex >= 3:
            issue_fill(False)
        A(f"v_readfirstlane_b32 s{sT1}, v{vB}")
        l = self.lab("nosvc")
        A(f"v_lshlrev_b32 v{vA}, 2, v{vLane}")
        A("s_nop 2")
        A(f"s_cmp_lg_u32 s{sT1}, {NW-1}")
        A(f"s_cbranch_scc1 {l}")
        for w in range(NW):
            A(f"ds_read_b32 v{acc+w}, v{vA} offset:{L_Q+w*256}")
        A(f"s_lshl_b32 s{sT1}, s{sB}, 4")
        A(f"s_add_u32 s{sT1}, s{sT1}, s{sH}")
        A(f"s_lshl_b32 s{sT1}, s{sT1}, 11")
        A(f"s_lshl_b32 s{sT2}, s{sT0}, 1")
        A(f"s_add_u32 s{sT1}, s{sT1}, s{sT2}")
        A(f"s_add_u32 s{sT1}, s{sT1}, {WS_Q}")
        A(f"v_lshrrev_b32 v{vB}, 5, v{vLane}")
        A(f"v_lshlrev_b32 v{vB}, 14, v{vB}")
        A(f"v_and_b32 v{vA}, 31, v{vLane}")
        A(f"v_lshl_add_u32 v{vB}, v{vA}, 2, v{vB}")
        A("s_waitcnt lgkmcnt(0)")
        A(f"v_add_f32 v{acc}, v{acc}, v{acc+1}")
        A(f"v_add_f32 v{acc+2}, v{acc+2}, v{acc+3}")
        A(f"v_add_f32 v{acc}, v{acc}, v{acc+2}")
        A(f"v_mov_b32 v{acc+9}, v{vT}")
        A(f"v_mov_b32 v{acc+11}, v{vT}")
        A(f"v_mov_b32_dpp v{acc+1}, v{acc} quad_perm:[1,1,3,3] {DPPM}")
        A("s_nop 0")
        A(f"v_cvt_pk_bf16_f32 v{acc+8}, v{acc}, v{acc+1}")
        A("s_nop 1")
        A(f"v_mov_b32_dpp v{acc+10}, v{acc+8} quad_perm:[2,2,2,2] {DPPM}")
        A("s_mov_b32 exec_lo, 0x11111111")
        A("s_mov_b32 exec_hi, 0x11111111")
        A(f"buffer_store_dwordx4 {vr(acc+8,4)}, v{vB}, {srd(sWS)}, s{sT1} offen sc1")
        A("s_mov_b64 exec, -1")
        self.TS(2)
        A(f"{l}:")
        vQg = DD
        A(f"v_lshlrev_b32 v{vA}, 1, v{vKoff}")
        A(f"s_lshl_b32 s{sT1}, s{sBH}, 11")
        A(f"s_add_u32 s{sT1}, s{sT1}, {WS_Q}")
        A(f"s_add_u32 s{sT2}, s{sT1}, 32768")

        def q_loads():
            A(f"buffer_load_dwordx4 {vr(vQg,4)}, v{vA}, {srd(sWS)}, s{sT1} offen sc1")
            A(f"buffer_load_dwordx4 {vr(vQg+4,4)}, v{vA}, {srd(sWS)}, s{sT1} offen offset:16 sc1")
            A(f"buffer_load_dwordx4 {vr(vQg+8,4)}, v{vA}, {srd(sWS)}, s{sT2} offen sc1")
            A(f"buffer_load_dwordx4 {vr(vQg+12,4)}, v{vA}, {srd(sWS)}, s{sT2} offen offset:16 sc1")

        assert 8 * R - P1 - (self.qn if self.qx else 0) >= 1 and 8 * R - P1 >= DQ
        first = True
        while self.fill_pos < 8 * R:
            if self.fill_pos == P1:
                q_loads()
            issue_fill(True)
            if first:
                for i in range(8):
                    A(f"v_mov_b32 v{vO1+i}, 0")
                    A(f"v_mov_b32 v{vAlt+i}, 0")
                A(f"v_mov_b32 v{vAlt+8}, 0xff7fffff")
                A(f"v_mov_b32 v{vAlt+9}, 0")
                A(f"v_mov_b32 v{vAlt+10}, 0xff7fffff")
                A(f"s_mul_i32 s{sCA}, s{sS}, {self.CAS}")
                A(f"s_add_u32 s{sCA}, s{sCA}, {self.CA0}")
                A(f"s_lshl_b32 s{sAoff}, s{sS}, 16")
                A(f"s_add_u32 s{sAoff}, s{sAoff}, {(32768-4096)*256}")
                A(f"s_mov_b32 s{sTypes}, 0")
                A(f"s_mov_b32 s{sCur}, 0")
                first = False
        self.TS(3)
        lchk, lok = self.lab("qchk"), self.lab("qok")
        A(f"{lchk}:")
        A(f"v_xor_b32 v{vAl}, v{vQg+1}, v{vT}")
        for i in range(1, 8):
            A(f"v_xor_b32 v{vB}, v{vQg+2*i+1}, v{vT}")
            A(f"v_or_b32 v{vAl}, v{vAl}, v{vB}")
        A(f"v_cmp_ne_u32 vcc, 0, v{vAl}")
        A(f"s_cbranch_vccz {lok}")
        A(f"s_sub_u32 s{sSpin}, s{sSpin}, 1")
        A("s_cbranch_scc1 L_end")
        q_loads()
        A("s_waitcnt vmcnt(0)")
        A(f"s_branch {lchk}")
        A(f"{lok}:")
        for i in range(4):
            A(f"v_mov_b32 v{vAlt+12+i}, v{vQg+2*i}")
        for i in range(4):
            A(f"v_mov_b32 v{vQ+i}, v{vQg+8+2*i}")
        self.TS(4)

        stubs = []
        if self.tkm:
            A("s_mov_b32 s59, 0\ns_mov_b32 s79, 0\ns_mov_b32 s57, 0")

        def tile_ts():
            if self.ts:
                lt = self.lab("nts")
                A("s_memrealtime s[96:97]")
                A(f"s_min_u32 s{sT1}, s{sJ}, {34 if self.ts == 1 else 20}")
                A(f"s_add_u32 m0, s{sT1}, 16")
                A("s_waitcnt lgkmcnt(0)")
                A(f"v_writelane_b32 v{vTS}, s96, m0")
                A(f"{lt}:")
                if self.tkm:
                    A("s_memrealtime s[100:101]")
                    A("s_waitcnt lgkmcnt(0)")
                    A("s_sub_u32 s100, s100, s96")
                    A(f"s_cmp_lt_u32 s{sJ}, {JS}")
                    A("s_cselect_b32 s96, 0, s100")
                    A("s_cselect_b32 s97, s100, 0")
                    A("s_cselect_b32 s100, 0, 1")
                    A("s_add_u32 s59, s59, s96")
                    A("s_add_u32 s79, s79, s97")
                    A("s_add_u32 s57, s57, s100")

        def claim():
            A(f"v_mov_b32 v{vTkV}, 1")
            A("s_mov_b64 exec, 1")
            A(f"ds_add_rtn_u32 v{vTkV}, v{vTkA}, v{vTkV}")
            A("s_mov_b64 exec, -1")
            if self.fm == 3:
                A(f"ds_read_b64 {vr(vPl,2)}, v{vTkA} offset:{L_PL-L_TK}")
            if self.fm >= 2:
                A(f"s_memrealtime s[{sNow}:{sNow+1}]")

        def body(p, pace):
            def IP(kv, b):
                if pace is None:
                    if kv == 0 and b == 0:
                        A("s_nop 0")
                    return
                A(f"s_waitcnt vmcnt({PACE(kv,b)-1})")
                kvload(p, kv, b, sKc, sVc)
            def PACE(kv, b):
                if self.dpat and pace == D:
                    return int(self.dpat[kv*4+b])
                return pace
            for b in range(4):
                A(f"v_mfma_f32_16x16x32_bf16 {vr(DD+4*b,4)}, {vr(slot(p,0,b),4)}, {vr(vQ,4)}, 0")
            IP(0, 0)
            A("s_nop 3")
            for b in range(4):
                d = DD + 4 * b
                A(f"v_mov_b32_dpp v{vS+b}, v{d} quad_perm:[0,0,0,0] {DPPM}")
                for q in range(1, 4):
                    A(f"v_add_f32_dpp v{vS+b}, v{d+q}, v{vS+b} quad_perm:[{q},{q},{q},{q}] {DPPM}")
                if b == 1:
                    IP(0, 1)
            A(f"v_max3_f32 v{vA}, v{vS}, v{vS+1}, v{vS+2}")
            A(f"v_max_f32 v{vA}, v{vA}, v{vS+3}")
            lr, lb = self.lab("rs"), self.lab("rsb")
            A(f"v_cmp_gt_f32 vcc, v{vA}, v{vM}")
            A(f"s_cbranch_vccnz {lr}")
            A(f"{lb}:")
            stubs.append((lr, lb))
            IP(0, 2)
            for b in range(4):
                A(f"v_fma_f32 v{vt+b}, v{vS+b}, s{sC}, -v{vMC}")
            for b in range(4):
                A(f"v_exp_f32 v{vt+b}, v{vt+b}")
            for b in range(4):
                A(f"v_cvt_pk_bf16_f32 v{vpd+b}, v{vt+b}, v{vt+b}")
            IP(0, 3)
            for b in range(4):
                A(f"v_and_b32 v{vXY+2*b}, v{vpd+b}, v{vmX}")
                A(f"v_and_b32 v{vXY+2*b+1}, v{vpd+b}, v{vmY}")
            A(f"v_add_f32 v{vA}, v{vt}, v{vt+1}")
            A(f"v_add_f32 v{vB}, v{vt+2}, v{vt+3}")
            for b in range(4):
                r = slot(p, 1, b)
                A(f"v_mfma_f32_16x16x16_bf16 {vr(vO1,4)}, {vr(r,2)}, {vr(vXY+2*b,2)}, {vr(vO1,4)}")
                A(f"v_mfma_f32_16x16x16_bf16 {vr(vO2,4)}, {vr(r+2,2)}, {vr(vXY+2*b,2)}, {vr(vO2,4)}")
                if b == 0:
                    A(f"v_add_f32 v{vL}, v{vL}, v{vA}")
                if b == 1:
                    A(f"v_add_f32 v{vL}, v{vL}, v{vB}")
                if b == 3 and pace is not None:
                    A(f"s_waitcnt vmcnt({PACE(1,3)-1})")
                    claim()
                    kvload(p, 1, 3, sKc, sVc)
                else:
                    IP(1, b)

        A(f"v_mov_b32 v{vTkA}, {L_TK}")
        A(f"s_mov_b32 s{sState}, 0")
        A(f"s_mov_b32 s{sJ2}, 0")
        A(f"s_mov_b32 s{sNT}, {NTS+16}")
        A(f"s_mov_b32 s{sPlanned}, {0 if self.dyn else 1}")
        claim()
        A(f"s_cmp_eq_u32 s{sW}, 0")
        A(f"s_cselect_b32 s{sSvc}, {J0 if SVC else 0x7fffffff}, 0x7fffffff")
        if self.fm == 2:
            A(f"s_add_u32 s{sSched}, s{sStart}, {self.TOFF}")
        A(".p2align 6")
        for (ln, other, pace) in (("a", "b", D), ("b", "a", DF)):
            if ln == "b" and not self.fm:
                break
            A(f"L_loop{ln}:")
            for p in range(R):
                tile_ts()
                A("s_waitcnt lgkmcnt(0)")
                A(f"v_readfirstlane_b32 s{sTk}, v{vTkV}")
                if self.fm == 3:
                    A(f"v_readfirstlane_b32 s{sSched}, v{vPl}")
                    A(f"v_readfirstlane_b32 s{sSched+1}, v{vPl+1}")
                if SVC:
                    A(f"s_cmp_ge_u32 s{sJ}, s{sSvc}")
                    A(f"s_cbranch_scc1 L_svc{ln}{p}")
                    A(f"L_svcret{ln}{p}:")
                else:
                    A("s_nop 1")
                A(f"s_cmp_ge_u32 s{sTk}, s{sNT}")
                A(f"s_cbranch_scc1 L_odd{p}")
                if ln == "a":
                    A(f"L_got{p}:")
                A(f"s_bfe_u32 s{sT1}, s{sTypes}, {(1<<16)|p}")
                A(f"s_cmp_lg_u32 s{sT1}, s{sCur}")
                A(f"s_cbranch_scc1 L_sw{ln}{p}")
                A(f"L_swr{ln}{p}:")
                A(f"s_sub_u32 s{sT1}, s{sTk}, s{sCA}")
                A(f"s_cselect_b32 s{sT2}, 0, 16")
                A(f"s_sub_u32 s{sT2}, s{sTk}, s{sT2}")
                if self.rot:
                    A(f"s_add_u32 s{sT2}, s{sT2}, s{sRot}")
                    A(f"s_and_b32 s{sT2}, s{sT2}, 127")
                A(f"s_lshl_b32 s{sT2}, s{sT2}, 12")
                A(f"s_add_u32 s{sT2}, s{sT2}, s{sBase}")
                A(f"s_lshl_b32 s{sOff}, s{sT1}, 12")
                A(f"s_add_u32 s{sOff}, s{sOff}, s{sAoff}")
                A(f"s_bitset0_b32 s{sTypes}, {p}")
                A(f"s_cmp_lt_u32 s{sT1}, 16")
                A(f"s_cselect_b32 s{sOff}, s{sOff}, s{sT2}")
                A(f"s_cselect_b64 s[{sKc}:{sKc+1}], s[{sKAb}:{sKAb+1}], s[{sKB}:{sKB+1}]")
                A(f"s_cselect_b64 s[{sVc}:{sVc+1}], s[{sVAb}:{sVAb+1}], s[{sVB}:{sVB+1}]")
                A(f"s_cselect_b32 s{sT1}, {1<<p}, 0")
                A(f"s_or_b32 s{sTypes}, s{sTypes}, s{sT1}")
                if self.fm == 1 and ln == "a":
                    A(f"s_add_u32 s{sT1}, s{sTk}, {self.KF}")
                    A(f"s_cmp_ge_u32 s{sT1}, s{sNT}")
                    A(f"s_cbranch_scc1 L_in{other}{p}")
                elif self.fm == 3:
                    A(f"s_mul_i32 s{sT1}, s{sTk}, s{sSched+1}")
                    A(f"s_lshr_b32 s{sT1}, s{sT1}, 8")
                    A(f"s_add_u32 s{sT1}, s{sT1}, s{sSched}")
                    A(f"s_sub_u32 s{sT1}, s{sNow}, s{sT1}")
                    A(f"s_cmp_eq_u32 s{sSched+1}, -1")
                    A(f"s_cselect_b32 s{sT1}, 0, s{sT1}")
                    A(f"s_cmp_gt_i32 s{sT1}, 0")
                    if self.ts:
                        A(f"s_addc_u32 s{sJ2}, s{sJ2}, 0")
                        A(f"s_cmp_gt_i32 s{sT1}, 0")
                    A(f"s_cbranch_scc{1 if ln == 'a' else 0} L_in{other}{p}")
                elif self.fm == 2:
                    A(f"s_mul_i32 s{sT1}, s{sTk}, {self.TAU}")
                    A(f"s_lshr_b32 s{sT1}, s{sT1}, 2")
                    A(f"s_add_u32 s{sT1}, s{sT1}, s{sSched}")
                    A(f"s_sub_u32 s{sT1}, s{sNow}, s{sT1}")
                    A(f"s_cmp_gt_i32 s{sT1}, 0")
                    A(f"s_cbranch_scc{1 if ln == 'a' else 0} L_in{other}{p}")
                A(f"L_in{ln}{p}:")
                body(p, pace)
                A(f"s_add_u32 s{sJ}, s{sJ}, 1")
            A(f"s_branch L_loop{ln}")
            for p in range(R):
                A(f"L_sw{ln}{p}:")
                A(f"s_call_b64 s[{sRet}:{sRet+1}], L_swap")
                A(f"s_branch L_swr{ln}{p}")
            if SVC:
                for p in range(R):
                    A(f"L_svc{ln}{p}:")
                    A(f"s_call_b64 s[{sRet}:{sRet+1}], L_service")
                    A(f"s_branch L_svcret{ln}{p}")
        for p in range(R):
            A(f"L_odd{p}:")
            A(f"s_cmp_lg_u32 s{sPlanned}, 0")
            A(f"s_cbranch_scc1 L_fdrain{p}")
            if self.dyn:
                A(f"s_call_b64 s[{sRet2}:{sRet2+1}], L_getplan")
                A(f"s_cmp_ge_u32 s{sTk}, s{sNT}")
                A(f"s_cbranch_scc1 L_fdrain{p}")
                A(f"s_branch L_got{p}")
        if self.dyn:
            lg = self.lab("gp")
            A("L_getplan:")
            A(f"s_sub_u32 s{sSpin}, s{sSpin}, 1")
            A("s_cbranch_scc1 L_end")
            A(f"s_cmp_eq_u32 s{sSvc}, 0x7fffffff")
            A(f"s_cbranch_scc1 {lg}")
            A(f"s_call_b64 s[{sRet}:{sRet+1}], L_service")
            A("s_waitcnt vmcnt(0)")
            A("s_branch L_getplan")
            A(f"{lg}:")
            A(f"ds_read_b64 {vr(DD,2)}, v{vTkA} offset:{L_PL-L_TK}")
            A("s_waitcnt lgkmcnt(0)")
            A(f"v_readfirstlane_b32 s{sNT}, v{DD}")
            A(f"v_readfirstlane_b32 s{sBase}, v{DD+1}")
            A("s_nop 3")
            A(f"s_cmp_eq_u32 s{sNT}, -1")
            A("s_cbranch_scc1 L_getplan")
            A(f"s_mov_b32 s{sPlanned}, 1")
            A(f"s_setpc_b64 s[{sRet2}:{sRet2+1}]")
        rec = vQB
        t0r, t1r, t2r, t3r, t4r = DD, DD + 1, DD + 2, DD + 3, DD + 4
        st1, lret, lchk, lld, leq = [self.lab("sv") for _ in range(5)]
        if SVC:
            assert J0 >= NA
            A("L_service:")
            A(f"s_cmp_eq_u32 s{sState}, 1")
            A(f"s_cbranch_scc1 {st1}")
            A(f"s_cmp_eq_u32 s{sState}, 2")
            A(f"s_cbranch_scc1 {lld}")
            A(f"s_cmp_eq_u32 s{sState}, 3")
            A(f"s_cbranch_scc1 {lchk}")
            A(f"s_memrealtime s[{sTa}:{sTa+1}]")
            A(f"s_mov_b32 s{sCa}, s{sTk}")
            A(f"s_mov_b32 s{sState}, 1")
            A(f"s_mov_b32 s{sSvc}, {J1}")
            A("s_waitcnt lgkmcnt(0)")
            A(f"s_setpc_b64 s[{sRet}:{sRet+1}]")
            A(f"{st1}:")
            A("s_memrealtime s[100:101]")
            A(f"s_lshl_b32 s{sT1}, s2, 4")
            A(f"s_add_u32 s{sT1}, s{sT1}, {WS_PLAN}")
            A(f"s_sub_u32 s{sCa}, s{sTk}, s{sCa}")
            A(f"s_lshl_b32 s{sT2}, s{sTk}, 16")
            A(f"s_or_b32 s{sCa}, s{sCa}, s{sT2}")
            A(f"v_mov_b32 v{rec+2}, s{sCa}")
            A(f"v_mov_b32 v{rec+3}, v{vT}")
            A(f"v_mov_b32 v{t0r}, 0")
            A(f"s_mov_b32 s{sState}, 2")
            A(f"s_add_u32 s{sSvc}, s{sJ}, 2")
            A("s_waitcnt lgkmcnt(0)")
            A(f"s_sub_u32 s{sTa}, s100, s{sTa}")
            A(f"v_mov_b32 v{rec}, s100")
            A(f"v_mov_b32 v{rec+1}, s{sTa}")
            A("s_mov_b64 exec, 1")
            A(f"buffer_store_dwordx4 {vr(rec,4)}, v{t0r}, {srd(sWS)}, s{sT1} offen sc1")
            A("s_mov_b64 exec, -1")
            A(f"s_setpc_b64 s[{sRet}:{sRet+1}]")
            A(f"{lld}:")
            A(f"s_lshl_b32 s{sT1}, s{sBH}, 8")
            A(f"s_add_u32 s{sT1}, s{sT1}, {WS_PLAN}")
            A(f"v_and_b32 v{t0r}, 15, v{vLane}")
            A(f"v_lshlrev_b32 v{t0r}, 4, v{t0r}")
            A(f"buffer_load_dwordx4 {vr(rec,4)}, v{t0r}, {srd(sWS)}, s{sT1} offen sc1")
            A(f"s_mov_b32 s{sState}, 3")
            A(f"s_add_u32 s{sSvc}, s{sJ}, 1")
            A(f"s_setpc_b64 s[{sRet}:{sRet+1}]")
            A(f"{lchk}:")
            A("s_waitcnt vmcnt(8)")
            A(f"v_cmp_ne_u32 vcc, v{rec+3}, v{vT}")
            A(f"s_cbranch_vccnz {lld}")
            A(f"v_readlane_b32 s{sT1}, v{rec}, 0")
            A(f"v_cvt_f32_u32 v{t1r}, v{rec+1}")
            A(f"v_and_b32 v{t2r}, 0xffff, v{rec+2}")
            A(f"v_lshrrev_b32 v{t4r}, 16, v{rec+2}")
            A(f"v_subrev_u32 v{t0r}, s{sT1}, v{rec}")
            A(f"v_rcp_f32 v{t1r}, v{t1r}")
            A(f"v_cvt_f32_u32 v{t2r}, v{t2r}")
            A(f"v_cvt_f32_i32 v{t0r}, v{t0r}")
            A(f"v_cvt_f32_u32 v{t4r}, v{t4r}")
            A(f"v_mul_f32 v{t1r}, v{t2r}, v{t1r}")
            A(f"v_sub_f32 v{t4r}, {f2u(float(NTS)):#x}, v{t4r}")
            A(f"v_fma_f32 v{t3r}, v{t0r}, v{t1r}, v{t4r}")
            A(f"v_mov_b32 v{t2r}, v{t1r}")
            for ror in (1, 2, 4, 8):
                A("s_nop 1")
                A(f"v_add_f32_dpp v{t2r}, v{t2r}, v{t2r} row_ror:{ror} {DPPM}")
                A(f"v_add_f32_dpp v{t3r}, v{t3r}, v{t3r} row_ror:{ror} {DPPM}")
            A(f"v_rcp_f32 v{t2r}, v{t2r}")
            A(f"v_add_f32 v{t3r}, {f2u(float(PU)):#x}, v{t3r}")
            A(f"v_mul_f32 v{t3r}, v{t3r}, v{t2r}")
            A("s_nop 0")
            A(f"v_readlane_b32 s{sT1}, v{t3r}, 0")
            A("s_nop 1")
            A(f"v_sub_f32 v{t0r}, s{sT1}, v{t0r}")
            if self.fm == 3:
                A(f"v_max_f32 v{t4r}, 1.0, v{t4r}")
                A(f"v_rcp_f32 v{t4r}, v{t4r}")
                A(f"v_add_f32 v{t0r}, {f2u(-float(self.BIAS)):#x}, v{t0r}")
                A(f"v_mul_f32 v{t0r}, {f2u(256.0*self.SCL):#x}, v{t0r}")
                A(f"v_mul_f32 v{t0r}, v{t0r}, v{t4r}")
                A(f"v_cvt_u32_f32 v{t0r}, v{t0r}")
                A(f"v_min_u32 v{t0r}, 0xffffff, v{t0r}")
                A(f"v_lshrrev_b32 v{t1r}, 16, v{rec+2}")
                A(f"v_mul_lo_u32 v{t1r}, v{t1r}, v{t0r}")
                A(f"v_lshrrev_b32 v{t1r}, 8, v{t1r}")
                A(f"v_sub_u32 v{t1r}, v{rec}, v{t1r}")
                A("s_nop 0")
                A(f"v_readlane_b32 s{sT1}, v{t1r}, s{sS}")
                A(f"v_readlane_b32 s{sT2}, v{t0r}, s{sS}")
                A("s_nop 3")
                if self.ts:
                    A(f"v_writelane_b32 v{vTS}, s{sT2}, 15")
                A(f"v_mov_b32 v{t0r}, s{sT1}")
                A(f"v_mov_b32 v{t1r}, s{sT2}")
                A(f"ds_write_b64 v{vTkA}, {vr(t0r,2)} offset:{L_PL-L_TK}")
                A(f"s_mov_b32 s{sSvc}, 0x7fffffff")
                A(f"s_setpc_b64 s[{sRet}:{sRet+1}]")
            A(f"v_fma_f32 v{t0r}, v{t0r}, v{t1r}, -v{t4r}")
            A(f"v_max_f32 v{t0r}, {f2u(2.0**-10):#x}, v{t0r}")
            A(f"v_mov_b32 v{t2r}, v{t0r}")
            for ror in (1, 2, 4, 8):
                A("s_nop 1")
                A(f"v_add_f32_dpp v{t2r}, v{t2r}, v{t2r} row_ror:{ror} {DPPM}")
            A(f"v_rcp_f32 v{t2r}, v{t2r}")
            A("s_nop 0")
            A(f"v_mul_f32 v{t2r}, {f2u(PU*(1-2.0**-14)):#x}, v{t2r}")
            A("s_nop 0")
            A(f"v_readlane_b32 s{sT1}, v{t2r}, 0")
            A("s_nop 1")
            A(f"v_mul_f32 v{t0r}, s{sT1}, v{t0r}")
            A(f"v_cvt_u32_f32 v{t0r}, v{t0r}")
            A(f"v_min_u32 v{t0r}, {PU}, v{t0r}")
            A(f"v_mov_b32 v{t2r}, v{t0r}")
            for ror in (1, 2, 4, 8):
                A("s_nop 1")
                A(f"v_add_u32_dpp v{t2r}, v{t2r}, v{t2r} row_ror:{ror} {DPPM}")
            A(f"v_sub_u32 v{t2r}, {PU}, v{t2r}")
            A(f"v_and_b32 v{t1r}, 15, v{vLane}")
            A(f"v_cmp_lt_u32 vcc, 16, v{t2r}")
            A(f"s_cbranch_vccz {leq}")
            A(f"v_mov_b32 v{t0r}, {PU//16}")
            A(f"v_mov_b32 v{t2r}, 0")
            A(f"{leq}:")
            A(f"v_cmp_lt_u32 vcc, v{t1r}, v{t2r}")
            A("s_nop 1")
            A(f"v_addc_co_u32 v{t0r}, vcc, 0, v{t0r}, vcc")
            A(f"v_mov_b32 v{t2r}, v{t0r}")
            for sh in (1, 2, 4, 8):
                A("s_nop 1")
                A(f"v_add_u32_dpp v{t2r}, v{t2r}, v{t2r} row_shr:{sh} {DPPM} bound_ctrl:0")
            A("s_nop 0")
            A(f"v_readlane_b32 s{sT1}, v{t2r}, s{sS}")
            A(f"v_readlane_b32 s{sT2}, v{t0r}, s{sS}")
            A("s_nop 3")
            if self.ts:
                A(f"v_writelane_b32 v{vTS}, s{sT2}, 15")
            A(f"s_sub_u32 s{sT1}, s{sT1}, s{sT2}")
            A(f"s_lshl_b32 s{sT1}, s{sT1}, 12")
            A(f"s_add_u32 s{sT1}, s{sT1}, {DYNBASE - NTS*4096}")
            A(f"s_add_u32 s{sT2}, s{sT2}, {NTS}")
            A(f"v_mov_b32 v{t0r}, s{sT2}")
            A(f"v_mov_b32 v{t1r}, s{sT1}")
            A(f"ds_write_b64 v{vTkA}, {vr(t0r,2)} offset:{L_PL-L_TK}")
            A(f"s_mov_b32 s{sSvc}, 0x7fffffff")
            A(f"s_setpc_b64 s[{sRet}:{sRet+1}]")

        per = 8
        assert (R - 1) * per >= max(D, DF, DQ)
        for p in range(R):
            A(f"L_fdrain{p}:")
            A(f"s_mov_b32 s{sDrain}, {R-1}")
            if self.wl:
                A(f"s_call_b64 s[{sRet}:{sRet+1}], L_warm")
            A(f"s_branch L_dgo{p}")
        if self.wl:
            A("L_warm:")
            A(f"s_lshr_b32 s{sT3}, s{sW}, 1")
            A(f"s_lshl_b32 s{sT3}, s{sT3}, 8")
            A(f"s_add_u32 s{sIdx}, s{sT3}, s2")
            A(f"s_lshl_b32 s{sT3}, s{sIdx}, 11")
            A(f"s_and_b32 s{sOff}, s{sW}, 1")
            A(f"s_lshl_b32 s{sOff}, s{sOff}, 10")
            A(f"s_add_u32 s{sT3}, s{sT3}, s{sOff}")
            A(f"s_add_u32 s{sT3}, s{sT3}, {WS_PO}")
            A(f"v_lshlrev_b32 v{vA}, 7, v{vLane}")
            A("s_mov_b64 exec, 0xff")
            if self.wl & 1:
                A(f"buffer_load_dword v66, v{vA}, {srd(sWS)}, s{sT3} offen {self.wlpol}")
            A(f"s_lshl_b32 s{sT3}, s{sW}, 10")
            A(f"s_lshl_b32 s{sOff}, s2, 12")
            A(f"s_add_u32 s{sT3}, s{sT3}, s{sOff}")
            A(f"s_add_u32 s{sT3}, s{sT3}, {WS_C}")
            if self.wl & 2:
                A(f"buffer_load_dword v66, v{vA}, {srd(sWS)}, s{sT3} offen {self.wlpol}")
            A(f"s_lshl_b32 s{sOff}, s{sIdx}, 7")
            A(f"s_add_u32 s{sOff}, s{sOff}, {WS_PML}")
            A("s_mov_b64 exec, 1")
            if self.wl & 1:
                A(f"buffer_load_dword v66, v{vA}, {srd(sWS)}, s{sOff} offen {self.wlpol}")
            A("s_mov_b64 exec, -1")
            A(f"s_setpc_b64 s[{sRet}:{sRet+1}]")
        A("L_dloop:")
        for p in range(R):
            tile_ts()
            A(f"s_sub_u32 s{sDrain}, s{sDrain}, 1")
            A("s_cbranch_scc1 L_exit")
            labs = [self.lab("dw") for _ in range(R)]
            for r in range(R - 2, 0, -1):
                A(f"s_cmp_eq_u32 s{sDrain}, {r}")
                A(f"s_cbranch_scc1 {labs[r]}")
            A("s_waitcnt vmcnt(0)")
            for r in range(1, R - 1):
                A(f"{labs[r]}:")
                A(f"s_waitcnt vmcnt({min(63, per*r)})")
            A(f"L_dgo{p}:")
            lsk = self.lab("nsw")
            A(f"s_bfe_u32 s{sT1}, s{sTypes}, {(1<<16)|p}")
            A(f"s_cmp_eq_u32 s{sT1}, s{sCur}")
            A(f"s_cbranch_scc1 {lsk}")
            A(f"s_call_b64 s[{sRet}:{sRet+1}], L_swap")
            A(f"{lsk}:")
            body(p, None)
            A(f"s_add_u32 s{sJ}, s{sJ}, 1")
        A("s_branch L_dloop")

        for lr, lb in stubs:
            A(f"{lr}:")
            A(f"s_call_b64 s[{sRet}:{sRet+1}], L_resc")
            A(f"s_branch {lb}")

        A("L_resc:")
        A(f"v_max_f32 v{vA}, v{vA}, v{vM}")
        A(f"v_mov_b32 v{vB}, v{vA}")
        A("s_nop 1")
        A(f"v_permlane16_swap_b32 v{vA}, v{vB}")
        A(f"v_max_f32 v{vA}, v{vA}, v{vB}")
        A(f"v_mov_b32 v{vB}, v{vA}")
        A("s_nop 1")
        A(f"v_permlane32_swap_b32 v{vA}, v{vB}")
        A(f"v_max_f32 v{vM}, v{vA}, v{vB}")
        A(f"v_mul_f32 v{vA}, s{sC}, v{vM}")
        A(f"v_sub_f32 v{vAl}, v{vMC}, v{vA}")
        A(f"v_exp_f32 v{vAl}, v{vAl}")
        A(f"v_mov_b32 v{vMC}, v{vA}")
        for i in range(8):
            A(f"v_mul_f32 v{vO1+i}, v{vO1+i}, v{vAl}")
        A(f"v_mul_f32 v{vL}, v{vL}, v{vAl}")
        A(f"s_setpc_b64 s[{sRet}:{sRet+1}]")

        A("L_swap:")
        A("s_nop 3")
        A(f"s_xor_b32 s{sCur}, s{sCur}, 1")
        for i in range(3):
            A(f"v_swap_b32 v{vM+i}, v{vAlt+8+i}")
        for i in range(4):
            A(f"v_swap_b32 v{vQ+i}, v{vAlt+12+i}")
        for i in range(8):
            A(f"v_swap_b32 v{vO1+i}, v{vAlt+i}")
        A(f"s_setpc_b64 s[{sRet}:{sRet+1}]")

        def states_to_lds():
            L2 = vAlt + 9
            A(f"v_mov_b32 v{vB}, v{vL}")
            A(f"v_mov_b32 v{vAl}, v{L2}")
            A(f"s_mul_i32 s{sT1}, s{sW}, {W_STR}")
            A(f"s_mul_i32 s{sT2}, s{sCur}, {NW*W_STR}")
            A(f"v_permlane16_swap_b32 v{vL}, v{vB}")
            A(f"v_permlane16_swap_b32 v{L2}, v{vAl}")
            A(f"v_add_f32 v{vL}, v{vL}, v{vB}")
            A(f"v_add_f32 v{L2}, v{L2}, v{vAl}")
            A(f"v_mov_b32 v{vB}, v{vL}")
            A(f"v_mov_b32 v{vAl}, v{L2}")
            A(f"s_add_u32 s{sT3}, s{sT1}, s{sT2}")
            A(f"s_sub_u32 s{sT1}, s{sT1}, s{sT2}")
            A(f"s_add_u32 s{sT1}, s{sT1}, {NW*W_STR}")
            A(f"v_permlane32_swap_b32 v{vL}, v{vB}")
            A(f"v_permlane32_swap_b32 v{L2}, v{vAl}")
            A(f"v_add_f32 v{vL}, v{vL}, v{vB}")
            A(f"v_add_f32 v{L2}, v{L2}, v{vAl}")
            A(f"v_add_u32 v{vA}, s{sT1}, v{vLin}")
            A(f"v_add_u32 v{vAl}, s{sT3}, v{vLin}")
            A(f"ds_write_b128 v{vA}, {vr(vO1,4)} offset:{L_O}")
            A(f"ds_write_b128 v{vA}, {vr(vO2,4)} offset:{L_O+U_STR}")
            A(f"ds_write_b128 v{vAl}, {vr(vAlt,4)} offset:{L_O}")
            A(f"ds_write_b128 v{vAl}, {vr(vAlt+4,4)} offset:{L_O+U_STR}")
            A(f"s_lshl_b32 s{sT1}, s{sW}, 3")
            A(f"s_lshl_b32 s{sT2}, s{sCur}, 7")
            A(f"s_add_u32 s{sT3}, s{sT1}, s{sT2}")
            A(f"s_sub_u32 s{sT1}, s{sT1}, s{sT2}")
            A(f"s_add_u32 s{sT1}, s{sT1}, 128")
            A(f"v_bfe_u32 v{vB}, v{vLane}, 2, 2")
            A(f"v_lshlrev_b32 v{vB}, 5, v{vB}")
            A(f"v_add_u32 v{vA}, s{sT1}, v{vB}")
            A(f"v_add_u32 v{vAl}, s{sT3}, v{vB}")
            A("s_mov_b64 exec, 0x1111")
            A(f"ds_write_b64 v{vA}, {vr(vM,2)} offset:{L_ML}")
            A(f"ds_write_b64 v{vAl}, {vr(vAlt+8,2)} offset:{L_ML}")
            A("s_mov_b64 exec, -1")

        A("L_exit:")
        self.TS(5)
        if self.ts:
            A(f"v_writelane_b32 v{vTS}, s{sJ2}, 62")
        states_to_lds()
        A(f"s_lshl_b32 s{sT1}, s{sH}, 19")
        A(f"s_lshl_b32 s{sT2}, s{sS}, 15")
        A(f"s_add_u32 s{sT1}, s{sT1}, s{sT2}")
        A(f"s_lshl_b32 s{sT2}, s{sW}, 8")
        A(f"s_add_u32 s{sT1}, s{sT1}, s{sT2}")
        A(f"s_add_u32 s{sT2}, s{sT1}, 4096")
        A(f"v_lshrrev_b32 v{vA}, 4, v{vLane}")
        A(f"v_lshlrev_b32 v{vA}, 13, v{vA}")
        A(f"v_and_b32 v{vB}, 15, v{vLane}")
        A(f"v_lshl_add_u32 v{vA}, v{vB}, 4, v{vA}")
        vWO = slot(R - 1, 0, 0)
        for i in range(8):
            A(f"buffer_load_dwordx4 {vr(vWO+4*i,4)}, v{vA}, {srd(sWO)}, s{(sT1, sT2)[i>>2]} offen offset:{(i&3)*1024} {self.wopol}")
        if self.pf2:
            code_prefetch()
        vG = slot(R - 2, 0, 0)
        l = self.lab("nogate")
        A(f"s_lshl_b32 s{sT1}, s{sRed}, 3")
        A(f"s_or_b32 s{sT1}, s{sT1}, s{sW}")
        A(f"s_cmp_lg_u32 s{sT1}, 3")
        A(f"s_cbranch_scc1 {l}")
        A(f"s_lshl_b32 s{sT1}, s2, 7")
        A(f"s_and_b32 s{sT1}, s{sT1}, 1024")
        A(f"buffer_load_dwordx4 {vr(vG,4)}, v{vLin}, {srd(sX)}, s{sT1} offen")
        A(f"global_load_dwordx4 {vr(vG+4,4)}, v{vLin}, s[68:69]")
        A(f"{l}:")
        ml = RING
        od = RING + 8
        A(f"s_lshr_b32 s{sT1}, s{sW}, 1")
        A(f"s_and_b32 s{sT2}, s{sW}, 1")
        A(f"s_lshl_b32 s{sT3}, s{sT1}, 7")
        A(f"v_bfe_u32 v{vB}, v{vLane}, 3, 2")
        A(f"v_lshlrev_b32 v{vB}, 5, v{vB}")
        A(f"v_add_u32 v{vB}, s{sT3}, v{vB}")
        A(f"s_mul_i32 s{sT3}, s{sT1}, {NW*W_STR}")
        A(f"s_lshl_b32 s{sT0}, s{sT2}, 9")
        A(f"s_add_u32 s{sT3}, s{sT3}, s{sT0}")
        A(f"v_lshrrev_b32 v{vA}, 3, v{vLane}")
        A(f"v_lshlrev_b32 v{vA}, 6, v{vA}")
        A(f"v_and_b32 v{vAl}, 3, v{vLane}")
        A(f"v_lshl_add_u32 v{vA}, v{vAl}, 4, v{vA}")
        A(f"v_bfe_u32 v{vAl}, v{vLane}, 2, 1")
        A(f"v_mul_u32_u24 v{vAl}, {U_STR}, v{vAl}")
        A(f"v_add3_u32 v{vA}, v{vA}, v{vAl}, s{sT3}")
        A(f"s_lshl_b32 s{sIdx}, s{sT1}, 8")
        A(f"s_add_u32 s{sIdx}, s{sIdx}, s2")
        A(f"s_lshl_b32 s{sT3}, s{sIdx}, 11")
        A(f"s_lshl_b32 s{sT0}, s{sT2}, 10")
        A(f"s_add_u32 s{sT3}, s{sT3}, s{sT0}")
        A(f"s_add_u32 s{sT3}, s{sT3}, {WS_PO}")
        A(f"s_lshl_b32 s{sT0}, s{sIdx}, 7")
        A(f"s_add_u32 s{sT0}, s{sT0}, {WS_PML}")
        tb = DD
        A(f"v_and_b32 v{tb}, 0xff, v{vT}")
        A(f"v_bfe_u32 v{tb+1}, v{vT}, 8, 8")
        A(f"v_bfe_u32 v{tb+2}, v{vT}, 16, 8")
        A(f"v_lshrrev_b32 v{tb+3}, 24, v{vT}")
        Mx, Ls = DD + 4, DD + 5
        res = DD + 8
        A(f"v_mov_b32 v{DD+6}, v{vT}")
        A(f"v_mov_b32 v{DD+7}, v{vT}")
        A(f"v_lshlrev_b32 v{vx0}, 1, v{vLane}")
        A("s_waitcnt lgkmcnt(0)")
        A("s_barrier")
        self.TS(6)
        for i in range(2):
            A(f"ds_read_b128 {vr(ml+4*i,4)}, v{vB} offset:{L_ML+16*i}")
        for w in range(NW):
            A(f"ds_read_b128 {vr(od+4*w,4)}, v{vA} offset:{L_O+W_STR*w}")
        A("s_waitcnt lgkmcnt(4)")
        A(f"v_max3_f32 v{Mx}, v{ml}, v{ml+2}, v{ml+4}")
        A(f"v_max_f32 v{Mx}, v{Mx}, v{ml+6}")
        A(f"v_mul_f32 v{vAl}, s{sC}, v{Mx}")
        for w in range(NW):
            A(f"v_fma_f32 v{ml+2*w}, v{ml+2*w}, s{sC}, -v{vAl}")
        for w in range(NW):
            A(f"v_exp_f32 v{ml+2*w}, v{ml+2*w}")
        A("s_waitcnt lgkmcnt(0)")
        for i in range(4):
            A(f"v_mul_f32 v{res+i}, v{ml}, v{od+i}")
        for w in range(1, NW):
            for i in range(4):
                A(f"v_fmac_f32 v{res+i}, v{ml+2*w}, v{od+4*w+i}")
        for i in range(4):
            A(f"v_and_or_b32 v{res+i}, v{res+i}, s{sMaskHi}, v{tb+i}")
        A(f"buffer_store_dwordx4 {vr(res,4)}, v{vLin}, {srd(sWS)}, s{sT3} offen {self.sp}")
        l = self.lab("noml")
        A(f"s_cmp_lg_u32 s{sT2}, 0")
        A(f"s_cbranch_scc1 {l}")
        A(f"v_mul_f32 v{Ls}, v{ml}, v{ml+1}")
        for w in range(1, NW):
            A(f"v_fmac_f32 v{Ls}, v{ml+2*w}, v{ml+2*w+1}")
        A("s_mov_b32 exec_lo, 0x01010101")
        A("s_mov_b32 exec_hi, 0x01010101")
        A(f"buffer_store_dwordx4 {vr(Mx,4)}, v{vx0}, {srd(sWS)}, s{sT0} offen {self.sp}")
        A("s_mov_b64 exec, -1")
        A(f"{l}:")
        self.TS(7)

        def tagcheck(regs, extra):
            n = 0
            for r in regs:
                A(f"v_perm_b32 v{vD+n}, v{r+1}, v{r}, s{sSelx}")
                A(f"v_perm_b32 v{vD+n+1}, v{r+3}, v{r+2}, s{sSely}")
                A(f"v_or_b32 v{vD+n}, v{vD+n}, v{vD+n+1}")
                A(f"v_xor_b32 v{vD+n}, v{vD+n}, v{vT}")
                n += 1
            for r in extra:
                A(f"v_xor_b32 v{vD+n}, v{r}, v{vT}")
                n += 1
            for i in range(1, n):
                A(f"v_or_b32 v{vD}, v{vD}, v{vD+i}")
            A(f"v_cmp_ne_u32 vcc, 0, v{vD}")

        def poll(loads, check, delay, lane0=None):
            lp, lok = self.lab("poll"), self.lab("pok")
            if delay:
                A(f"s_sleep {delay}")
            if self.ts == 1 and lane0:
                A(f"s_mov_b32 s{sJ2}, {lane0}")
            A(f"{lp}:")
            if self.ts == 1 and lane0:
                A("s_memrealtime s[96:97]")
                A(f"s_min_u32 m0, s{sJ2}, {lane0+4}")
                A(f"s_add_u32 s{sJ2}, s{sJ2}, 1")
                A("s_waitcnt lgkmcnt(0)")
                A(f"v_writelane_b32 v{vTS}, s96, m0")
            loads()
            A("s_mov_b64 exec, -1")
            A(f"s_sub_u32 s{sSpin}, s{sSpin}, 1")
            A("s_cbranch_scc1 L_end")
            A("s_waitcnt vmcnt(0)")
            check()
            A(f"s_cbranch_vccz {lok}")
            A("s_mov_b64 exec, vcc")
            if self.rs:
                A(f"s_sleep {self.rs}")
            A(f"s_branch {lp}")
            A(f"{lok}:")

        def xreduce(regs, op, tmp):
            A("s_nop 1")
            for r in regs:
                A(f"{op}_dpp v{r}, v{r}, v{r} row_ror:8 {DPPM}")
            for sw in ("v_permlane16_swap_b32", "v_permlane32_swap_b32"):
                for i, r in enumerate(regs):
                    A(f"v_mov_b32 v{tmp+i}, v{r}")
                A("s_nop 1")
                for i, r in enumerate(regs):
                    A(f"{sw} v{r}, v{tmp+i}")
                for i, r in enumerate(regs):
                    A(f"{op} v{r}, v{r}, v{tmp+i}")

        A(f"s_cmp_eq_u32 s{sT2}, 0")
        A("s_cbranch_scc1 L_t3")
        oa, obb, mla, mlb = RING, RING + 4, RING + 8, RING + 12
        A(f"s_lshl_b32 s{sT1}, s{sT1}, 7")
        A(f"s_lshl_b32 s{sT2}, s{sB}, 8")
        A(f"s_add_u32 s{sT1}, s{sT1}, s{sT2}")
        A(f"s_lshl_b32 s{sT2}, s{sH}, 4")
        A(f"s_add_u32 s{sT1}, s{sT1}, s{sT2}")
        A(f"s_and_b32 s{sT2}, s{sS}, 3")
        A(f"s_lshl_b32 s{sT2}, s{sT2}, 9")
        A(f"s_lshr_b32 s{sT3}, s{sS}, 2")
        A(f"s_lshl_b32 s{sT0}, s{sT3}, 7")
        A(f"s_add_u32 s{sT2}, s{sT2}, s{sT0}")
        A(f"s_lshl_b32 s{sT0}, s{sT1}, 11")
        A(f"s_add_u32 s{sT2}, s{sT2}, s{sT0}")
        A(f"s_add_u32 s{sT2}, s{sT2}, {WS_PO}")
        A(f"s_add_u32 s{sIdx}, s{sT2}, 16384")
        A(f"s_lshl_b32 s{sT1}, s{sT1}, 7")
        A(f"s_lshl_b32 s{sT3}, s{sT3}, 4")
        A(f"s_add_u32 s{sT1}, s{sT1}, s{sT3}")
        A(f"s_add_u32 s{sT1}, s{sT1}, {WS_PML}")
        A(f"v_lshrrev_b32 v{vB}, 3, v{vLane}")
        A(f"v_lshlrev_b32 v{vA}, 11, v{vB}")
        A(f"v_and_b32 v{vAl}, 7, v{vLane}")
        A(f"v_lshl_add_u32 v{vA}, v{vAl}, 4, v{vA}")
        A(f"v_lshlrev_b32 v{vB}, 7, v{vB}")

        def h1loads():
            A(f"buffer_load_dwordx4 {vr(mla,4)}, v{vB}, {srd(sWS)}, s{sT1} offen {self.pp}")
            A(f"buffer_load_dwordx4 {vr(mlb,4)}, v{vB}, {srd(sWS)}, s{sT1} offen offset:1024 {self.pp}")
            A(f"buffer_load_dwordx4 {vr(oa,4)}, v{vA}, {srd(sWS)}, s{sT2} offen {self.pp}")
            A(f"buffer_load_dwordx4 {vr(obb,4)}, v{vA}, {srd(sWS)}, s{sIdx} offen {self.pp}")
        poll(h1loads, lambda: tagcheck([oa, obb], [mla + 2, mlb + 2]), self.d1, 51)
        self.TS(8)
        Mg = vD
        A(f"v_max_f32 v{Mg}, v{mla}, v{mlb}")
        xreduce([Mg], "v_max_f32", vD + 8)
        A(f"v_mul_f32 v{Mg}, s{sC}, v{Mg}")
        A(f"v_fma_f32 v{mla}, v{mla}, s{sC}, -v{Mg}")
        A(f"v_fma_f32 v{mlb}, v{mlb}, s{sC}, -v{Mg}")
        A(f"v_exp_f32 v{mla}, v{mla}")
        A(f"v_exp_f32 v{mlb}, v{mlb}")
        A(f"s_lshr_b32 s{sT1}, s{sW}, 1")
        A(f"v_mul_f32 v{vD+1}, v{mla}, v{mla+1}")
        A(f"v_fmac_f32 v{vD+1}, v{mlb}, v{mlb+1}")
        for i in range(4):
            A(f"v_mul_f32 v{vD+2+i}, v{mla}, v{oa+i}")
        for i in range(4):
            A(f"v_fmac_f32 v{vD+2+i}, v{mlb}, v{obb+i}")
        xreduce([vD + 1 + i for i in range(5)], "v_add_f32", vD + 8)
        A(f"v_rcp_f32 v{vD+1}, v{vD+1}")
        A(f"s_lshl_b32 s{sT1}, s{sT1}, 7")
        A(f"v_lshlrev_b32 v{vA}, 2, v{vAl}")
        A(f"v_add_u32 v{vA}, s{sT1}, v{vA}")
        for i in range(4):
            A(f"v_mul_f32 v{vD+2+i}, v{vD+2+i}, v{vD+1}")
        for i in range(4):
            A(f"v_cvt_pk_bf16_f32 v{vD+2+i}, v{vD+2+i}, v{vD+2+i}")
        A("s_mov_b64 exec, 0xff")
        for i in range(4):
            A(f"ds_write_b32 v{vA}, v{vD+2+i} offset:{L_OF+32*i}")
        A("s_mov_b64 exec, -1")

        A("L_t3:")
        mk = 52
        A(f"v_and_b32 v{vA}, 1, v{vLane}")
        A(f"v_lshlrev_b32 v{vA}, 4, v{vA}")
        A(f"v_mov_b32 v{vB}, 0xffff")
        A(f"v_lshlrev_b32 v{vB}, v{vA}, v{vB}")
        A(f"v_bfe_u32 v{vA}, v{vLane}, 1, 2")
        for j in range(4):
            A(f"v_cmp_eq_u32 vcc, {j}, v{vA}")
            A("s_nop 1")
            A(f"v_cndmask_b32 v{mk+j}, 0, v{vB}, vcc")
        A(f"v_bfe_u32 v{vA}, v{vLane}, 3, 1")
        A(f"v_lshlrev_b32 v{vA}, 7, v{vA}")
        A(f"v_lshrrev_b32 v{vB}, 4, v{vLane}")
        A(f"v_lshl_add_u32 v{vA}, v{vB}, 5, v{vA}")
        A(f"s_lshl_b32 s{sT3}, s{sW}, 10")
        A(f"s_lshl_b32 s{sT0}, s2, 12")
        A(f"s_add_u32 s{sT3}, s{sT3}, s{sT0}")
        A(f"s_add_u32 s{sT3}, s{sT3}, {WS_C}")
        A("s_waitcnt vmcnt(0) lgkmcnt(0)")
        A("s_barrier")
        ob = RING
        bo = RING + 8
        A(f"ds_read_b128 {vr(ob,4)}, v{vA} offset:{L_OF}")
        A(f"ds_read_b128 {vr(ob+4,4)}, v{vA} offset:{L_OF+16}")
        for i in range(8):
            if i == 0:
                A("s_waitcnt lgkmcnt(1)")
            if i == 4:
                A("s_waitcnt lgkmcnt(0)")
            for j in range(4):
                A(f"v_and_b32 v{bo+4*i+j}, v{ob+i}, v{mk+j}")
            if i > 0:
                c = "0" if i == 1 else vr(res, 4)
                A(f"v_mfma_f32_16x16x32_bf16 {vr(res,4)}, {vr(vWO+4*(i-1),4)}, {vr(bo+4*(i-1),4)}, {c}")
        A("s_nop 0")
        A(f"v_mfma_f32_16x16x32_bf16 {vr(res,4)}, {vr(vWO+28,4)}, {vr(bo+28,4)}, {vr(res,4)}")
        A("s_nop 7")
        for i in range(4):
            A(f"v_and_or_b32 v{res+i}, v{res+i}, s{sMaskHi}, v{tb+i}")
        A(f"buffer_store_dwordx4 {vr(res,4)}, v{vLin}, {srd(sWS)}, s{sT3} offen {self.sp}")
        self.TS(9)

        LC = self.LC
        lg = LC.bit_length() - 1
        if self.ts:
            la = self.lab("ack")
            A(f"s_cmp_eq_u32 s{sRed}, 0")
            A(f"s_cbranch_scc1 {la}")
            A("s_waitcnt vmcnt(0)")
            self.TS(61)
            A(f"{la}:")
        A(f"s_cmp_lg_u32 s{sRed}, 0")
        A("s_cbranch_scc1 L_fin")
        ca = RING
        A(f"s_lshr_b32 s{sT1}, s2, 3")
        A(f"s_lshl_b32 s{sT2}, s{sT1}, 7")
        A(f"s_lshl_b32 s{sT3}, s{sW}, 18")
        A(f"s_add_u32 s{sT2}, s{sT2}, s{sT3}")
        A(f"s_and_b32 s{sIdx}, s2, {8-LC}")
        A(f"s_lshl_b32 s{sT3}, s{sIdx}, 4")
        A(f"s_add_u32 s{sT2}, s{sT2}, s{sT3}")
        A(f"s_add_u32 s{sT2}, s{sT2}, {WS_C}")
        A(f"v_lshrrev_b32 v{vA}, {lg}, v{vLane}")
        A(f"v_lshlrev_b32 v{vA}, 12, v{vA}")
        A(f"v_and_b32 v{vB}, {LC-1}, v{vLane}")
        A(f"v_lshl_add_u32 v{vA}, v{vB}, 4, v{vA}")
        for k in range(LC):
            A(f"s_add_u32 s{48+k}, s{sT2}, {k*(64//LC)*4096}")
        l = self.lab("nog2")
        A(f"s_cmp_lg_u32 s{sW}, 3")
        A(f"s_cbranch_scc1 {l}")
        g0 = RING + 40
        for j in range(4):
            A(f"v_lshlrev_b32 v{g0+4*j}, 16, v{vG+j}")
            A(f"v_and_b32 v{g0+4*j+1}, 0xffff0000, v{vG+j}")
            A(f"v_lshlrev_b32 v{g0+4*j+2}, 16, v{vG+4+j}")
            A(f"v_and_b32 v{g0+4*j+3}, 0xffff0000, v{vG+4+j}")
        for j in range(4):
            A(f"v_mul_f32 v{g0+4*j}, v{g0+4*j}, v{g0+4*j+2}")
            A(f"v_mul_f32 v{g0+4*j+1}, v{g0+4*j+1}, v{g0+4*j+3}")
        for j in range(4):
            A(f"v_cvt_pk_bf16_f32 v{g0+4*j}, v{g0+4*j}, v{g0+4*j+1}")
        for j in range(4):
            A(f"v_and_b32 v{g0+4*j+1}, 0xffff0000, v{g0+4*j}")
            A(f"v_lshlrev_b32 v{g0+4*j}, 16, v{g0+4*j}")
        for j in range(4):
            A(f"v_add_f32 v{g0+4*j}, v{g0+4*j}, v{g0+4*j+1}")
        A(f"v_add_f32 v{g0}, v{g0}, v{g0+4}")
        A(f"v_add_f32 v{g0+8}, v{g0+8}, v{g0+12}")
        A(f"v_add_f32 v{g0}, v{g0}, v{g0+8}")
        for ror in (1, 2, 4):
            A("s_nop 1")
            A(f"v_add_f32_dpp v{g0}, v{g0}, v{g0} row_ror:{ror} {DPPM}")
        xreduce([g0], "v_add_f32", g0 + 1)
        A(f"v_cvt_pk_bf16_f32 v{g0}, v{g0}, v{g0}")
        A(f"v_and_b32 v{g0}, 0xffff0000, v{g0}")
        A(f"v_mul_f32 v{g0}, {f2u(-1.4426950408889634):#x}, v{g0}")
        A(f"v_exp_f32 v{g0}, v{g0}")
        A("s_nop 0")
        A(f"v_add_f32 v{g0}, 1.0, v{g0}")
        A(f"v_rcp_f32 v{g0}, v{g0}")
        A("s_nop 0")
        A(f"v_cvt_pk_bf16_f32 v{g0}, v{g0}, v{g0}")
        A(f"v_and_b32 v{g0}, 0xffff0000, v{g0}")
        A(f"v_mov_b32 v{g0+1}, {L_G}")
        A("s_mov_b64 exec, 1")
        A(f"ds_write_b32 v{g0+1}, v{g0}")
        A("s_mov_b64 exec, -1")
        A(f"{l}:")

        def h2loads():
            for k in range(LC):
                A(f"buffer_load_dwordx4 {vr(ca+4*k,4)}, v{vA}, {srd(sWS)}, s{48+k} offen {self.pp}")
        poll(h2loads, lambda: tagcheck([ca + 4 * k for k in range(LC)], []), self.d2, 56)
        self.TS(10)
        st = 2 * LC
        while st >= 4:
            for i in range(st):
                A(f"v_add_f32 v{ca+i}, v{ca+i}, v{ca+st+i}")
            st //= 2
        A("s_nop 1")
        A(f"v_permlane32_swap_b32 v{ca}, v{ca+2}")
        A(f"v_permlane32_swap_b32 v{ca+1}, v{ca+3}")
        A(f"v_add_f32 v{ca}, v{ca}, v{ca+2}")
        A(f"v_add_f32 v{ca+1}, v{ca+1}, v{ca+3}")
        A("s_nop 1")
        A(f"v_permlane16_swap_b32 v{ca}, v{ca+1}")
        A(f"v_add_f32 v{ca}, v{ca}, v{ca+1}")
        A(f"v_lshrrev_b32 v{vA}, 4, v{vLane}")
        A(f"v_lshlrev_b32 v{vA}, 5, v{vA}")
        A(f"v_add_f32_dpp v{ca}, v{ca}, v{ca} row_ror:8 {DPPM}")
        A(f"v_lshl_add_u32 v{vA}, v{vB}, 2, v{vA}")
        A(f"s_lshl_b32 s{sT2}, s{sW}, 7")
        ror = 4
        while ror >= LC:
            A(f"v_add_f32_dpp v{ca}, v{ca}, v{ca} row_ror:{ror} {DPPM}")
            A("s_nop 1")
            ror //= 2
        A(f"v_add_u32 v{vA}, s{sT2}, v{vA}")
        m16 = (1 << LC) - 1
        A(f"s_mov_b32 exec_lo, {m16 | (m16 << 16):#x}")
        A(f"s_mov_b32 exec_hi, {m16 | (m16 << 16):#x}")
        A(f"ds_write_b32 v{vA}, v{ca} offset:{L_R}")
        A("s_mov_b64 exec, -1")
        A(f"v_and_b32 v{vB}, 31, v{vLane}")
        A(f"v_lshlrev_b32 v{vA}, 2, v{vB}")
        A(f"v_add_u32 v{vAl}, {L_R}, v{vA}")
        A(f"v_mov_b32 v{vD}, {L_G}")
        A(f"s_lshr_b32 s{sT2}, s{sT1}, 1")
        A(f"s_lshl_b32 s{sT2}, s{sT2}, 6")
        A(f"s_and_b32 s{sT3}, s{sT1}, 1")
        A(f"s_lshl_b32 s{sT3}, s{sT3}, 10")
        A(f"s_add_u32 s{sT2}, s{sT2}, s{sT3}")
        A(f"s_lshl_b32 s{sT3}, s{sIdx}, 1")
        A(f"s_add_u32 s{sT2}, s{sT2}, s{sT3}")
        A(f"v_lshlrev_b32 v{vA}, 1, v{vB}")
        A("s_waitcnt lgkmcnt(0)")
        A("s_barrier")
        A(f"s_cmp_lg_u32 s{sW}, 0")
        A("s_cbranch_scc1 L_fin")
        fa = RING
        for w in range(2):
            A(f"ds_read2_b32 {vr(fa+2*w,2)}, v{vAl} offset0:{w*32} offset1:{w*32+64}")
        A(f"ds_read_b32 v{vD}, v{vD}")
        A("s_waitcnt lgkmcnt(0)")
        A(f"v_add_f32 v{fa}, v{fa}, v{fa+2}")
        A(f"v_add_f32 v{fa+1}, v{fa+1}, v{fa+3}")
        A(f"v_sub_f32 v{vD+1}, 1.0, v{vD}")
        A(f"v_cvt_pk_bf16_f32 v{fa}, v{fa}, v{fa+1}")
        A(f"v_cvt_pk_bf16_f32 v{vD+1}, v{vD+1}, v{vD+1}")
        A(f"v_and_b32 v{fa+1}, 0xffff0000, v{fa}")
        A(f"v_lshlrev_b32 v{fa}, 16, v{fa}")
        A(f"v_and_b32 v{vD+1}, 0xffff0000, v{vD+1}")
        A(f"v_mul_f32 v{fa}, v{fa}, v{vD}")
        A(f"v_mul_f32 v{fa+1}, v{fa+1}, v{vD+1}")
        A(f"v_cvt_pk_bf16_f32 v{fa}, v{fa}, v{fa+1}")
        A(f"v_and_b32 v{fa+1}, 0xffff0000, v{fa}")
        A(f"v_lshlrev_b32 v{fa}, 16, v{fa}")
        A(f"v_add_f32 v{fa}, v{fa}, v{fa+1}")
        A(f"v_cvt_pk_bf16_f32 v{fa}, v{fa}, v{fa}")
        A("s_mov_b32 exec_hi, 0")
        A(f"s_mov_b32 exec_lo, {m16 * 0x01010101:#x}")
        A(f"buffer_store_short v{fa}, v{vA}, {srd(sOUT)}, s{sT2} offen")
        A("s_cmp_lg_u32 s2, 0")
        A("s_cbranch_scc1 L_fin")
        A("s_mov_b64 exec, 1")
        A(f"v_mov_b32 v{vA}, {WS_EPOCH}")
        A(f"buffer_store_dword v{vT}, v{vA}, {srd(sWS)}, 0 offen sc1")
        A("L_fin:")
        if self.ts:
            A("s_mov_b64 exec, -1")
            self.TS(11)
            A(f"v_writelane_b32 v{vTS}, s{sJ}, 12")
            A("s_getreg_b32 s96, hwreg(HW_REG_XCC_ID)")
            A("s_nop 0")
            A(f"v_writelane_b32 v{vTS}, s96, 13")
            A(f"s_sub_u32 s96, {self.spin}, s{sSpin}")
            A(f"v_writelane_b32 v{vTS}, s96, 14")
            if self.tkm:
                A(f"v_writelane_b32 v{vTS}, s59, 15")
                A(f"v_writelane_b32 v{vTS}, s79, 62")
                A(f"v_writelane_b32 v{vTS}, s57, 63")
            A(f"s_lshl_b32 s{sT1}, s2, 2")
            A(f"s_add_u32 s{sT1}, s{sT1}, s{sW}")
            A(f"s_lshl_b32 s{sT1}, s{sT1}, 8")
            A(f"s_add_u32 s{sT1}, s{sT1}, {WS_TS}")
            A(f"v_lshlrev_b32 v{vA}, 2, v{vLane}")
            A(f"buffer_store_dword v{vTS}, v{vA}, {srd(sWS)}, s{sT1} offen")
            A("s_mov_b64 exec, 0xffff")
            if self.echo >= 0:
                A(f"s_or_b32 s{sT1}, s{sW}, s2")
                A(f"s_cmp_lg_u32 s{sT1}, 0")
                A("s_cbranch_scc1 L_end")
                A("s_nop 1")
                A(f"v_readlane_b32 s{sT1}, v{vTS}, {self.echo}")
                A(f"v_readlane_b32 s{sT2}, v{vTS}, {self.echob}")
                A(f"v_readlane_b32 s{sT3}, v{vTS}, 11")
                A("s_nop 3")
                A(f"s_sub_u32 s{sT1}, s{sT1}, s{sT2}")
                A(f"s_mul_i32 s{sT1}, s{sT1}, {self.echog}")
                A(f"s_min_u32 s{sT1}, s{sT1}, 30000")
                A("L_echo:")
                A("s_memrealtime s[96:97]")
                A("s_waitcnt lgkmcnt(0)")
                A(f"s_sub_u32 s96, s96, s{sT3}")
                A(f"s_cmp_lt_u32 s96, s{sT1}")
                A("s_cbranch_scc1 L_echo")
            if self.dbgts:
                for (src, dst) in ((0, 13), (5, 14), (4, 15)):
                    A("s_nop 0")
                    A(f"v_readlane_b32 s96, v{vTS}, {src}")
                    A("s_nop 3")
                    A("s_not_b32 s96, s96")
                    A(f"v_writelane_b32 v{vTS}, s96, {dst}")
                A(f"global_atomic_umax v{vA}, v{vTS}, s[72:73] sc1")
        A("L_end:")
        A("s_endpgm")
        body_txt = "\n".join(self.L)
        out = HDR + f"; @launch grid=(256,1,1) block=({64*NW},1,1) lds={LDS_BYTES}\n"
        out += '.amdgcn_target "amdgcn-amd-amdhsa--gfx950"\n.text\n'
        out += f".globl {name}\n.p2align 8\n.type {name},@function\n" + body_txt + "\n"
        assert not self.dyn and self.fm in (0, 1) and not self.touch and not self.st and not self.kvf and self.CA0 >= R * NW and self.CA0 + 15 * self.CAS + 16 <= NTS + 16
        assert NV <= 232 and 2 * R <= 10 and not self.tkm
        out += f""".section .rodata,"a"
.p2align 6
.amdhsa_kernel {name}
  .amdhsa_next_free_vgpr 264
  .amdhsa_next_free_sgpr 102
  .amdhsa_accum_offset 256
  .amdhsa_group_segment_fixed_size 0
  .amdhsa_kernarg_size 112
  .amdhsa_user_sgpr_count 2
  .amdhsa_user_sgpr_kernarg_segment_ptr 1
  .amdhsa_system_sgpr_workgroup_id_x 1
.end_amdhsa_kernel
"""
        return out


if __name__ == "__main__":
    out = sys.argv[1]
    kw = {}
    for a in sys.argv[2:]:
        k, v = a.split("=")
        assert k in DEFAULTS, k
        kw[k] = type(DEFAULTS[k])(v.replace("+", " "))
    open(out, "w").write(Gen(**kw).gen())
    print("lds", LDS_BYTES)
```

```python
import sys, struct

NAME = "gated_mix__sliding_block_cached__gqa_block_cached__decode_kernel"

HDR = """; Kernarg layout for this problem (112 bytes, ptrs only, base s[0:1]):
"""

def f2u(x):
    return struct.unpack("<I", struct.pack("<f", x))[0]

WS_EPOCH = 0
WS_Q = 0x10000
WS_PML = 0x20000
WS_PO = 0x40000
WS_C = 0x140000
WS_TS = 0x300000
WS_SIZE = 0x400000

NW = 4
NU = 72
L_S = 0
U_STR = 1024 + 64
W_STR = 2 * U_STR
L_O = NU * 512
L_ML = L_O + 2 * NW * W_STR
L_Q = L_ML + 256
L_OF = L_Q + 1024
L_R = L_OF + 256
L_G = L_R + 512
L_C = L_G + 16
L_TK = L_C + 4
LDS_BYTES = L_C + 48
SENT = 0x7fc0dead

DEFAULTS = dict(D=5, DF=8, DQ=6, DE=10, R=5, P1=26, F0=2, fm=0, KF=4, d1=20, d2=24, ts=0, dbgts=0,
                kvpol="nt", wqpol="nt", wopol="nt", LC=8, qx=4, qn=8, ex=3, CK=64, CV=64, dk="65555555", dv="65555555", wod=0)

class Gen:
    def __init__(self, **kw):
        self.o = dict(DEFAULTS)
        self.o.update(kw)
        for k, v in self.o.items():
            setattr(self, k, v)
        if self.dbgts:
            self.ts = self.ts or 1
        self.L = []
        self.name = NAME
        self.spin = 1 << 20
        self.uid = 0

    def A(self, s):
        for line in s.split("\n"):
            line = line.strip()
            self.L.append(line if line.endswith(":") else "    " + line)

    def lab(self, base):
        self.uid += 1
        return f"L{base}_{self.uid}"

    def TS(self, k):
        if not self.ts:
            return
        A = self.A
        A("s_memrealtime s[96:97]")
        A("s_waitcnt lgkmcnt(0)")
        A(f"v_writelane_b32 v69, s96, {k}")

    def gen(self):
        A = self.A
        D, DF, DQ, R, P1, F0 = self.D, self.DF, self.DQ, self.R, self.P1, self.F0
        name = self.name
        DPPM = "row_mask:0xf bank_mask:0xf"
        sIdx = 3
        sRet = 4
        sDrain, sRed = 6, 7
        sF = 8
        sFB, sFA = 12, 14
        sVB, sVA = 16, 18
        sSlot = 20
        sWQ = 60
        sWO, sWS, sX, sOUT = 28, 32, 36, 40
        sW, sBH, sS, sB, sH = 44, 45, 46, 47, 76
        sPC = 52
        sCur, sJ2, sSw, sSub = 56, 57, 58, 59
        sBase, sAoff, sCA = 64, 65, 66
        sC, sJ, sOff2, sOff, sTk, sT, sSpin = 77, 78, 80, 81, 82, 83, 84
        sT0, sT1, sT2, sT3 = 85, 86, 87, 88
        sSelx, sSely, sMaskHi = 89, 90, 91
        sQm = 92
        vKoff, vLin, vLane = 1, 2, 3
        vQ, vQ2, DD = 4, 8, 12
        vM, vL, vMC, vmX, vmY, vA, vB, vAl = 28, 29, 30, 31, 32, 33, 34, 35
        vS, vt, vpd, vXY = 36, 40, 44, 48
        vO1, vO2 = 56, 60
        vTkA, vTkV, vF, vSl = 64, 65, 0, 71
        vT, vTS, vx0 = 68, 69, 70
        RING = 72
        vAlt = 232
        vD = 36
        assert R <= 5

        def srd(s):
            return f"s[{s}:{s+3}]"

        def sp(s):
            return f"s[{s}:{s+1}]"

        def vr(r, n):
            return f"v[{r}:{r+n-1}]"

        def slot(p, i):
            return RING + (p * 8 + i) * 4

        def fetch(p, i):
            A(f"buffer_load_dwordx4 {vr(slot(p,i),4)}, v{vF}, {srd(sF)}, s{(sOff, sOff2)[i>>2]} offen offset:{(i&3)*1024} {self.kvpol}")

        self.L.append(f"{name}:")
        A("s_cmp_ge_u32 s2, 256")
        A("s_cbranch_scc1 L_end")
        A("s_load_dwordx16 s[48:63], s[0:1], 0")
        A("s_load_dwordx8 s[64:71], s[0:1], 64")
        A("s_load_dwordx4 s[72:75], s[0:1], 96")
        if self.ts:
            A(f"v_mov_b32 v{vTS}, 0")
            A("s_memrealtime s[96:97]")
        A(f"v_lshrrev_b32 v{vA}, 6, v0")
        A(f"v_and_b32 v{vLane}, 63, v0")
        A(f"s_lshr_b32 s{sBH}, s2, 4")
        A(f"v_readfirstlane_b32 s{sW}, v{vA}")
        A(f"s_and_b32 s{sS}, s2, 15")
        A(f"s_lshr_b32 s{sB}, s{sBH}, 3")
        A(f"s_and_b32 s{sH}, s{sBH}, 7")
        A(f"v_lshrrev_b32 v{vA}, 2, v{vLane}")
        A(f"v_lshlrev_b32 v{vB}, 16, v{vA}")
        A(f"v_and_b32 v{vAl}, 3, v{vLane}")
        A(f"v_lshl_add_u32 v{vB}, v{vAl}, 4, v{vB}")
        A(f"v_lshlrev_b32 v{vSl}, 4, v{vA}")
        A(f"s_and_b32 s{sT0}, s{sS}, 7")
        A(f"s_lshl_b32 s{sT0}, s{sT0}, 7")
        A(f"s_lshr_b32 s{sT1}, s{sS}, 3")
        A(f"s_lshl_b32 s{sT1}, s{sT1}, 6")
        A(f"s_add_u32 s{sT0}, s{sT0}, s{sT1}")
        A(f"s_lshl_b32 s{sT1}, s{sH}, 10")
        A(f"s_add_u32 s{sT1}, s{sT1}, s{sT0}")
        A(f"s_lshl_b32 s{sT2}, s{sW}, 20")
        A(f"s_add_u32 s{sT1}, s{sT1}, s{sT2}")
        A(f"s_lshl_b32 s{sT2}, s{sW}, 8")
        A(f"v_lshlrev_b32 v{vLin}, 4, v{vLane}")
        A(f"v_lshrrev_b32 v{vKoff}, 4, v{vLane}")
        A(f"v_lshlrev_b32 v{vKoff}, 6, v{vKoff}")
        A(f"v_lshl_add_u32 v{vKoff}, v{vAl}, 4, v{vKoff}")
        A(f"v_bfe_u32 v{vA}, v{vLane}, 2, 2")
        A(f"v_lshl_add_u32 v{vKoff}, v{vA}, 8, v{vKoff}")
        A(f"v_mov_b32 v{vF}, v{vKoff}")
        A(f"s_lshl_b32 s{sT3}, s{sBH}, 23")
        if self.CK == 0:
            A(f"s_lshl_b32 s{sOff}, s{sS}, 16")
            A(f"s_add_u32 s{sOff}, s{sOff}, {(32768-4096)*256}")
        else:
            A(f"s_lshl_b32 s{sOff}, s{sS}, 19")
        A(f"s_lshl_b32 s{sOff2}, s{sW}, 12")
        A(f"s_add_u32 s{sOff}, s{sOff}, s{sOff2}")
        A(f"s_add_u32 s{sOff2}, s{sOff}, 16384")
        A(f"s_cmp_eq_u32 s{sB}, 0")
        A("s_waitcnt lgkmcnt(0)")
        if self.ts:
            A(f"v_writelane_b32 v{vTS}, s96, 0")
        A(f"s_cselect_b64 {sp(24)}, s[54:55], s[64:65]")
        A(f"s_cselect_b64 {sp(sWO)}, s[56:57], s[66:67]")
        A("s_mov_b32 s26, 0x400000")
        A("s_mov_b32 s27, 0x20000")
        A(f"s_mov_b64 {sp(sX)}, s[48:49]")
        A(f"s_mov_b32 s{sX+2}, 2048")
        A(f"s_mov_b32 s{sX+3}, 0x20000")
        vXd, vWd = DD, slot(R - 1, 0)
        A(f"buffer_load_dwordx4 {vr(vXd,4)}, v{vSl}, {srd(sX)}, s{sT2} offen")
        A(f"buffer_load_dwordx4 {vr(vXd+4,4)}, v{vSl}, {srd(sX)}, s{sT2} offen offset:1024")
        for i in range(8):
            A(f"buffer_load_dwordx4 {vr(vWd+4*i,4)}, v{vB}, {srd(24)}, s{sT1} offen {self.wqpol}")
            if i < 7:
                A(f"s_add_u32 s{sT1}, s{sT1}, 8192")
        A(f"s_load_dword s{sT}, s[74:75], {WS_EPOCH}")
        for (d, src) in ((sFB, 60), (sFA, 50), (sVB, 62), (sVA, 52)):
            A(f"s_add_u32 s{d}, s{src}, s{sT3}")
            A(f"s_addc_u32 s{d+1}, s{src+1}, 0")
        A(f"s_mov_b64 {sp(sF)}, {sp(sFA if self.CK == 0 else sFB)}")
        A(f"s_mov_b32 s{sF+2}, 0x800000")
        A(f"s_mov_b32 s{sF+3}, 0x20000")

        self.fill_pos = 0

        def issue_fill(paced):
            t, i = divmod(self.fill_pos, 8)
            if paced:
                extra = self.qx if P1 <= self.fill_pos < P1 + self.qn else 0
                dq = DQ + extra if self.fill_pos < 8 * R - 4 else self.DE
                A(f"s_waitcnt vmcnt({dq-1})")
            if i == 0 and t == 2 and self.CK == 0:
                A(f"s_mov_b64 {sp(sF)}, {sp(sFB)}")
                A(f"s_lshl_b32 s{sOff}, s{sS}, 19")
                A(f"s_lshl_b32 s{sOff2}, s{sW}, 12")
                A(f"s_add_u32 s{sOff}, s{sOff}, s{sOff2}")
                A(f"s_add_u32 s{sOff2}, s{sOff}, 16384")
            elif i == 0 and t > 0:
                A(f"s_add_u32 s{sOff}, s{sOff}, 32768")
                A(f"s_add_u32 s{sOff2}, s{sOff2}, 32768")
            fetch(t, i)
            self.fill_pos += 1
            if self.ts == 2 and self.fill_pos % 2 == 0:
                self.TS(40 + self.fill_pos // 2)

        for _ in range(F0):
            issue_fill(False)
        A(f"s_getpc_b64 {sp(sPC)}")
        A("L_pc:")
        A(f"s_mov_b32 s{sPC+2}, L_end-L_pc")
        A(f"s_mov_b32 s{sPC+3}, 0x20000")
        A(f"v_mov_b32 v{vx0}, {L_C}")
        A(f"v_mov_b32 v{vM}, 0")
        A(f"v_mov_b32 v{vM+1}, {R*NW}")
        A(f"ds_write_b64 v{vx0}, {vr(vM,2)}")
        for i in range(4):
            A(f"v_mov_b32 v{vS+i}, {SENT:#x}")
        A(f"s_mul_i32 s{sT1}, s{sW}, {NU*512//NW}")
        A(f"v_add_u32 v{vx0}, s{sT1}, v{vLin}")
        for i in range(NU * 512 // NW // 1024):
            A(f"ds_write_b128 v{vx0}, {vr(vS,4)} offset:{L_S+i*1024}")
        A(f"s_mov_b64 {sp(sWS)}, s[74:75]")
        A(f"s_mov_b32 s{sWS+2}, {WS_SIZE}")
        A(f"s_mov_b32 s{sWS+3}, 0x20000")
        A(f"s_mov_b32 s{sC}, {f2u(128 ** -0.5 * 1.4426950408889634):#x}")
        A(f"s_mov_b32 s{sWO+2}, 0x400000")
        A(f"s_mov_b32 s{sWO+3}, 0x20000")
        A(f"s_mov_b64 {sp(sOUT)}, s[70:71]")
        A(f"s_mov_b32 s{sOUT+2}, 2048")
        A(f"s_mov_b32 s{sOUT+3}, 0x20000")
        A(f"s_mov_b32 s{sSelx}, 0x0c0c0400")
        A(f"s_mov_b32 s{sSely}, 0x04000c0c")
        A(f"s_mov_b32 s{sMaskHi}, 0xffffff00")
        A(f"s_mov_b32 s{sQm}, 0x11111111")
        A(f"s_mov_b32 s{sQm+1}, 0x11111111")
        A(f"s_mov_b32 s{sJ}, 0")
        A(f"s_mov_b32 s{sCur}, 0")
        A(f"s_mov_b32 s{sSw}, {NU}")
        A(f"s_mov_b32 s{sSub}, 0")
        A(f"s_mov_b32 s{sSpin}, {self.spin}")
        A(f"s_lshr_b32 s{sRed}, s2, 3")
        A(f"s_xor_b32 s{sRed}, s{sRed}, s2")
        A(f"s_and_b32 s{sRed}, s{sRed}, {self.LC-1}")
        A(f"s_lshl_b32 s{sBase}, s{sS}, 19")
        A(f"s_lshl_b32 s{sAoff}, s{sS}, 16")
        A(f"s_add_u32 s{sAoff}, s{sAoff}, {(32768-4096)*256}")
        A(f"s_mov_b32 s{sCA}, {self.CK}")
        assert (self.CK == 0 or self.CK >= R * NW) and self.CK <= 64 and self.CV <= 64
        A(f"v_and_b32 v{vA}, 1, v{vLane}")
        A(f"v_lshlrev_b32 v{vA}, 4, v{vA}")
        A(f"v_mov_b32 v{vmX}, 0xffff")
        A(f"v_lshlrev_b32 v{vmX}, v{vA}, v{vmX}")
        A(f"v_and_b32 v{vA}, 2, v{vLane}")
        A(f"v_cmp_eq_u32 vcc, 0, v{vA}")
        A(f"v_mov_b32 v{vTkA}, {L_TK}")
        A(f"v_mov_b32 v{vMC}, 0xff7fffff")
        A(f"v_cndmask_b32 v{vmY}, v{vmX}, 0, vcc")
        A(f"v_cndmask_b32 v{vmX}, 0, v{vmX}, vcc")
        A(f"v_lshrrev_b32 v{vA}, 5, v{vLane}")
        A(f"v_lshlrev_b32 v{vA}, 7, v{vA}")
        A(f"v_lshl_add_u32 v{vA}, v{vAl}, 5, v{vA}")
        A(f"v_and_b32 v{vB}, 16, v{vLane}")
        A(f"s_lshl_b32 s{sT1}, s{sW}, 8")
        A(f"v_add3_u32 v{vA}, v{vA}, v{vB}, s{sT1}")
        A("s_waitcnt lgkmcnt(0)")
        A("s_barrier")
        A(f"s_mul_i32 s{sT}, s{sT}, 0x9e3779b1")
        A(f"s_add_u32 s{sT}, s{sT}, 0x7f4a7c15")
        A(f"s_or_b32 s{sT}, s{sT}, 1")
        A(f"v_mov_b32 v{vT}, s{sT}")
        A(f"v_mov_b32 v{vM}, 0xff7fffff")
        A(f"v_mov_b32 v{vL}, 0")
        A(f"s_waitcnt vmcnt({F0+7})")
        self.TS(1)
        acc = vAlt
        xs = 36
        tw = 20
        for b in range(2):
            for j in range(4):
                A(f"v_lshlrev_b32 v{xs+b*8+2*j}, 16, v{vXd+4*b+j}")
                A(f"v_and_b32 v{xs+b*8+2*j+1}, 0xffff0000, v{vXd+4*b+j}")
        for i in range(8):
            if i > 0:
                A(f"s_waitcnt vmcnt({F0+7})")
            issue_fill(False)
            for j in range(4):
                w = vWd + 4 * i + j
                lo, hi = tw + (j & 1) * 2, tw + (j & 1) * 2 + 1
                A(f"v_lshlrev_b32 v{lo}, 16, v{w}")
                A(f"v_and_b32 v{hi}, 0xffff0000, v{w}")
                for b in range(2):
                    op = "v_mul_f32" if i == 0 else "v_fmac_f32"
                    A(f"{op} v{acc+8*b+2*j}, v{lo}, v{xs+8*b+i}")
                    A(f"{op} v{acc+8*b+2*j+1}, v{hi}, v{xs+8*b+i}")
        A("s_nop 1")
        for i in range(8):
            A(f"v_permlane32_swap_b32 v{acc+i}, v{acc+i+8}")
        for i in range(8):
            A(f"v_add_f32 v{acc+i}, v{acc+i}, v{acc+i+8}")
        if self.ex >= 1:
            issue_fill(False)
        A("s_nop 1")
        for i in range(4):
            A(f"v_permlane16_swap_b32 v{acc+i}, v{acc+i+4}")
        for i in range(4):
            A(f"v_add_f32 v{acc+i}, v{acc+i}, v{acc+i+4}")
        A("s_nop 1")
        for i in range(4):
            A(f"v_add_f32_dpp v{acc+i}, v{acc+i}, v{acc+i} row_ror:8 {DPPM}")
        A("s_nop 1")
        for i in range(4):
            A(f"v_add_f32_dpp v{acc+i}, v{acc+i}, v{acc+i} row_ror:4 {DPPM}")
        A("s_mov_b32 exec_lo, 0x000f000f")
        A("s_mov_b32 exec_hi, 0x000f000f")
        A(f"ds_write_b128 v{vA}, {vr(acc,4)} offset:{L_Q}")
        A("s_mov_b64 exec, 1")
        A(f"v_mov_b32 v{vA}, {L_C}")
        A(f"v_mov_b32 v{vB}, 1")
        A("s_waitcnt lgkmcnt(0)")
        A(f"ds_add_rtn_u32 v{vB}, v{vA}, v{vB}")
        A("s_mov_b64 exec, -1")
        if self.ex >= 2:
            issue_fill(False)
        l = self.lab("nopf")
        A(f"s_cmp_lg_u32 s{sW}, {NW-1}")
        A(f"s_cbranch_scc1 {l}")
        A(f"v_lshlrev_b32 v{vx0}, 7, v{vLane}")
        A(f"s_movk_i32 s{sT1}, 0x2000")
        A(f"buffer_load_dword v66, v{vx0}, {srd(sPC)}, 0 offen")
        A(f"buffer_load_dword v67, v{vx0}, {srd(sPC)}, s{sT1} offen")
        A(f"s_movk_i32 s{sT1}, 0x4000")
        A(f"buffer_load_dword v67, v{vx0}, {srd(sPC)}, s{sT1} offen")
        A(f"{l}:")
        A("s_waitcnt lgkmcnt(0)")
        if self.ex >= 3:
            issue_fill(False)
        A(f"v_readfirstlane_b32 s{sT1}, v{vB}")
        l = self.lab("nosvc")
        A(f"v_lshlrev_b32 v{vA}, 2, v{vLane}")
        A("s_nop 2")
        A(f"s_cmp_lg_u32 s{sT1}, {NW-1}")
        A(f"s_cbranch_scc1 {l}")
        for w in range(NW):
            A(f"ds_read_b32 v{acc+w}, v{vA} offset:{L_Q+w*256}")
        A(f"s_lshl_b32 s{sT1}, s{sB}, 4")
        A(f"s_add_u32 s{sT1}, s{sT1}, s{sH}")
        A(f"s_lshl_b32 s{sT1}, s{sT1}, 11")
        A(f"s_lshl_b32 s{sT2}, s{sT0}, 1")
        A(f"s_add_u32 s{sT1}, s{sT1}, s{sT2}")
        A(f"s_add_u32 s{sT1}, s{sT1}, {WS_Q}")
        A(f"v_lshrrev_b32 v{vB}, 5, v{vLane}")
        A(f"v_lshlrev_b32 v{vB}, 14, v{vB}")
        A(f"v_and_b32 v{vA}, 31, v{vLane}")
        A(f"v_lshl_add_u32 v{vB}, v{vA}, 2, v{vB}")
        A("s_waitcnt lgkmcnt(0)")
        A(f"v_add_f32 v{acc}, v{acc}, v{acc+1}")
        A(f"v_add_f32 v{acc+2}, v{acc+2}, v{acc+3}")
        A(f"v_add_f32 v{acc}, v{acc}, v{acc+2}")
        A(f"v_mov_b32 v{acc+13}, v{vT}")
        A(f"v_mov_b32 v{acc+15}, v{vT}")
        A(f"v_mov_b32_dpp v{acc+1}, v{acc} quad_perm:[1,1,3,3] {DPPM}")
        A("s_nop 0")
        A(f"v_cvt_pk_bf16_f32 v{acc+12}, v{acc}, v{acc+1}")
        A("s_nop 1")
        A(f"v_mov_b32_dpp v{acc+14}, v{acc+12} quad_perm:[2,2,2,2] {DPPM}")
        A(f"s_mov_b64 exec, {sp(sQm)}")
        A(f"buffer_store_dwordx4 {vr(acc+12,4)}, v{vB}, {srd(sWS)}, s{sT1} offen sc1")
        A("s_mov_b64 exec, -1")
        self.TS(2)
        A(f"{l}:")
        vQg = DD
        A(f"v_lshlrev_b32 v{vA}, 1, v{vKoff}")
        A(f"s_lshl_b32 s{sT1}, s{sBH}, 11")
        A(f"s_add_u32 s{sT1}, s{sT1}, {WS_Q}")
        A(f"s_add_u32 s{sT2}, s{sT1}, 32768")
        for i in range(8):
            A(f"v_mov_b32 v{vO1+i}, 0")
            A(f"v_mov_b32 v{vAlt+i}, 0")
        A(f"v_mov_b32 v{vAlt+8}, 0xff7fffff")
        A(f"v_mov_b32 v{vAlt+9}, 0")
        A(f"v_mov_b32 v{vAlt+10}, 0xff7fffff")
        for p in range(R):
            if self.CK == 0:
                A(f"s_add_u32 s{sSlot+p}, s{sW}, {64+NW*p if p < 2 else NW*(p-2)}")
            else:
                A(f"s_add_u32 s{sSlot+p}, s{sW}, {NW*p}")

        def q_loads():
            A(f"buffer_load_dwordx4 {vr(vQg,4)}, v{vA}, {srd(sWS)}, s{sT1} offen sc1")
            A(f"buffer_load_dwordx4 {vr(vQg+4,4)}, v{vA}, {srd(sWS)}, s{sT1} offen offset:16 sc1")
            A(f"buffer_load_dwordx4 {vr(vQg+8,4)}, v{vA}, {srd(sWS)}, s{sT2} offen sc1")
            A(f"buffer_load_dwordx4 {vr(vQg+12,4)}, v{vA}, {srd(sWS)}, s{sT2} offen offset:16 sc1")

        def claim():
            A(f"v_mov_b32 v{vTkV}, 1")
            A("s_mov_b64 exec, 1")
            A(f"ds_add_rtn_u32 v{vTkV}, v{vTkA}, v{vTkV}")
            A("s_mov_b64 exec, -1")

        assert 8 * R - P1 >= self.DE and self.DE <= 16
        while self.fill_pos < 8 * R:
            if self.fill_pos == P1:
                q_loads()
            issue_fill(True)
        claim()
        self.TS(3)
        lchk, lok = self.lab("qchk"), self.lab("qok")
        A(f"{lchk}:")
        A(f"v_xor_b32 v{vAl}, v{vQg+1}, v{vT}")
        for i in range(1, 8):
            A(f"v_xor_b32 v{vB}, v{vQg+2*i+1}, v{vT}")
            A(f"v_or_b32 v{vAl}, v{vAl}, v{vB}")
        A(f"v_cmp_ne_u32 vcc, 0, v{vAl}")
        A(f"s_cbranch_vccz {lok}")
        A(f"s_sub_u32 s{sSpin}, s{sSpin}, 1")
        A("s_cbranch_scc1 L_end")
        q_loads()
        A("s_waitcnt vmcnt(0)")
        A(f"s_branch {lchk}")
        A(f"{lok}:")
        for i in range(4):
            A(f"v_mov_b32 v{vQ2+i}, v{vQg+2*i}")
        for i in range(4):
            A(f"v_mov_b32 v{vQ+i}, v{vQg+8+2*i}")
        self.TS(4)

        vWO = slot(1, 0)
        def wo_loads():
            A(f"s_lshl_b32 s{sT1}, s{sH}, 19")
            A(f"s_lshl_b32 s{sT2}, s{sS}, 15")
            A(f"s_add_u32 s{sT1}, s{sT1}, s{sT2}")
            A(f"s_lshl_b32 s{sT2}, s{sW}, 8")
            A(f"s_add_u32 s{sT1}, s{sT1}, s{sT2}")
            A(f"s_add_u32 s{sT2}, s{sT1}, 4096")
            A(f"v_lshrrev_b32 v{vA}, 4, v{vLane}")
            A(f"v_lshlrev_b32 v{vA}, 13, v{vA}")
            A(f"v_and_b32 v{vB}, 15, v{vLane}")
            A(f"v_lshl_add_u32 v{vA}, v{vB}, 4, v{vA}")
            for i in range(8):
                A(f"buffer_load_dwordx4 {vr(vWO+4*i,4)}, v{vA}, {srd(sWO)}, s{(sT1, sT2)[i>>2]} offen offset:{(i&3)*1024} {self.wopol}")

        side = []

        def tile_ts():
            if self.ts:
                A("s_memrealtime s[96:97]")
                A(f"s_min_u32 s{sT1}, s{sJ}, {34 if self.ts == 1 else 20}")
                A(f"s_add_u32 m0, s{sT1}, 16")
                A("s_waitcnt lgkmcnt(0)")
                A(f"v_writelane_b32 v{vTS}, s96, m0")

        def type_check(p, sub, routine):
            l1, l2 = self.lab("sw"), self.lab("swr")
            if sub:
                A(f"s_sub_u32 s{sT1}, s{sSlot+p}, {sub}")
                src = sT1
            else:
                src = sSlot + p
            A(f"s_lshl_b32 s{sT2}, s{src}, 9")
            A(f"v_add_u32 v{vx0}, s{sT2}, v{vSl}")
            A(f"s_lshr_b32 s{sT1}, s{src}, 6")
            A(f"s_cmp_lg_u32 s{sT1}, s{sCur}")
            A(f"s_cbranch_scc1 {l1}")
            A(f"{l2}:")
            side.append([f"{l1}:", f"s_call_b64 {sp(sRet)}, {routine}", f"s_branch {l2}"])

        def decode(p):
            A(f"s_sub_u32 s{sT3}, s{sTk}, s{sSub}")
            A(f"s_sub_u32 s{sT1}, s{sT3}, s{sCA}")
            A(f"s_cselect_b32 s{sT2}, 0, 8")
            A(f"s_sub_u32 s{sT2}, s{sT3}, s{sT2}")
            A(f"s_cmp_lt_u32 s{sT1}, 8")
            A(f"s_cselect_b32 s{sT1}, s{sT1}, s{sT2}")
            A(f"s_cselect_b32 s{sT2}, s{sAoff}, s{sBase}")
            A(f"s_cselect_b32 s{sT3}, 64, 0")
            A(f"s_cselect_b64 {sp(sF)}, {sp(sFA)}, {sp(sFB)}")
            A(f"s_add_u32 s{sT3}, s{sT3}, s{sSub}")
            A(f"s_add_u32 s{sSlot+p}, s{sT3}, s{sT1}")
            A(f"s_lshr_b32 s{sT3}, s{sT1}, 2")
            A(f"s_lshl_b32 s{sT3}, s{sT3}, 15")
            A(f"s_and_b32 s{sT1}, s{sT1}, 3")
            A(f"s_lshl_b32 s{sT1}, s{sT1}, 12")
            A(f"s_add_u32 s{sT2}, s{sT2}, s{sT3}")
            A(f"s_add_u32 s{sOff}, s{sT2}, s{sT1}")
            A(f"s_add_u32 s{sOff2}, s{sOff}, 16384")

        def issue(q, i, pace, pat):
            d = int(pat[i]) if (pat and pace == D) else pace
            A(f"s_waitcnt vmcnt({d-1})")
            if i == 7:
                claim()
            fetch(q, i)

        def kbody(p, q):
            def I(i):
                if q is not None:
                    issue(q, i, D, self.dk)
            for hf in range(2):
                I(4 * hf)
                for b in range(4):
                    A(f"v_mfma_f32_16x16x32_bf16 {vr(DD+4*b,4)}, {vr(slot(p,4*hf+b),4)}, {vr(vQ,4)}, 0")
                I(4 * hf + 1)
                A("s_nop 2" if q is not None else "s_nop 4")
                for b in range(4):
                    d, t = DD + 4 * b, vS + 4 * hf + b
                    A(f"v_mov_b32_dpp v{t}, v{d} quad_perm:[0,0,0,0] {DPPM}")
                    for k in range(1, 4):
                        A(f"v_add_f32_dpp v{t}, v{d+k}, v{t} quad_perm:[{k},{k},{k},{k}] {DPPM}")
                    if b == 0:
                        I(4 * hf + 2)
                    if b == 2:
                        I(4 * hf + 3)
                A(f"s_mov_b64 exec, {sp(sQm)}")
                A(f"ds_write_b128 v{vx0}, {vr(vS+4*hf,4)} offset:{L_S+256*hf}")
                A("s_mov_b64 exec, -1")

        def sread():
            A(f"ds_read_b128 {vr(DD,4)}, v{vx0} offset:{L_S}")
            A(f"ds_read_b128 {vr(DD+4,4)}, v{vx0} offset:{L_S+256}")

        def vbody(p, q, pace):
            def I(i):
                if q is not None:
                    issue(q, i, pace, self.dv)
            lw, lwb = self.lab("nr"), self.lab("nrb")
            I(0)
            A("s_waitcnt lgkmcnt(0)")
            A(f"{lwb}:")
            A(f"v_max3_f32 v{vA}, v{DD}, v{DD+1}, v{DD+2}")
            A(f"v_cmp_eq_u32 vcc, {SENT:#x}, v{DD+3}")
            A(f"v_max3_f32 v{vA}, v{vA}, v{DD+3}, v{DD+4}")
            A(f"s_cbranch_vccnz {lw}")
            A(f"v_cmp_eq_u32 vcc, {SENT:#x}, v{DD+7}")
            A(f"v_max3_f32 v{vA}, v{vA}, v{DD+5}, v{DD+6}")
            A(f"s_cbranch_vccnz {lw}")
            side.append([f"{lw}:", f"s_call_b64 {sp(sRet)}, L_reread", f"s_branch {lwb}"])
            A(f"v_max_f32 v{vA}, v{vA}, v{DD+7}")
            lr, lb = self.lab("rs"), self.lab("rsb")
            A(f"v_cmp_gt_f32 vcc, v{vA}, v{vM}")
            A(f"s_cbranch_vccnz {lr}")
            A(f"{lb}:")
            side.append([f"{lr}:", f"s_call_b64 {sp(sRet)}, L_resc", f"s_branch {lb}"])
            for hf in range(2):
                for b in range(4):
                    A(f"v_fma_f32 v{vt+b}, v{DD+4*hf+b}, s{sC}, -v{vMC}")
                if hf == 0:
                    I(1)
                for b in range(4):
                    A(f"v_exp_f32 v{vt+b}, v{vt+b}")
                if hf == 1:
                    I(5)
                for b in range(4):
                    A(f"v_cvt_pk_bf16_f32 v{vpd+b}, v{vt+b}, v{vt+b}")
                if hf == 0:
                    I(2)
                for b in range(4):
                    A(f"v_and_b32 v{vXY+2*b}, v{vpd+b}, v{vmX}")
                    A(f"v_and_b32 v{vXY+2*b+1}, v{vpd+b}, v{vmY}")
                A(f"v_add_f32 v{vA}, v{vt}, v{vt+1}")
                A(f"v_add_f32 v{vB}, v{vt+2}, v{vt+3}")
                I(3 if hf == 0 else 6)
                for b in range(4):
                    r = slot(p, 4 * hf + b)
                    A(f"v_mfma_f32_16x16x16_bf16 {vr(vO1,4)}, {vr(r,2)}, {vr(vXY+2*b,2)}, {vr(vO1,4)}")
                    A(f"v_mfma_f32_16x16x16_bf16 {vr(vO2,4)}, {vr(r+2,2)}, {vr(vXY+2*b,2)}, {vr(vO2,4)}")
                    if b == 0:
                        A(f"v_add_f32 v{vL}, v{vL}, v{vA}")
                    if b == 1:
                        A(f"v_add_f32 v{vL}, v{vL}, v{vB}")
                I(4 if hf == 0 else 7)

        for p in range(R - 2):
            tile_ts()
            type_check(p, 0, "L_swapq")
            A("s_nop 1")
            kbody(p, None)
            A(f"s_add_u32 s{sJ}, s{sJ}, 1")
        CYC = [(R - 2, R - 3), (R - 1, R - 2), (R - 3, R - 1)]
        A(".p2align 6")
        A("L_kloop:")
        for (p, q) in CYC:
            l1, l2 = self.lab("tov"), self.lab("tovr")
            tile_ts()
            A("s_waitcnt lgkmcnt(0)")
            A(f"v_readfirstlane_b32 s{sTk}, v{vTkV}")
            A(f"s_cmp_ge_u32 s{sSlot+p}, {NU}")
            A(f"s_cbranch_scc1 L_v0_{p}")
            type_check(p, 0, "L_swapq")
            A(f"s_cmp_ge_u32 s{sTk}, s{sSw}")
            A(f"s_cbranch_scc1 {l1}")
            A(f"{l2}:")
            side.append([f"{l1}:", f"s_call_b64 {sp(sRet)}, L_tov", f"s_branch {l2}"])
            decode(q)
            kbody(p, q)
            A(f"s_add_u32 s{sJ}, s{sJ}, 1")
        A("s_branch L_kloop")
        for (p, q) in CYC:
            A(f"L_v0_{p}:")
            A(f"s_mov_b32 s{sCur}, 0")
            A(f"s_branch L_vina{p}")
        for (ln, pace) in (("a", D), ("b", DF)):
            if ln == "b" and not self.fm:
                break
            A(f"L_vloop{ln}:")
            for (p, q) in CYC:
                tile_ts()
                A("s_waitcnt lgkmcnt(0)")
                A(f"v_readfirstlane_b32 s{sTk}, v{vTkV}")
                A(f"L_vin{ln}{p}:")
                type_check(p, NU, "L_swap")
                sread()
                A(f"s_cmp_ge_u32 s{sTk}, {2*NU}")
                A(f"s_cbranch_scc1 L_fdrain{p}")
                decode(q)
                if self.fm and ln == "a":
                    A(f"s_cmp_ge_u32 s{sTk}, {2*NU-self.KF}")
                    A(f"s_cbranch_scc1 L_vgob{p}")
                A(f"L_vgo{ln}{p}:")
                vbody(p, q, pace)
                A(f"s_add_u32 s{sJ}, s{sJ}, 1")
            A(f"s_branch L_vloop{ln}")
        assert max(D, DF) <= 8
        for (p, q) in CYC:
            A(f"L_fdrain{p}:")
            A(f"s_mov_b32 s{sDrain}, 1")
            if self.wod:
                A(f"s_call_b64 {sp(sRet)}, L_wo")
            A(f"s_branch L_dgo{p}")
        A("L_dloop:")
        for (p, q) in CYC:
            tile_ts()
            A(f"s_sub_u32 s{sDrain}, s{sDrain}, 1")
            A("s_cbranch_scc1 L_exit")
            type_check(p, NU, "L_swap")
            sread()
            A("s_waitcnt vmcnt(8)" if self.wod else "s_waitcnt vmcnt(0)")
            A(f"L_dgo{p}:")
            vbody(p, None, None)
            A(f"s_add_u32 s{sJ}, s{sJ}, 1")
        A("s_branch L_dloop")

        for piece in side:
            for ln in piece:
                A(ln)

        A("L_tov:")
        A(f"s_mov_b64 {sp(sFB)}, {sp(sVB)}")
        A(f"s_mov_b64 {sp(sFA)}, {sp(sVA)}")
        A(f"s_mov_b32 s{sSub}, {NU}")
        A(f"s_mov_b32 s{sCA}, {self.CV}")
        A(f"s_mov_b32 s{sSw}, 0x7fffffff")
        A(f"v_mov_b32 v{vF}, v{vLin}")
        A(f"s_setpc_b64 {sp(sRet)}")

        if self.wod:
            A("L_wo:")
            wo_loads()
            A(f"s_setpc_b64 {sp(sRet)}")

        A("L_swapq:")
        A(f"s_xor_b32 s{sCur}, s{sCur}, 1")
        for i in range(4):
            A(f"v_swap_b32 v{vQ+i}, v{vQ2+i}")
        A(f"s_setpc_b64 {sp(sRet)}")

        A("L_swap:")
        A("s_nop 3")
        A(f"s_xor_b32 s{sCur}, s{sCur}, 1")
        for i in range(3):
            A(f"v_swap_b32 v{vM+i}, v{vAlt+8+i}")
        for i in range(8):
            A(f"v_swap_b32 v{vO1+i}, v{vAlt+i}")
        A(f"s_setpc_b64 {sp(sRet)}")

        A("L_reread:")
        A(f"s_sub_u32 s{sSpin}, s{sSpin}, 1")
        A("s_cbranch_scc1 L_end")
        sread()
        A("s_waitcnt lgkmcnt(0)")
        A(f"s_setpc_b64 {sp(sRet)}")

        A("L_resc:")
        A(f"v_max_f32 v{vA}, v{vA}, v{vM}")
        A(f"v_mov_b32 v{vB}, v{vA}")
        A("s_nop 1")
        A(f"v_permlane16_swap_b32 v{vA}, v{vB}")
        A(f"v_max_f32 v{vA}, v{vA}, v{vB}")
        A(f"v_mov_b32 v{vB}, v{vA}")
        A("s_nop 1")
        A(f"v_permlane32_swap_b32 v{vA}, v{vB}")
        A(f"v_max_f32 v{vM}, v{vA}, v{vB}")
        A(f"v_mul_f32 v{vA}, s{sC}, v{vM}")
        A(f"v_sub_f32 v{vAl}, v{vMC}, v{vA}")
        A(f"v_exp_f32 v{vAl}, v{vAl}")
        A(f"v_mov_b32 v{vMC}, v{vA}")
        for i in range(8):
            A(f"v_mul_f32 v{vO1+i}, v{vO1+i}, v{vAl}")
        A(f"v_mul_f32 v{vL}, v{vL}, v{vAl}")
        A(f"s_setpc_b64 {sp(sRet)}")

        A("L_exit:")
        self.TS(5)
        L2 = vAlt + 9
        A(f"v_mov_b32 v{vB}, v{vL}")
        A(f"v_mov_b32 v{vAl}, v{L2}")
        A(f"s_mul_i32 s{sT1}, s{sW}, {W_STR}")
        A(f"s_mul_i32 s{sT2}, s{sCur}, {NW*W_STR}")
        A(f"v_permlane16_swap_b32 v{vL}, v{vB}")
        A(f"v_permlane16_swap_b32 v{L2}, v{vAl}")
        A(f"v_add_f32 v{vL}, v{vL}, v{vB}")
        A(f"v_add_f32 v{L2}, v{L2}, v{vAl}")
        A(f"v_mov_b32 v{vB}, v{vL}")
        A(f"v_mov_b32 v{vAl}, v{L2}")
        A(f"s_add_u32 s{sT3}, s{sT1}, s{sT2}")
        A(f"s_sub_u32 s{sT1}, s{sT1}, s{sT2}")
        A(f"s_add_u32 s{sT1}, s{sT1}, {NW*W_STR}")
        A(f"v_permlane32_swap_b32 v{vL}, v{vB}")
        A(f"v_permlane32_swap_b32 v{L2}, v{vAl}")
        A(f"v_add_f32 v{vL}, v{vL}, v{vB}")
        A(f"v_add_f32 v{L2}, v{L2}, v{vAl}")
        A(f"v_add_u32 v{vA}, s{sT1}, v{vLin}")
        A(f"v_add_u32 v{vAl}, s{sT3}, v{vLin}")
        A(f"ds_write_b128 v{vA}, {vr(vO1,4)} offset:{L_O}")
        A(f"ds_write_b128 v{vA}, {vr(vO2,4)} offset:{L_O+U_STR}")
        A(f"ds_write_b128 v{vAl}, {vr(vAlt,4)} offset:{L_O}")
        A(f"ds_write_b128 v{vAl}, {vr(vAlt+4,4)} offset:{L_O+U_STR}")
        A(f"s_lshl_b32 s{sT1}, s{sW}, 3")
        A(f"s_lshl_b32 s{sT2}, s{sCur}, 7")
        A(f"s_add_u32 s{sT3}, s{sT1}, s{sT2}")
        A(f"s_sub_u32 s{sT1}, s{sT1}, s{sT2}")
        A(f"s_add_u32 s{sT1}, s{sT1}, 128")
        A(f"v_bfe_u32 v{vB}, v{vLane}, 2, 2")
        A(f"v_lshlrev_b32 v{vB}, 5, v{vB}")
        A(f"v_add_u32 v{vA}, s{sT1}, v{vB}")
        A(f"v_add_u32 v{vAl}, s{sT3}, v{vB}")
        A("s_mov_b64 exec, 0x1111")
        A(f"ds_write_b64 v{vA}, {vr(vM,2)} offset:{L_ML}")
        A(f"ds_write_b64 v{vAl}, {vr(vAlt+8,2)} offset:{L_ML}")
        A("s_mov_b64 exec, -1")
        if not self.wod:
            wo_loads()
        vG = slot(R - 2, 0)
        l = self.lab("nogate")
        A(f"s_lshl_b32 s{sT1}, s{sRed}, 3")
        A(f"s_or_b32 s{sT1}, s{sT1}, s{sW}")
        A(f"s_cmp_lg_u32 s{sT1}, 3")
        A(f"s_cbranch_scc1 {l}")
        A(f"s_lshl_b32 s{sT1}, s2, 7")
        A(f"s_and_b32 s{sT1}, s{sT1}, 1024")
        A(f"buffer_load_dwordx4 {vr(vG,4)}, v{vLin}, {srd(sX)}, s{sT1} offen")
        A(f"global_load_dwordx4 {vr(vG+4,4)}, v{vLin}, s[68:69]")
        A(f"{l}:")
        ml = RING
        od = RING + 8
        A(f"s_lshr_b32 s{sT1}, s{sW}, 1")
        A(f"s_and_b32 s{sT2}, s{sW}, 1")
        A(f"s_lshl_b32 s{sT3}, s{sT1}, 7")
        A(f"v_bfe_u32 v{vB}, v{vLane}, 3, 2")
        A(f"v_lshlrev_b32 v{vB}, 5, v{vB}")
        A(f"v_add_u32 v{vB}, s{sT3}, v{vB}")
        A(f"s_mul_i32 s{sT3}, s{sT1}, {NW*W_STR}")
        A(f"s_lshl_b32 s{sT0}, s{sT2}, 9")
        A(f"s_add_u32 s{sT3}, s{sT3}, s{sT0}")
        A(f"v_lshrrev_b32 v{vA}, 3, v{vLane}")
        A(f"v_lshlrev_b32 v{vA}, 6, v{vA}")
        A(f"v_and_b32 v{vAl}, 3, v{vLane}")
        A(f"v_lshl_add_u32 v{vA}, v{vAl}, 4, v{vA}")
        A(f"v_bfe_u32 v{vAl}, v{vLane}, 2, 1")
        A(f"v_mul_u32_u24 v{vAl}, {U_STR}, v{vAl}")
        A(f"v_add3_u32 v{vA}, v{vA}, v{vAl}, s{sT3}")
        A(f"s_lshl_b32 s{sIdx}, s{sT1}, 8")
        A(f"s_add_u32 s{sIdx}, s{sIdx}, s2")
        A(f"s_lshl_b32 s{sT3}, s{sIdx}, 11")
        A(f"s_lshl_b32 s{sT0}, s{sT2}, 10")
        A(f"s_add_u32 s{sT3}, s{sT3}, s{sT0}")
        A(f"s_add_u32 s{sT3}, s{sT3}, {WS_PO}")
        A(f"s_lshl_b32 s{sT0}, s{sIdx}, 7")
        A(f"s_add_u32 s{sT0}, s{sT0}, {WS_PML}")
        tb = DD
        A(f"v_and_b32 v{tb}, 0xff, v{vT}")
        A(f"v_bfe_u32 v{tb+1}, v{vT}, 8, 8")
        A(f"v_bfe_u32 v{tb+2}, v{vT}, 16, 8")
        A(f"v_lshrrev_b32 v{tb+3}, 24, v{vT}")
        Mx, Ls = DD + 4, DD + 5
        res = DD + 8
        A(f"v_mov_b32 v{DD+6}, v{vT}")
        A(f"v_mov_b32 v{DD+7}, v{vT}")
        A(f"v_lshlrev_b32 v{vx0}, 1, v{vLane}")
        A("s_waitcnt lgkmcnt(0)")
        A("s_barrier")
        self.TS(6)
        for i in range(2):
            A(f"ds_read_b128 {vr(ml+4*i,4)}, v{vB} offset:{L_ML+16*i}")
        for w in range(NW):
            A(f"ds_read_b128 {vr(od+4*w,4)}, v{vA} offset:{L_O+W_STR*w}")
        A("s_waitcnt lgkmcnt(4)")
        A(f"v_max3_f32 v{Mx}, v{ml}, v{ml+2}, v{ml+4}")
        A(f"v_max_f32 v{Mx}, v{Mx}, v{ml+6}")
        A(f"v_mul_f32 v{vAl}, s{sC}, v{Mx}")
        for w in range(NW):
            A(f"v_fma_f32 v{ml+2*w}, v{ml+2*w}, s{sC}, -v{vAl}")
        for w in range(NW):
            A(f"v_exp_f32 v{ml+2*w}, v{ml+2*w}")
        A("s_waitcnt lgkmcnt(0)")
        for i in range(4):
            A(f"v_mul_f32 v{res+i}, v{ml}, v{od+i}")
        for w in range(1, NW):
            for i in range(4):
                A(f"v_fmac_f32 v{res+i}, v{ml+2*w}, v{od+4*w+i}")
        for i in range(4):
            A(f"v_and_or_b32 v{res+i}, v{res+i}, s{sMaskHi}, v{tb+i}")
        A(f"buffer_store_dwordx4 {vr(res,4)}, v{vLin}, {srd(sWS)}, s{sT3} offen sc1")
        l = self.lab("noml")
        A(f"s_cmp_lg_u32 s{sT2}, 0")
        A(f"s_cbranch_scc1 {l}")
        A(f"v_mul_f32 v{Ls}, v{ml}, v{ml+1}")
        for w in range(1, NW):
            A(f"v_fmac_f32 v{Ls}, v{ml+2*w}, v{ml+2*w+1}")
        A("s_mov_b32 exec_lo, 0x01010101")
        A("s_mov_b32 exec_hi, 0x01010101")
        A(f"buffer_store_dwordx4 {vr(Mx,4)}, v{vx0}, {srd(sWS)}, s{sT0} offen sc1")
        A("s_mov_b64 exec, -1")
        A(f"{l}:")
        self.TS(7)

        def tagcheck(regs, extra):
            n = 0
            for r in regs:
                A(f"v_perm_b32 v{vD+n}, v{r+1}, v{r}, s{sSelx}")
                A(f"v_perm_b32 v{vD+n+1}, v{r+3}, v{r+2}, s{sSely}")
                A(f"v_or_b32 v{vD+n}, v{vD+n}, v{vD+n+1}")
                A(f"v_xor_b32 v{vD+n}, v{vD+n}, v{vT}")
                n += 1
            for r in extra:
                A(f"v_xor_b32 v{vD+n}, v{r}, v{vT}")
                n += 1
            for i in range(1, n):
                A(f"v_or_b32 v{vD}, v{vD}, v{vD+i}")
            A(f"v_cmp_ne_u32 vcc, 0, v{vD}")

        def poll(loads, check, delay, lane0=None):
            lp, lok = self.lab("poll"), self.lab("pok")
            if delay:
                A(f"s_sleep {delay}")
            if self.ts == 1 and lane0:
                A(f"s_mov_b32 s{sJ2}, {lane0}")
            A(f"{lp}:")
            if self.ts == 1 and lane0:
                A("s_memrealtime s[96:97]")
                A(f"s_min_u32 m0, s{sJ2}, {lane0+4}")
                A(f"s_add_u32 s{sJ2}, s{sJ2}, 1")
                A("s_waitcnt lgkmcnt(0)")
                A(f"v_writelane_b32 v{vTS}, s96, m0")
            loads()
            A("s_mov_b64 exec, -1")
            A(f"s_sub_u32 s{sSpin}, s{sSpin}, 1")
            A("s_cbranch_scc1 L_end")
            A("s_waitcnt vmcnt(0)")
            check()
            A(f"s_cbranch_vccz {lok}")
            A("s_mov_b64 exec, vcc")
            A(f"s_branch {lp}")
            A(f"{lok}:")

        def xreduce(regs, op, tmp):
            A("s_nop 1")
            for r in regs:
                A(f"{op}_dpp v{r}, v{r}, v{r} row_ror:8 {DPPM}")
            for sw in ("v_permlane16_swap_b32", "v_permlane32_swap_b32"):
                for i, r in enumerate(regs):
                    A(f"v_mov_b32 v{tmp+i}, v{r}")
                A("s_nop 1")
                for i, r in enumerate(regs):
                    A(f"{sw} v{r}, v{tmp+i}")
                for i, r in enumerate(regs):
                    A(f"{op} v{r}, v{r}, v{tmp+i}")

        A(f"s_cmp_eq_u32 s{sT2}, 0")
        A("s_cbranch_scc1 L_t3")
        oa, obb, mla, mlb = RING, RING + 4, RING + 8, RING + 12
        A(f"s_lshl_b32 s{sT1}, s{sT1}, 7")
        A(f"s_lshl_b32 s{sT2}, s{sB}, 8")
        A(f"s_add_u32 s{sT1}, s{sT1}, s{sT2}")
        A(f"s_lshl_b32 s{sT2}, s{sH}, 4")
        A(f"s_add_u32 s{sT1}, s{sT1}, s{sT2}")
        A(f"s_and_b32 s{sT2}, s{sS}, 3")
        A(f"s_lshl_b32 s{sT2}, s{sT2}, 9")
        A(f"s_lshr_b32 s{sT3}, s{sS}, 2")
        A(f"s_lshl_b32 s{sT0}, s{sT3}, 7")
        A(f"s_add_u32 s{sT2}, s{sT2}, s{sT0}")
        A(f"s_lshl_b32 s{sT0}, s{sT1}, 11")
        A(f"s_add_u32 s{sT2}, s{sT2}, s{sT0}")
        A(f"s_add_u32 s{sT2}, s{sT2}, {WS_PO}")
        A(f"s_add_u32 s{sIdx}, s{sT2}, 16384")
        A(f"s_lshl_b32 s{sT1}, s{sT1}, 7")
        A(f"s_lshl_b32 s{sT3}, s{sT3}, 4")
        A(f"s_add_u32 s{sT1}, s{sT1}, s{sT3}")
        A(f"s_add_u32 s{sT1}, s{sT1}, {WS_PML}")
        A(f"v_lshrrev_b32 v{vB}, 3, v{vLane}")
        A(f"v_lshlrev_b32 v{vA}, 11, v{vB}")
        A(f"v_and_b32 v{vAl}, 7, v{vLane}")
        A(f"v_lshl_add_u32 v{vA}, v{vAl}, 4, v{vA}")
        A(f"v_lshlrev_b32 v{vB}, 7, v{vB}")

        def h1loads():
            A(f"buffer_load_dwordx4 {vr(mla,4)}, v{vB}, {srd(sWS)}, s{sT1} offen sc1")
            A(f"buffer_load_dwordx4 {vr(mlb,4)}, v{vB}, {srd(sWS)}, s{sT1} offen offset:1024 sc1")
            A(f"buffer_load_dwordx4 {vr(oa,4)}, v{vA}, {srd(sWS)}, s{sT2} offen sc1")
            A(f"buffer_load_dwordx4 {vr(obb,4)}, v{vA}, {srd(sWS)}, s{sIdx} offen sc1")
        poll(h1loads, lambda: tagcheck([oa, obb], [mla + 2, mlb + 2]), self.d1, 51)
        self.TS(8)
        Mg = vD
        A(f"v_max_f32 v{Mg}, v{mla}, v{mlb}")
        xreduce([Mg], "v_max_f32", vD + 8)
        A(f"v_mul_f32 v{Mg}, s{sC}, v{Mg}")
        A(f"v_fma_f32 v{mla}, v{mla}, s{sC}, -v{Mg}")
        A(f"v_fma_f32 v{mlb}, v{mlb}, s{sC}, -v{Mg}")
        A(f"v_exp_f32 v{mla}, v{mla}")
        A(f"v_exp_f32 v{mlb}, v{mlb}")
        A(f"s_lshr_b32 s{sT1}, s{sW}, 1")
        A(f"v_mul_f32 v{vD+1}, v{mla}, v{mla+1}")
        A(f"v_fmac_f32 v{vD+1}, v{mlb}, v{mlb+1}")
        for i in range(4):
            A(f"v_mul_f32 v{vD+2+i}, v{mla}, v{oa+i}")
        for i in range(4):
            A(f"v_fmac_f32 v{vD+2+i}, v{mlb}, v{obb+i}")
        xreduce([vD + 1 + i for i in range(5)], "v_add_f32", vD + 8)
        A(f"v_rcp_f32 v{vD+1}, v{vD+1}")
        A(f"s_lshl_b32 s{sT1}, s{sT1}, 7")
        A(f"v_lshlrev_b32 v{vA}, 2, v{vAl}")
        A(f"v_add_u32 v{vA}, s{sT1}, v{vA}")
        for i in range(4):
            A(f"v_mul_f32 v{vD+2+i}, v{vD+2+i}, v{vD+1}")
        for i in range(4):
            A(f"v_cvt_pk_bf16_f32 v{vD+2+i}, v{vD+2+i}, v{vD+2+i}")
        A("s_mov_b64 exec, 0xff")
        for i in range(4):
            A(f"ds_write_b32 v{vA}, v{vD+2+i} offset:{L_OF+32*i}")
        A("s_mov_b64 exec, -1")

        A("L_t3:")
        mk = 52
        A(f"v_and_b32 v{vA}, 1, v{vLane}")
        A(f"v_lshlrev_b32 v{vA}, 4, v{vA}")
        A(f"v_mov_b32 v{vB}, 0xffff")
        A(f"v_lshlrev_b32 v{vB}, v{vA}, v{vB}")
        A(f"v_bfe_u32 v{vA}, v{vLane}, 1, 2")
        for j in range(4):
            A(f"v_cmp_eq_u32 vcc, {j}, v{vA}")
            A("s_nop 1")
            A(f"v_cndmask_b32 v{mk+j}, 0, v{vB}, vcc")
        A(f"v_bfe_u32 v{vA}, v{vLane}, 3, 1")
        A(f"v_lshlrev_b32 v{vA}, 7, v{vA}")
        A(f"v_lshrrev_b32 v{vB}, 4, v{vLane}")
        A(f"v_lshl_add_u32 v{vA}, v{vB}, 5, v{vA}")
        A(f"s_lshl_b32 s{sT3}, s{sW}, 10")
        A(f"s_lshl_b32 s{sT0}, s2, 12")
        A(f"s_add_u32 s{sT3}, s{sT3}, s{sT0}")
        A(f"s_add_u32 s{sT3}, s{sT3}, {WS_C}")
        A("s_waitcnt vmcnt(0) lgkmcnt(0)")
        A("s_barrier")
        ob = RING
        bo = slot(2, 0)
        A(f"ds_read_b128 {vr(ob,4)}, v{vA} offset:{L_OF}")
        A(f"ds_read_b128 {vr(ob+4,4)}, v{vA} offset:{L_OF+16}")
        for i in range(8):
            if i == 0:
                A("s_waitcnt lgkmcnt(1)")
            if i == 4:
                A("s_waitcnt lgkmcnt(0)")
            for j in range(4):
                A(f"v_and_b32 v{bo+4*i+j}, v{ob+i}, v{mk+j}")
            if i > 0:
                c = "0" if i == 1 else vr(res, 4)
                A(f"v_mfma_f32_16x16x32_bf16 {vr(res,4)}, {vr(vWO+4*(i-1),4)}, {vr(bo+4*(i-1),4)}, {c}")
        A("s_nop 0")
        A(f"v_mfma_f32_16x16x32_bf16 {vr(res,4)}, {vr(vWO+28,4)}, {vr(bo+28,4)}, {vr(res,4)}")
        A("s_nop 7")
        for i in range(4):
            A(f"v_and_or_b32 v{res+i}, v{res+i}, s{sMaskHi}, v{tb+i}")
        A(f"buffer_store_dwordx4 {vr(res,4)}, v{vLin}, {srd(sWS)}, s{sT3} offen sc1")
        self.TS(9)

        LC = self.LC
        lg = LC.bit_length() - 1
        if self.ts:
            la = self.lab("ack")
            A(f"s_cmp_eq_u32 s{sRed}, 0")
            A(f"s_cbranch_scc1 {la}")
            A("s_waitcnt vmcnt(0)")
            self.TS(61)
            A(f"{la}:")
        A(f"s_cmp_lg_u32 s{sRed}, 0")
        A("s_cbranch_scc1 L_fin")
        ca = RING
        A(f"s_lshr_b32 s{sT1}, s2, 3")
        A(f"s_lshl_b32 s{sT2}, s{sT1}, 7")
        A(f"s_lshl_b32 s{sT3}, s{sW}, 18")
        A(f"s_add_u32 s{sT2}, s{sT2}, s{sT3}")
        A(f"s_and_b32 s{sIdx}, s2, {8-LC}")
        A(f"s_lshl_b32 s{sT3}, s{sIdx}, 4")
        A(f"s_add_u32 s{sT2}, s{sT2}, s{sT3}")
        A(f"s_add_u32 s{sT2}, s{sT2}, {WS_C}")
        A(f"v_lshrrev_b32 v{vA}, {lg}, v{vLane}")
        A(f"v_lshlrev_b32 v{vA}, 12, v{vA}")
        A(f"v_and_b32 v{vB}, {LC-1}, v{vLane}")
        A(f"v_lshl_add_u32 v{vA}, v{vB}, 4, v{vA}")
        for k in range(LC):
            A(f"s_add_u32 s{12+k}, s{sT2}, {k*(64//LC)*4096}")
        l = self.lab("nog2")
        A(f"s_cmp_lg_u32 s{sW}, 3")
        A(f"s_cbranch_scc1 {l}")
        g0 = slot(4, 0)
        for j in range(4):
            A(f"v_lshlrev_b32 v{g0+4*j}, 16, v{vG+j}")
            A(f"v_and_b32 v{g0+4*j+1}, 0xffff0000, v{vG+j}")
            A(f"v_lshlrev_b32 v{g0+4*j+2}, 16, v{vG+4+j}")
            A(f"v_and_b32 v{g0+4*j+3}, 0xffff0000, v{vG+4+j}")
        for j in range(4):
            A(f"v_mul_f32 v{g0+4*j}, v{g0+4*j}, v{g0+4*j+2}")
            A(f"v_mul_f32 v{g0+4*j+1}, v{g0+4*j+1}, v{g0+4*j+3}")
        for j in range(4):
            A(f"v_cvt_pk_bf16_f32 v{g0+4*j}, v{g0+4*j}, v{g0+4*j+1}")
        for j in range(4):
            A(f"v_and_b32 v{g0+4*j+1}, 0xffff0000, v{g0+4*j}")
            A(f"v_lshlrev_b32 v{g0+4*j}, 16, v{g0+4*j}")
        for j in range(4):
            A(f"v_add_f32 v{g0+4*j}, v{g0+4*j}, v{g0+4*j+1}")
        A(f"v_add_f32 v{g0}, v{g0}, v{g0+4}")
        A(f"v_add_f32 v{g0+8}, v{g0+8}, v{g0+12}")
        A(f"v_add_f32 v{g0}, v{g0}, v{g0+8}")
        for ror in (1, 2, 4):
            A("s_nop 1")
            A(f"v_add_f32_dpp v{g0}, v{g0}, v{g0} row_ror:{ror} {DPPM}")
        xreduce([g0], "v_add_f32", g0 + 1)
        A(f"v_cvt_pk_bf16_f32 v{g0}, v{g0}, v{g0}")
        A(f"v_and_b32 v{g0}, 0xffff0000, v{g0}")
        A(f"v_mul_f32 v{g0}, {f2u(-1.4426950408889634):#x}, v{g0}")
        A(f"v_exp_f32 v{g0}, v{g0}")
        A("s_nop 0")
        A(f"v_add_f32 v{g0}, 1.0, v{g0}")
        A(f"v_rcp_f32 v{g0}, v{g0}")
        A("s_nop 0")
        A(f"v_cvt_pk_bf16_f32 v{g0}, v{g0}, v{g0}")
        A(f"v_and_b32 v{g0}, 0xffff0000, v{g0}")
        A(f"v_mov_b32 v{g0+1}, {L_G}")
        A("s_mov_b64 exec, 1")
        A(f"ds_write_b32 v{g0+1}, v{g0}")
        A("s_mov_b64 exec, -1")
        A(f"{l}:")

        def h2loads():
            for k in range(LC):
                A(f"buffer_load_dwordx4 {vr(ca+4*k,4)}, v{vA}, {srd(sWS)}, s{12+k} offen sc1")
        poll(h2loads, lambda: tagcheck([ca + 4 * k for k in range(LC)], []), self.d2, 56)
        self.TS(10)
        st = 2 * LC
        while st >= 4:
            for i in range(st):
                A(f"v_add_f32 v{ca+i}, v{ca+i}, v{ca+st+i}")
            st //= 2
        A("s_nop 1")
        A(f"v_permlane32_swap_b32 v{ca}, v{ca+2}")
        A(f"v_permlane32_swap_b32 v{ca+1}, v{ca+3}")
        A(f"v_add_f32 v{ca}, v{ca}, v{ca+2}")
        A(f"v_add_f32 v{ca+1}, v{ca+1}, v{ca+3}")
        A("s_nop 1")
        A(f"v_permlane16_swap_b32 v{ca}, v{ca+1}")
        A(f"v_add_f32 v{ca}, v{ca}, v{ca+1}")
        A(f"v_lshrrev_b32 v{vA}, 4, v{vLane}")
        A(f"v_lshlrev_b32 v{vA}, 5, v{vA}")
        A(f"v_add_f32_dpp v{ca}, v{ca}, v{ca} row_ror:8 {DPPM}")
        A(f"v_lshl_add_u32 v{vA}, v{vB}, 2, v{vA}")
        A(f"s_lshl_b32 s{sT2}, s{sW}, 7")
        ror = 4
        while ror >= LC:
            A(f"v_add_f32_dpp v{ca}, v{ca}, v{ca} row_ror:{ror} {DPPM}")
            A("s_nop 1")
            ror //= 2
        A(f"v_add_u32 v{vA}, s{sT2}, v{vA}")
        m16 = (1 << LC) - 1
        A(f"s_mov_b32 exec_lo, {m16 | (m16 << 16):#x}")
        A(f"s_mov_b32 exec_hi, {m16 | (m16 << 16):#x}")
        A(f"ds_write_b32 v{vA}, v{ca} offset:{L_R}")
        A("s_mov_b64 exec, -1")
        A(f"v_and_b32 v{vB}, 31, v{vLane}")
        A(f"v_lshlrev_b32 v{vA}, 2, v{vB}")
        A(f"v_add_u32 v{vAl}, {L_R}, v{vA}")
        A(f"v_mov_b32 v{vD}, {L_G}")
        A(f"s_lshr_b32 s{sT2}, s{sT1}, 1")
        A(f"s_lshl_b32 s{sT2}, s{sT2}, 6")
        A(f"s_and_b32 s{sT3}, s{sT1}, 1")
        A(f"s_lshl_b32 s{sT3}, s{sT3}, 10")
        A(f"s_add_u32 s{sT2}, s{sT2}, s{sT3}")
        A(f"s_lshl_b32 s{sT3}, s{sIdx}, 1")
        A(f"s_add_u32 s{sT2}, s{sT2}, s{sT3}")
        A(f"v_lshlrev_b32 v{vA}, 1, v{vB}")
        A("s_waitcnt lgkmcnt(0)")
        A("s_barrier")
        A(f"s_cmp_lg_u32 s{sW}, 0")
        A("s_cbranch_scc1 L_fin")
        fa = RING
        for w in range(2):
            A(f"ds_read2_b32 {vr(fa+2*w,2)}, v{vAl} offset0:{w*32} offset1:{w*32+64}")
        A(f"ds_read_b32 v{vD}, v{vD}")
        A("s_waitcnt lgkmcnt(0)")
        A(f"v_add_f32 v{fa}, v{fa}, v{fa+2}")
        A(f"v_add_f32 v{fa+1}, v{fa+1}, v{fa+3}")
        A(f"v_sub_f32 v{vD+1}, 1.0, v{vD}")
        A(f"v_cvt_pk_bf16_f32 v{fa}, v{fa}, v{fa+1}")
        A(f"v_cvt_pk_bf16_f32 v{vD+1}, v{vD+1}, v{vD+1}")
        A(f"v_and_b32 v{fa+1}, 0xffff0000, v{fa}")
        A(f"v_lshlrev_b32 v{fa}, 16, v{fa}")
        A(f"v_and_b32 v{vD+1}, 0xffff0000, v{vD+1}")
        A(f"v_mul_f32 v{fa}, v{fa}, v{vD}")
        A(f"v_mul_f32 v{fa+1}, v{fa+1}, v{vD+1}")
        A(f"v_cvt_pk_bf16_f32 v{fa}, v{fa}, v{fa+1}")
        A(f"v_and_b32 v{fa+1}, 0xffff0000, v{fa}")
        A(f"v_lshlrev_b32 v{fa}, 16, v{fa}")
        A(f"v_add_f32 v{fa}, v{fa}, v{fa+1}")
        A(f"v_cvt_pk_bf16_f32 v{fa}, v{fa}, v{fa}")
        A("s_mov_b32 exec_hi, 0")
        A(f"s_mov_b32 exec_lo, {m16 * 0x01010101:#x}")
        A(f"buffer_store_short v{fa}, v{vA}, {srd(sOUT)}, s{sT2} offen")
        A("s_cmp_lg_u32 s2, 0")
        A("s_cbranch_scc1 L_fin")
        A("s_mov_b64 exec, 1")
        A(f"v_mov_b32 v{vA}, {WS_EPOCH}")
        A(f"buffer_store_dword v{vT}, v{vA}, {srd(sWS)}, 0 offen sc1")
        A("L_fin:")
        if self.ts:
            A("s_mov_b64 exec, -1")
            self.TS(11)
            A(f"v_writelane_b32 v{vTS}, s{sJ}, 12")
            A("s_getreg_b32 s96, hwreg(HW_REG_XCC_ID)")
            A("s_nop 0")
            A(f"v_writelane_b32 v{vTS}, s96, 13")
            A(f"s_sub_u32 s96, {self.spin}, s{sSpin}")
            A(f"v_writelane_b32 v{vTS}, s96, 14")
            A(f"s_lshl_b32 s{sT1}, s2, 2")
            A(f"s_add_u32 s{sT1}, s{sT1}, s{sW}")
            A(f"s_lshl_b32 s{sT1}, s{sT1}, 8")
            A(f"s_add_u32 s{sT1}, s{sT1}, {WS_TS}")
            A(f"v_lshlrev_b32 v{vA}, 2, v{vLane}")
            A(f"buffer_store_dword v{vTS}, v{vA}, {srd(sWS)}, s{sT1} offen")
        A("L_end:")
        A("s_endpgm")
        body_txt = "\n".join(self.L)
        out = HDR + f"; @launch grid=(256,1,1) block=({64*NW},1,1) lds={LDS_BYTES}\n"
        out += '.amdgcn_target "amdgcn-amd-amdhsa--gfx950"\n.text\n'
        out += f".globl {name}\n.p2align 8\n.type {name},@function\n" + body_txt + "\n"
        out += f""".section .rodata,"a"
.p2align 6
.amdhsa_kernel {name}
  .amdhsa_next_free_vgpr 264
  .amdhsa_next_free_sgpr 102
  .amdhsa_accum_offset 256
  .amdhsa_group_segment_fixed_size 0
  .amdhsa_kernarg_size 112
  .amdhsa_user_sgpr_count 2
  .amdhsa_user_sgpr_kernarg_segment_ptr 1
  .amdhsa_system_sgpr_workgroup_id_x 1
.end_amdhsa_kernel
"""
        return out


if __name__ == "__main__":
    out = sys.argv[1]
    kw = {}
    for a in sys.argv[2:]:
        k, v = a.split("=")
        assert k in DEFAULTS, k
        kw[k] = type(DEFAULTS[k])(v.replace("+", " "))
    open(out, "w").write(Gen(**kw).gen())
    print("lds", LDS_BYTES)
```

```python
import sys, struct

NAME = "gated_mix__sliding_block_cached__gqa_block_cached__decode_kernel"

HDR = """; Kernarg layout for this problem (112 bytes, ptrs only, base s[0:1]):
"""

def f2u(x):
    return struct.unpack("<I", struct.pack("<f", x))[0]

WS_EPOCH = 0
WS_Q = 0x10000
WS_PML = 0x20000
WS_PO = 0x40000
WS_C = 0x140000
WS_TS = 0x300000
WS_SIZE = 0x400000

NW = 4
NU = 72
L_S = 0
U_STR = 1024 + 64
W_STR = 2 * U_STR
L_O = NU * 512
L_ML = L_O + 2 * NW * W_STR
L_Q = L_ML + 256
L_OF = L_Q + 1024
L_R = L_OF + 256
L_G = L_R + 512
L_C = L_G + 16
L_TK = L_C + 4
LDS_BYTES = L_C + 48
SENT = 0x7fc0dead

DEFAULTS = dict(D=5, DF=8, DQ=6, DE=12, R=5, P1=30, F0=0, fm=0, KF=4, d1=16, d2=22, ts=0, dbgts=0,
                kvpol="nt", wqpol="nt", wopol="nt", LC=8, qx=4, qn=8, ex=3, CK=0, CV=64, dk="65555555", dv="65555555", wod=0, st=0, vt=16, vx=0, op="sc1", P2=0, kpol="nt", vpol="nt", kapol="nt", vapol="nt")

class Gen:
    def __init__(self, **kw):
        self.o = dict(DEFAULTS)
        self.o.update(kw)
        for k, v in self.o.items():
            setattr(self, k, v)
        if self.dbgts:
            self.ts = self.ts or 1
        self.L = []
        self.name = NAME
        self.spin = 1 << 20
        self.uid = 0

    def A(self, s):
        for line in s.split("\n"):
            line = line.strip()
            self.L.append(line if line.endswith(":") else "    " + line)

    def lab(self, base):
        self.uid += 1
        return f"L{base}_{self.uid}"

    def TS(self, k):
        if not self.ts:
            return
        A = self.A
        A("s_memrealtime s[96:97]")
        A("s_waitcnt lgkmcnt(0)")
        A(f"v_writelane_b32 v69, s96, {k}")

    def gen(self):
        A = self.A
        D, DF, DQ, R, P1, F0 = self.D, self.DF, self.DQ, self.R, self.P1, self.F0
        name = self.name
        DPPM = "row_mask:0xf bank_mask:0xf"
        sIdx = 3
        sRet = 4
        sDrain, sRed = 6, 7
        sF = 8
        sFB, sFA = 12, 14
        sVB, sVA = 16, 18
        sSlot = 20
        sWQ = 60
        sWO, sWS, sX, sOUT = 28, 32, 36, 40
        sW, sBH, sS, sB, sH = 44, 45, 46, 47, 76
        sPC = 52
        sCur, sJ2, sSw, sSub = 56, 57, 58, 59
        sBase, sAoff, sCA = 64, 65, 66
        sC, sJ, sOff2, sOff, sTk, sT, sSpin = 77, 78, 80, 81, 82, 83, 84
        sT0, sT1, sT2, sT3 = 85, 86, 87, 88
        sSelx, sSely, sMaskHi = 89, 90, 91
        sQm = 92
        vKoff, vLin, vLane = 1, 2, 3
        vQ, vQ2, DD = 4, 8, 12
        vM, vL, vMC, vmX, vmY, vA, vB, vAl = 28, 29, 30, 31, 32, 33, 34, 35
        vS, vt, vpd, vXY = 36, 40, 44, 48
        vO1, vO2 = 56, 60
        vTkA, vTkV, vF, vSl = 64, 65, 0, 71
        vT, vTS, vx0 = 68, 69, 70
        RING = 72
        vAlt = 232
        vD = 36
        vWoA, vMlW, vT1o, vT1m, vT2o, vT2m, vOfR, vH2 = 248, 249, 250, 251, 252, 253, 254, 255
        vTb, vMk = 244, 4
        sWo1, sWo2, sSt1, sStM, sG1, sG2, sGM, sSt2 = 48, 49, 50, 51, 60, 61, 62, 63
        assert R <= 5

        def srd(s):
            return f"s[{s}:{s+3}]"

        def sp(s):
            return f"s[{s}:{s+1}]"

        def vr(r, n):
            return f"v[{r}:{r+n-1}]"

        def slot(p, i):
            return RING + (p * 8 + i) * 4

        def fetch(p, i):
            A(f"buffer_load_dwordx4 {vr(slot(p,i),4)}, v{vF}, {srd(sF)}, s{(sOff, sOff2)[i>>2]} offen offset:{(i&3)*1024} {self.pol}")

        self.L.append(f"{name}:")
        A("s_cmp_ge_u32 s2, 256")
        A("s_cbranch_scc1 L_end")
        A("s_load_dwordx16 s[48:63], s[0:1], 0")
        A("s_load_dwordx8 s[64:71], s[0:1], 64")
        A("s_load_dwordx4 s[72:75], s[0:1], 96")
        if self.ts:
            A(f"v_mov_b32 v{vTS}, 0")
            A("s_memrealtime s[96:97]")
        A(f"v_lshrrev_b32 v{vA}, 6, v0")
        A(f"v_and_b32 v{vLane}, 63, v0")
        A(f"s_lshr_b32 s{sBH}, s2, 4")
        A(f"v_readfirstlane_b32 s{sW}, v{vA}")
        A(f"s_and_b32 s{sS}, s2, 15")
        A(f"s_lshr_b32 s{sB}, s{sBH}, 3")
        A(f"s_and_b32 s{sH}, s{sBH}, 7")
        A(f"v_lshrrev_b32 v{vA}, 2, v{vLane}")
        A(f"v_lshlrev_b32 v{vB}, 16, v{vA}")
        A(f"v_and_b32 v{vAl}, 3, v{vLane}")
        A(f"v_lshl_add_u32 v{vB}, v{vAl}, 4, v{vB}")
        A(f"v_lshlrev_b32 v{vSl}, 4, v{vA}")
        A(f"s_and_b32 s{sT0}, s{sS}, 7")
        A(f"s_lshl_b32 s{sT0}, s{sT0}, 7")
        A(f"s_lshr_b32 s{sT1}, s{sS}, 3")
        A(f"s_lshl_b32 s{sT1}, s{sT1}, 6")
        A(f"s_add_u32 s{sT0}, s{sT0}, s{sT1}")
        A(f"s_lshl_b32 s{sT1}, s{sH}, 10")
        A(f"s_add_u32 s{sT1}, s{sT1}, s{sT0}")
        A(f"s_lshl_b32 s{sT2}, s{sW}, 20")
        A(f"s_add_u32 s{sT1}, s{sT1}, s{sT2}")
        A(f"s_lshl_b32 s{sT2}, s{sW}, 8")
        A(f"v_lshlrev_b32 v{vLin}, 4, v{vLane}")
        A(f"v_lshrrev_b32 v{vKoff}, 4, v{vLane}")
        A(f"v_lshlrev_b32 v{vKoff}, 6, v{vKoff}")
        A(f"v_lshl_add_u32 v{vKoff}, v{vAl}, 4, v{vKoff}")
        A(f"v_bfe_u32 v{vA}, v{vLane}, 2, 2")
        A(f"v_lshl_add_u32 v{vKoff}, v{vA}, 8, v{vKoff}")
        A(f"v_mov_b32 v{vF}, v{vKoff}")
        A(f"s_lshl_b32 s{sT3}, s{sBH}, 23")
        if self.CK == 0:
            A(f"s_lshl_b32 s{sOff}, s{sS}, 16")
            A(f"s_add_u32 s{sOff}, s{sOff}, {(32768-4096)*256}")
        else:
            A(f"s_lshl_b32 s{sOff}, s{sS}, 19")
        A(f"s_lshl_b32 s{sOff2}, s{sW}, 12")
        A(f"s_add_u32 s{sOff}, s{sOff}, s{sOff2}")
        A(f"s_add_u32 s{sOff2}, s{sOff}, 16384")
        A(f"s_cmp_eq_u32 s{sB}, 0")
        A("s_waitcnt lgkmcnt(0)")
        if self.ts:
            A(f"v_writelane_b32 v{vTS}, s96, 0")
        A(f"s_cselect_b64 {sp(24)}, s[54:55], s[64:65]")
        A(f"s_cselect_b64 {sp(sWO)}, s[56:57], s[66:67]")
        A("s_mov_b32 s26, 0x400000")
        A("s_mov_b32 s27, 0x20000")
        A(f"s_mov_b64 {sp(sX)}, s[48:49]")
        A(f"s_mov_b32 s{sX+2}, 2048")
        A(f"s_mov_b32 s{sX+3}, 0x20000")
        vXd, vWd = DD, slot(R - 1, 0)
        A(f"buffer_load_dwordx4 {vr(vXd,4)}, v{vSl}, {srd(sX)}, s{sT2} offen")
        A(f"buffer_load_dwordx4 {vr(vXd+4,4)}, v{vSl}, {srd(sX)}, s{sT2} offen offset:1024")
        for i in range(8):
            A(f"buffer_load_dwordx4 {vr(vWd+4*i,4)}, v{vB}, {srd(24)}, s{sT1} offen {self.wqpol}")
            if i < 7:
                A(f"s_add_u32 s{sT1}, s{sT1}, 8192")
        A(f"s_load_dword s{sT}, s[74:75], {WS_EPOCH}")
        for (d, src) in ((sFB, 60), (sFA, 50), (sVB, 62), (sVA, 52)):
            A(f"s_add_u32 s{d}, s{src}, s{sT3}")
            A(f"s_addc_u32 s{d+1}, s{src+1}, 0")
        A(f"s_mov_b64 {sp(sF)}, {sp(sFA if self.CK == 0 else sFB)}")
        A(f"s_mov_b32 s{sF+2}, 0x800000")
        A(f"s_mov_b32 s{sF+3}, 0x20000")

        self.fill_pos = 0

        def issue_fill(paced):
            t, i = divmod(self.fill_pos, 8)
            if paced:
                extra = self.qx if (P1 <= self.fill_pos < P1 + self.qn or (self.P2 and self.fill_pos >= self.P2)) else 0
                dq = DQ + extra if self.fill_pos < 8 * R - 4 else self.DE
                A(f"s_waitcnt vmcnt({dq-1})")
            if i == 0 and t == 2 and self.CK == 0:
                A(f"s_mov_b64 {sp(sF)}, {sp(sFB)}")
                A(f"s_lshl_b32 s{sOff}, s{sS}, 19")
                A(f"s_lshl_b32 s{sOff2}, s{sW}, 12")
                A(f"s_add_u32 s{sOff}, s{sOff}, s{sOff2}")
                A(f"s_add_u32 s{sOff2}, s{sOff}, 16384")
            elif i == 0 and t > 0:
                A(f"s_add_u32 s{sOff}, s{sOff}, 32768")
                A(f"s_add_u32 s{sOff2}, s{sOff2}, 32768")
            self.pol = self.kapol if (self.CK == 0 and t < 2) else self.kpol
            fetch(t, i)
            self.fill_pos += 1
            if self.ts == 2 and self.fill_pos % 2 == 0:
                self.TS(40 + self.fill_pos // 2)

        for _ in range(F0):
            issue_fill(False)
        A(f"s_getpc_b64 {sp(sPC)}")
        A("L_pc:")
        A(f"s_mov_b32 s{sPC+2}, L_end-L_pc")
        A(f"s_mov_b32 s{sPC+3}, 0x20000")
        A(f"v_mov_b32 v{vx0}, {L_C}")
        A(f"v_mov_b32 v{vM}, 0")
        A(f"v_mov_b32 v{vM+1}, {R*NW}")
        A(f"ds_write_b64 v{vx0}, {vr(vM,2)}")
        for i in range(4):
            A(f"v_mov_b32 v{vS+i}, {SENT:#x}")
        A(f"s_mul_i32 s{sT1}, s{sW}, {NU*512//NW}")
        A(f"v_add_u32 v{vx0}, s{sT1}, v{vLin}")
        for i in range(NU * 512 // NW // 1024):
            A(f"ds_write_b128 v{vx0}, {vr(vS,4)} offset:{L_S+i*1024}")
        A(f"s_mov_b64 {sp(sWS)}, s[74:75]")
        A(f"s_mov_b32 s{sWS+2}, {WS_SIZE}")
        A(f"s_mov_b32 s{sWS+3}, 0x20000")
        A(f"s_mov_b32 s{sC}, {f2u(128 ** -0.5 * 1.4426950408889634):#x}")
        A(f"s_mov_b32 s{sWO+2}, 0x400000")
        A(f"s_mov_b32 s{sWO+3}, 0x20000")
        A(f"s_mov_b64 {sp(sOUT)}, s[70:71]")
        A(f"s_mov_b32 s{sOUT+2}, 2048")
        A(f"s_mov_b32 s{sOUT+3}, 0x20000")
        A(f"s_mov_b32 s{sSelx}, 0x0c0c0400")
        A(f"s_mov_b32 s{sSely}, 0x04000c0c")
        A(f"s_mov_b32 s{sMaskHi}, 0xffffff00")
        A(f"s_mov_b32 s{sQm}, 0x11111111")
        A(f"s_mov_b32 s{sQm+1}, 0x11111111")
        A(f"s_mov_b32 s{sJ}, 0")
        A(f"s_mov_b32 s{sCur}, 0")
        A(f"s_mov_b32 s{sSw}, {NU}")
        A(f"s_mov_b32 s{sSub}, 0")
        A(f"s_mov_b32 s{sSpin}, {self.spin}")
        A(f"s_lshr_b32 s{sRed}, s2, 3")
        A(f"s_xor_b32 s{sRed}, s{sRed}, s2")
        A(f"s_and_b32 s{sRed}, s{sRed}, {self.LC-1}")
        A(f"s_lshl_b32 s{sBase}, s{sS}, 19")
        A(f"s_lshl_b32 s{sAoff}, s{sS}, 16")
        A(f"s_add_u32 s{sAoff}, s{sAoff}, {(32768-4096)*256}")
        A(f"s_mov_b32 s{sCA}, {self.CK}")
        assert (self.CK == 0 or self.CK >= R * NW) and self.CK <= 64 and self.CV <= 64
        A(f"v_and_b32 v{vA}, 1, v{vLane}")
        A(f"v_lshlrev_b32 v{vA}, 4, v{vA}")
        A(f"v_mov_b32 v{vmX}, 0xffff")
        A(f"v_lshlrev_b32 v{vmX}, v{vA}, v{vmX}")
        A(f"v_and_b32 v{vA}, 2, v{vLane}")
        A(f"v_cmp_eq_u32 vcc, 0, v{vA}")
        A(f"v_mov_b32 v{vTkA}, {L_TK}")
        A(f"v_mov_b32 v{vMC}, 0xff7fffff")
        A(f"v_cndmask_b32 v{vmY}, v{vmX}, 0, vcc")
        A(f"v_cndmask_b32 v{vmX}, 0, v{vmX}, vcc")
        A(f"v_lshrrev_b32 v{vA}, 5, v{vLane}")
        A(f"v_lshlrev_b32 v{vA}, 7, v{vA}")
        A(f"v_lshl_add_u32 v{vA}, v{vAl}, 5, v{vA}")
        A(f"v_and_b32 v{vB}, 16, v{vLane}")
        A(f"s_lshl_b32 s{sT1}, s{sW}, 8")
        A(f"v_add3_u32 v{vA}, v{vA}, v{vB}, s{sT1}")
        A("s_waitcnt lgkmcnt(0)")
        A("s_barrier")
        A(f"s_mul_i32 s{sT}, s{sT}, 0x9e3779b1")
        A(f"s_add_u32 s{sT}, s{sT}, 0x7f4a7c15")
        A(f"s_or_b32 s{sT}, s{sT}, 1")
        A(f"v_mov_b32 v{vT}, s{sT}")
        A(f"v_mov_b32 v{vM}, 0xff7fffff")
        A(f"v_mov_b32 v{vL}, 0")
        A(f"s_waitcnt vmcnt({F0+7})")
        self.TS(1)
        acc = vAlt
        xs = 36
        tw = 20
        for b in range(2):
            for j in range(4):
                A(f"v_lshlrev_b32 v{xs+b*8+2*j}, 16, v{vXd+4*b+j}")
                A(f"v_and_b32 v{xs+b*8+2*j+1}, 0xffff0000, v{vXd+4*b+j}")
        for i in range(8):
            if i > 0:
                A(f"s_waitcnt vmcnt({F0+7})")
            issue_fill(False)
            for j in range(4):
                w = vWd + 4 * i + j
                lo, hi = tw + (j & 1) * 2, tw + (j & 1) * 2 + 1
                A(f"v_lshlrev_b32 v{lo}, 16, v{w}")
                A(f"v_and_b32 v{hi}, 0xffff0000, v{w}")
                for b in range(2):
                    op = "v_mul_f32" if i == 0 else "v_fmac_f32"
                    A(f"{op} v{acc+8*b+2*j}, v{lo}, v{xs+8*b+i}")
                    A(f"{op} v{acc+8*b+2*j+1}, v{hi}, v{xs+8*b+i}")
        A("s_nop 1")
        for i in range(8):
            A(f"v_permlane32_swap_b32 v{acc+i}, v{acc+i+8}")
        for i in range(8):
            A(f"v_add_f32 v{acc+i}, v{acc+i}, v{acc+i+8}")
        if self.ex >= 1:
            issue_fill(False)
        A("s_nop 1")
        for i in range(4):
            A(f"v_permlane16_swap_b32 v{acc+i}, v{acc+i+4}")
        for i in range(4):
            A(f"v_add_f32 v{acc+i}, v{acc+i}, v{acc+i+4}")
        A("s_nop 1")
        for i in range(4):
            A(f"v_add_f32_dpp v{acc+i}, v{acc+i}, v{acc+i} row_ror:8 {DPPM}")
        A("s_nop 1")
        for i in range(4):
            A(f"v_add_f32_dpp v{acc+i}, v{acc+i}, v{acc+i} row_ror:4 {DPPM}")
        A("s_mov_b32 exec_lo, 0x000f000f")
        A("s_mov_b32 exec_hi, 0x000f000f")
        A(f"ds_write_b128 v{vA}, {vr(acc,4)} offset:{L_Q}")
        A("s_mov_b64 exec, 1")
        A(f"v_mov_b32 v{vA}, {L_C}")
        A(f"v_mov_b32 v{vB}, 1")
        A("s_waitcnt lgkmcnt(0)")
        A(f"ds_add_rtn_u32 v{vB}, v{vA}, v{vB}")
        A("s_mov_b64 exec, -1")
        if self.ex >= 2:
            issue_fill(False)
        l = self.lab("nopf")
        A(f"s_cmp_lg_u32 s{sW}, {NW-1}")
        A(f"s_cbranch_scc1 {l}")
        A(f"v_lshlrev_b32 v{vx0}, 7, v{vLane}")
        A(f"s_movk_i32 s{sT1}, 0x2000")
        A(f"buffer_load_dword v66, v{vx0}, {srd(sPC)}, 0 offen")
        A(f"buffer_load_dword v67, v{vx0}, {srd(sPC)}, s{sT1} offen")
        A(f"s_movk_i32 s{sT1}, 0x4000")
        A(f"buffer_load_dword v67, v{vx0}, {srd(sPC)}, s{sT1} offen")
        A(f"{l}:")
        A("s_waitcnt lgkmcnt(0)")
        if self.ex >= 3:
            issue_fill(False)
        A(f"v_readfirstlane_b32 s{sT1}, v{vB}")
        l = self.lab("nosvc")
        A(f"v_lshlrev_b32 v{vA}, 2, v{vLane}")
        A("s_nop 2")
        A(f"s_cmp_lg_u32 s{sT1}, {NW-1}")
        A(f"s_cbranch_scc1 {l}")
        for w in range(NW):
            A(f"ds_read_b32 v{acc+w}, v{vA} offset:{L_Q+w*256}")
        A(f"s_lshl_b32 s{sT1}, s{sB}, 4")
        A(f"s_add_u32 s{sT1}, s{sT1}, s{sH}")
        A(f"s_lshl_b32 s{sT1}, s{sT1}, 11")
        A(f"s_lshl_b32 s{sT2}, s{sT0}, 1")
        A(f"s_add_u32 s{sT1}, s{sT1}, s{sT2}")
        A(f"s_add_u32 s{sT1}, s{sT1}, {WS_Q}")
        A(f"v_lshrrev_b32 v{vB}, 5, v{vLane}")
        A(f"v_lshlrev_b32 v{vB}, 14, v{vB}")
        A(f"v_and_b32 v{vA}, 31, v{vLane}")
        A(f"v_lshl_add_u32 v{vB}, v{vA}, 2, v{vB}")
        A("s_waitcnt lgkmcnt(0)")
        A(f"v_add_f32 v{acc}, v{acc}, v{acc+1}")
        A(f"v_add_f32 v{acc+2}, v{acc+2}, v{acc+3}")
        A(f"v_add_f32 v{acc}, v{acc}, v{acc+2}")
        A(f"v_mov_b32 v{acc+13}, v{vT}")
        A(f"v_mov_b32 v{acc+15}, v{vT}")
        A(f"v_mov_b32_dpp v{acc+1}, v{acc} quad_perm:[1,1,3,3] {DPPM}")
        A("s_nop 0")
        A(f"v_cvt_pk_bf16_f32 v{acc+12}, v{acc}, v{acc+1}")
        A("s_nop 1")
        A(f"v_mov_b32_dpp v{acc+14}, v{acc+12} quad_perm:[2,2,2,2] {DPPM}")
        A(f"s_mov_b64 exec, {sp(sQm)}")
        A(f"buffer_store_dwordx4 {vr(acc+12,4)}, v{vB}, {srd(sWS)}, s{sT1} offen sc1")
        A("s_mov_b64 exec, -1")
        self.TS(2)
        A(f"{l}:")
        vQg = DD
        A(f"v_lshlrev_b32 v{vA}, 1, v{vKoff}")
        A(f"s_lshl_b32 s{sT1}, s{sBH}, 11")
        A(f"s_add_u32 s{sT1}, s{sT1}, {WS_Q}")
        A(f"s_add_u32 s{sT2}, s{sT1}, 32768")
        for i in range(8):
            A(f"v_mov_b32 v{vO1+i}, 0")
            A(f"v_mov_b32 v{vAlt+i}, 0")
        A(f"v_mov_b32 v{vAlt+8}, 0xff7fffff")
        A(f"v_mov_b32 v{vAlt+9}, 0")
        A(f"v_mov_b32 v{vAlt+10}, 0xff7fffff")
        for p in range(R):
            if self.CK == 0:
                A(f"s_add_u32 s{sSlot+p}, s{sW}, {64+NW*p if p < 2 else NW*(p-2)}")
            else:
                A(f"s_add_u32 s{sSlot+p}, s{sW}, {NW*p}")


        def tail_constants(part):
            if part == 0:
                A(f"s_lshl_b32 s{sWo1}, s{sH}, 19")
                A(f"s_lshl_b32 s{sWo2}, s{sS}, 15")
                A(f"s_add_u32 s{sWo1}, s{sWo1}, s{sWo2}")
                A(f"s_lshl_b32 s{sWo2}, s{sW}, 8")
                A(f"s_add_u32 s{sWo1}, s{sWo1}, s{sWo2}")
                A(f"s_add_u32 s{sWo2}, s{sWo1}, 4096")
                A(f"v_lshrrev_b32 v{vWoA}, 4, v{vLane}")
                A(f"v_lshlrev_b32 v{vWoA}, 13, v{vWoA}")
                A(f"v_and_b32 v{vB}, 15, v{vLane}")
                A(f"v_lshl_add_u32 v{vWoA}, v{vB}, 4, v{vWoA}")
                A(f"v_bfe_u32 v{vMlW}, v{vLane}, 2, 2")
                A(f"v_lshlrev_b32 v{vMlW}, 5, v{vMlW}")
                A(f"s_lshl_b32 s{sT3}, s{sW}, 3")
                A(f"v_add_u32 v{vMlW}, s{sT3}, v{vMlW}")
            if part == 1:
                A(f"s_lshr_b32 s{sT0}, s{sW}, 1")
                A(f"s_and_b32 s{sIdx}, s{sW}, 1")
                A(f"s_lshl_b32 s{sT3}, s{sT0}, 7")
                A(f"v_bfe_u32 v{vT1m}, v{vLane}, 3, 2")
                A(f"v_lshlrev_b32 v{vT1m}, 5, v{vT1m}")
                A(f"v_add_u32 v{vT1m}, s{sT3}, v{vT1m}")
                A(f"s_mul_i32 s{sT3}, s{sT0}, {NW*W_STR}")
                A(f"s_lshl_b32 s{sSt1}, s{sIdx}, 9")
                A(f"s_add_u32 s{sT3}, s{sT3}, s{sSt1}")
                A(f"v_lshrrev_b32 v{vT1o}, 3, v{vLane}")
                A(f"v_lshlrev_b32 v{vT1o}, 6, v{vT1o}")
                A(f"v_and_b32 v{vB}, 3, v{vLane}")
                A(f"v_lshl_add_u32 v{vT1o}, v{vB}, 4, v{vT1o}")
                A(f"v_bfe_u32 v{vB}, v{vLane}, 2, 1")
                A(f"v_mul_u32_u24 v{vB}, {U_STR}, v{vB}")
                A(f"v_add3_u32 v{vT1o}, v{vT1o}, v{vB}, s{sT3}")
                A(f"s_lshl_b32 s{sT3}, s{sT0}, 8")
                A(f"s_add_u32 s{sT3}, s{sT3}, s2")
                A(f"s_lshl_b32 s{sSt1}, s{sT3}, 11")
                A(f"s_lshl_b32 s{sStM}, s{sIdx}, 10")
                A(f"s_add_u32 s{sSt1}, s{sSt1}, s{sStM}")
                A(f"s_add_u32 s{sSt1}, s{sSt1}, {WS_PO}")
                A(f"s_lshl_b32 s{sStM}, s{sT3}, 7")
                A(f"s_add_u32 s{sStM}, s{sStM}, {WS_PML}")
            if part == 2:
                A(f"s_lshr_b32 s{sT0}, s{sW}, 1")
                A(f"s_lshl_b32 s{sT0}, s{sT0}, 7")
                A(f"s_lshl_b32 s{sT3}, s{sB}, 8")
                A(f"s_add_u32 s{sT0}, s{sT0}, s{sT3}")
                A(f"s_lshl_b32 s{sT3}, s{sH}, 4")
                A(f"s_add_u32 s{sT0}, s{sT0}, s{sT3}")
                A(f"s_and_b32 s{sG1}, s{sS}, 3")
                A(f"s_lshl_b32 s{sG1}, s{sG1}, 9")
                A(f"s_lshr_b32 s{sT3}, s{sS}, 2")
                A(f"s_lshl_b32 s{sG2}, s{sT3}, 7")
                A(f"s_add_u32 s{sG1}, s{sG1}, s{sG2}")
                A(f"s_lshl_b32 s{sG2}, s{sT0}, 11")
                A(f"s_add_u32 s{sG1}, s{sG1}, s{sG2}")
                A(f"s_add_u32 s{sG1}, s{sG1}, {WS_PO}")
                A(f"s_add_u32 s{sG2}, s{sG1}, 16384")
                A(f"s_lshl_b32 s{sGM}, s{sT0}, 7")
                A(f"s_lshl_b32 s{sT3}, s{sT3}, 4")
                A(f"s_add_u32 s{sGM}, s{sGM}, s{sT3}")
                A(f"s_add_u32 s{sGM}, s{sGM}, {WS_PML}")
                A(f"v_lshrrev_b32 v{vT2m}, 3, v{vLane}")
                A(f"v_lshlrev_b32 v{vT2o}, 11, v{vT2m}")
                A(f"v_and_b32 v{vB}, 7, v{vLane}")
                A(f"v_lshl_add_u32 v{vT2o}, v{vB}, 4, v{vT2o}")
                A(f"v_lshlrev_b32 v{vT2m}, 7, v{vT2m}")
            if part == 3:
                A(f"v_and_b32 v{vTb}, 0xff, v{vT}")
                A(f"v_bfe_u32 v{vTb+1}, v{vT}, 8, 8")
                A(f"v_bfe_u32 v{vTb+2}, v{vT}, 16, 8")
                A(f"v_lshrrev_b32 v{vTb+3}, 24, v{vT}")
                A(f"v_bfe_u32 v{vOfR}, v{vLane}, 3, 1")
                A(f"v_lshlrev_b32 v{vOfR}, 7, v{vOfR}")
                A(f"v_lshrrev_b32 v{vB}, 4, v{vLane}")
                A(f"v_lshl_add_u32 v{vOfR}, v{vB}, 5, v{vOfR}")
                A(f"s_lshl_b32 s{sSt2}, s{sW}, 10")
                A(f"s_lshl_b32 s{sT3}, s2, 12")
                A(f"s_add_u32 s{sSt2}, s{sSt2}, s{sT3}")
                A(f"s_add_u32 s{sSt2}, s{sSt2}, {WS_C}")
                A(f"v_lshrrev_b32 v{vH2}, {self.LC.bit_length()-1}, v{vLane}")
                A(f"v_lshlrev_b32 v{vH2}, 12, v{vH2}")
                A(f"v_and_b32 v{vB}, {self.LC-1}, v{vLane}")
                A(f"v_lshl_add_u32 v{vH2}, v{vB}, 4, v{vH2}")

        def q_loads():
            A(f"buffer_load_dwordx4 {vr(vQg,4)}, v{vA}, {srd(sWS)}, s{sT1} offen sc1")
            A(f"buffer_load_dwordx4 {vr(vQg+4,4)}, v{vA}, {srd(sWS)}, s{sT1} offen offset:16 sc1")
            A(f"buffer_load_dwordx4 {vr(vQg+8,4)}, v{vA}, {srd(sWS)}, s{sT2} offen sc1")
            A(f"buffer_load_dwordx4 {vr(vQg+12,4)}, v{vA}, {srd(sWS)}, s{sT2} offen offset:16 sc1")

        def claim():
            A(f"v_mov_b32 v{vTkV}, 1")
            A("s_mov_b64 exec, 1")
            A(f"ds_add_rtn_u32 v{vTkV}, v{vTkA}, v{vTkV}")
            A("s_mov_b64 exec, -1")

        assert self.DE <= 16
        while self.fill_pos < 8 * R:
            if self.fill_pos == P1 or (self.P2 and self.fill_pos == self.P2):
                q_loads()
            if self.vt and self.fill_pos == self.vt:
                A(f"s_mov_b64 s[12+0:12+1], s[12:13]") if False else None
                A("s_mov_b64 exec, 1")
                A(f"v_mov_b32 v{vx0}, s{sBase}")
                A(f"global_load_dword v66, v{vx0}, {sp(sVB)} nt")
                A(f"v_mov_b32 v{vB}, s{sAoff}")
                A(f"global_load_dword v67, v{vB}, {sp(sVA)} nt")
                if self.vx:
                    A(f"s_lshl_b32 s{sT3}, s{sH}, 19")
                    A(f"v_mov_b32 v{vB}, 0")
                    A(f"buffer_load_dword v67, v{vB}, {srd(sWO)}, s{sT3} offen nt")
                    A(f"s_mov_b32 s{sT3}, {WS_C + 0xfff00}")
                    A(f"buffer_load_dword v67, v{vB}, {srd(sWS)}, s{sT3} offen nt")
                    A(f"buffer_load_dword v67, v{vB}, {srd(sOUT)}, 0 offen nt")
                A("s_mov_b64 exec, -1")
            issue_fill(True)
            if 17 <= self.fill_pos < 21:
                tail_constants(self.fill_pos - 17)
        if self.st:
            l = self.lab("nst")
            if self.st & 8:
                A(f"s_cmp_lg_u32 s{sW}, 2")
                A(f"s_cbranch_scc1 {l}")
            if self.st & 1:
                A(f"s_add_u32 s{sT3}, s{sBase}, 0x7f000")
                A(f"s_load_dword s100, {sp(sVB)}, s{sBase}")
                A(f"s_load_dword s100, {sp(sVB)}, s{sT3}")
                A(f"s_load_dword s100, {sp(sVA)}, s{sAoff}")
            if self.st & 4:
                A(f"s_lshl_b32 s{sT3}, s{sH}, 19")
                A(f"s_load_dword s100, {sp(sWO)}, s{sT3}")
                A(f"s_mov_b32 s{sT3}, {WS_C + 0xfff00}")
                A(f"s_load_dword s100, {sp(sWS)}, s{sT3}")
                A(f"s_load_dword s100, {sp(sOUT)}, 0")
                A(f"s_load_dword s100, s[68:69], 0")
            A(f"{l}:")
        claim()
        self.TS(3)
        lchk, lok = self.lab("qchk"), self.lab("qok")
        A(f"s_waitcnt vmcnt({8*R - max(P1, self.P2)})")
        A(f"{lchk}:")
        A(f"v_xor_b32 v{vAl}, v{vQg+1}, v{vT}")
        for i in range(1, 8):
            A(f"v_xor_b32 v{vB}, v{vQg+2*i+1}, v{vT}")
            A(f"v_or_b32 v{vAl}, v{vAl}, v{vB}")
        A(f"v_cmp_ne_u32 vcc, 0, v{vAl}")
        A(f"s_cbranch_vccz {lok}")
        A(f"s_sub_u32 s{sSpin}, s{sSpin}, 1")
        A("s_cbranch_scc1 L_end")
        q_loads()
        A("s_waitcnt vmcnt(0)")
        A(f"s_branch {lchk}")
        A(f"{lok}:")
        for i in range(4):
            A(f"v_mov_b32 v{vQ2+i}, v{vQg+2*i}")
        for i in range(4):
            A(f"v_mov_b32 v{vQ+i}, v{vQg+8+2*i}")
        self.TS(4)

        vWO = slot(1, 0)

        def wo_loads():
            for i in range(8):
                A(f"buffer_load_dwordx4 {vr(vWO+4*i,4)}, v{vWoA}, {srd(sWO)}, s{(sWo1, sWo2)[i>>2]} offen offset:{(i&3)*1024} {self.wopol}")

        side = []

        def tile_ts():
            if self.ts:
                A("s_memrealtime s[96:97]")
                A(f"s_min_u32 s{sT1}, s{sJ}, {34 if self.ts == 1 else 20}")
                A(f"s_add_u32 m0, s{sT1}, 16")
                A("s_waitcnt lgkmcnt(0)")
                A(f"v_writelane_b32 v{vTS}, s96, m0")

        def type_check(p, sub, routine):
            l1, l2 = self.lab("sw"), self.lab("swr")
            if sub:
                A(f"s_sub_u32 s{sT1}, s{sSlot+p}, {sub}")
                src = sT1
            else:
                src = sSlot + p
            A(f"s_lshl_b32 s{sT2}, s{src}, 9")
            A(f"v_add_u32 v{vx0}, s{sT2}, v{vSl}")
            A(f"s_lshr_b32 s{sT1}, s{src}, 6")
            A(f"s_cmp_lg_u32 s{sT1}, s{sCur}")
            A(f"s_cbranch_scc1 {l1}")
            A(f"{l2}:")
            side.append([f"{l1}:", f"s_call_b64 {sp(sRet)}, {routine}", f"s_branch {l2}"])

        def decode(p):
            A(f"s_sub_u32 s{sT3}, s{sTk}, s{sSub}")
            A(f"s_sub_u32 s{sT1}, s{sT3}, s{sCA}")
            A(f"s_cselect_b32 s{sT2}, 0, 8")
            A(f"s_sub_u32 s{sT2}, s{sT3}, s{sT2}")
            A(f"s_cmp_lt_u32 s{sT1}, 8")
            A(f"s_cselect_b32 s{sT1}, s{sT1}, s{sT2}")
            A(f"s_cselect_b32 s{sT2}, s{sAoff}, s{sBase}")
            A(f"s_cselect_b32 s{sT3}, 64, 0")
            A(f"s_cselect_b64 {sp(sF)}, {sp(sFA)}, {sp(sFB)}")
            A(f"s_add_u32 s{sT3}, s{sT3}, s{sSub}")
            A(f"s_add_u32 s{sSlot+p}, s{sT3}, s{sT1}")
            A(f"s_lshr_b32 s{sT3}, s{sT1}, 2")
            A(f"s_lshl_b32 s{sT3}, s{sT3}, 15")
            A(f"s_and_b32 s{sT1}, s{sT1}, 3")
            A(f"s_lshl_b32 s{sT1}, s{sT1}, 12")
            A(f"s_add_u32 s{sT2}, s{sT2}, s{sT3}")
            A(f"s_add_u32 s{sOff}, s{sT2}, s{sT1}")
            A(f"s_add_u32 s{sOff2}, s{sOff}, 16384")

        def issue(q, i, pace, pat):
            d = int(pat[i]) if (pat and pace == D) else pace
            A(f"s_waitcnt vmcnt({d-1})")
            if i == 7:
                claim()
            fetch(q, i)

        def kbody(p, q):
            def I(i):
                if q is not None:
                    issue(q, i, D, self.dk)
            for hf in range(2):
                I(4 * hf)
                for b in range(4):
                    A(f"v_mfma_f32_16x16x32_bf16 {vr(DD+4*b,4)}, {vr(slot(p,4*hf+b),4)}, {vr(vQ,4)}, 0")
                I(4 * hf + 1)
                A("s_nop 2" if q is not None else "s_nop 4")
                for b in range(4):
                    d, t = DD + 4 * b, vS + 4 * hf + b
                    A(f"v_mov_b32_dpp v{t}, v{d} quad_perm:[0,0,0,0] {DPPM}")
                    for k in range(1, 4):
                        A(f"v_add_f32_dpp v{t}, v{d+k}, v{t} quad_perm:[{k},{k},{k},{k}] {DPPM}")
                    if b == 0:
                        I(4 * hf + 2)
                    if b == 2:
                        I(4 * hf + 3)
                A(f"s_mov_b64 exec, {sp(sQm)}")
                A(f"ds_write_b128 v{vx0}, {vr(vS+4*hf,4)} offset:{L_S+256*hf}")
                A("s_mov_b64 exec, -1")

        def sread():
            A(f"ds_read_b128 {vr(DD,4)}, v{vx0} offset:{L_S}")
            A(f"ds_read_b128 {vr(DD+4,4)}, v{vx0} offset:{L_S+256}")

        def vbody(p, q, pace):
            def I(i):
                if q is not None:
                    issue(q, i, pace, self.dv)
            lw, lwb = self.lab("nr"), self.lab("nrb")
            I(0)
            A("s_waitcnt lgkmcnt(0)")
            A(f"{lwb}:")
            A(f"v_max3_f32 v{vA}, v{DD}, v{DD+1}, v{DD+2}")
            A(f"v_cmp_eq_u32 vcc, {SENT:#x}, v{DD+3}")
            A(f"v_max3_f32 v{vA}, v{vA}, v{DD+3}, v{DD+4}")
            A(f"s_cbranch_vccnz {lw}")
            A(f"v_cmp_eq_u32 vcc, {SENT:#x}, v{DD+7}")
            A(f"v_max3_f32 v{vA}, v{vA}, v{DD+5}, v{DD+6}")
            A(f"s_cbranch_vccnz {lw}")
            side.append([f"{lw}:", f"s_call_b64 {sp(sRet)}, L_reread", f"s_branch {lwb}"])
            A(f"v_max_f32 v{vA}, v{vA}, v{DD+7}")
            lr, lb = self.lab("rs"), self.lab("rsb")
            A(f"v_cmp_gt_f32 vcc, v{vA}, v{vM}")
            A(f"s_cbranch_vccnz {lr}")
            A(f"{lb}:")
            side.append([f"{lr}:", f"s_call_b64 {sp(sRet)}, L_resc", f"s_branch {lb}"])
            for hf in range(2):
                for b in range(4):
                    A(f"v_fma_f32 v{vt+b}, v{DD+4*hf+b}, s{sC}, -v{vMC}")
                if hf == 0:
                    I(1)
                for b in range(4):
                    A(f"v_exp_f32 v{vt+b}, v{vt+b}")
                if hf == 1:
                    I(5)
                for b in range(4):
                    A(f"v_cvt_pk_bf16_f32 v{vpd+b}, v{vt+b}, v{vt+b}")
                if hf == 0:
                    I(2)
                for b in range(4):
                    A(f"v_and_b32 v{vXY+2*b}, v{vpd+b}, v{vmX}")
                    A(f"v_and_b32 v{vXY+2*b+1}, v{vpd+b}, v{vmY}")
                A(f"v_add_f32 v{vA}, v{vt}, v{vt+1}")
                A(f"v_add_f32 v{vB}, v{vt+2}, v{vt+3}")
                I(3 if hf == 0 else 6)
                for b in range(4):
                    r = slot(p, 4 * hf + b)
                    A(f"v_mfma_f32_16x16x16_bf16 {vr(vO1,4)}, {vr(r,2)}, {vr(vXY+2*b,2)}, {vr(vO1,4)}")
                    A(f"v_mfma_f32_16x16x16_bf16 {vr(vO2,4)}, {vr(r+2,2)}, {vr(vXY+2*b,2)}, {vr(vO2,4)}")
                    if b == 0:
                        A(f"v_add_f32 v{vL}, v{vL}, v{vA}")
                    if b == 1:
                        A(f"v_add_f32 v{vL}, v{vL}, v{vB}")
                I(4 if hf == 0 else 7)

        for p in range(R - 2):
            tile_ts()
            type_check(p, 0, "L_swapq")
            A("s_nop 1")
            kbody(p, None)
            A(f"s_add_u32 s{sJ}, s{sJ}, 1")
        CYC = [(R - 2, R - 3), (R - 1, R - 2), (R - 3, R - 1)]
        A(".p2align 6")
        A("L_kloop:")
        self.pol = self.kpol
        for (p, q) in CYC:
            l1, l2 = self.lab("tov"), self.lab("tovr")
            tile_ts()
            A("s_waitcnt lgkmcnt(0)")
            A(f"v_readfirstlane_b32 s{sTk}, v{vTkV}")
            A(f"s_cmp_ge_u32 s{sSlot+p}, {NU}")
            A(f"s_cbranch_scc1 L_v0_{p}")
            type_check(p, 0, "L_swapq")
            A(f"s_cmp_ge_u32 s{sTk}, s{sSw}")
            A(f"s_cbranch_scc1 {l1}")
            A(f"{l2}:")
            side.append([f"{l1}:", f"s_call_b64 {sp(sRet)}, L_tov", f"s_branch {l2}"])
            decode(q)
            kbody(p, q)
            A(f"s_add_u32 s{sJ}, s{sJ}, 1")
        A("s_branch L_kloop")
        for (p, q) in CYC:
            A(f"L_v0_{p}:")
            A(f"s_mov_b32 s{sCur}, 0")
            A(f"s_branch L_vina{p}")
        for (ln, pace) in (("a", D), ("b", DF)):
            if ln == "b" and not self.fm:
                break
            A(f"L_vloop{ln}:")
            self.pol = self.vpol if ln == "a" else self.vapol
            for (p, q) in CYC:
                tile_ts()
                A("s_waitcnt lgkmcnt(0)")
                A(f"v_readfirstlane_b32 s{sTk}, v{vTkV}")
                A(f"L_vin{ln}{p}:")
                type_check(p, NU, "L_swap")
                sread()
                A(f"s_cmp_ge_u32 s{sTk}, {2*NU}")
                A(f"s_cbranch_scc1 L_fdrain{p}")
                decode(q)
                if self.fm and ln == "a":
                    A(f"s_cmp_ge_u32 s{sTk}, {2*NU-self.KF}")
                    A(f"s_cbranch_scc1 L_vgob{p}")
                A(f"L_vgo{ln}{p}:")
                vbody(p, q, pace)
                A(f"s_add_u32 s{sJ}, s{sJ}, 1")
            A(f"s_branch L_vloop{ln}")
        assert max(D, DF) <= 8
        for (p, q) in CYC:
            A(f"L_fdrain{p}:")
            A(f"s_mov_b32 s{sDrain}, 1")
            if self.wod:
                A(f"s_call_b64 {sp(sRet)}, L_wo")
            A(f"s_branch L_dgo{p}")
        A("L_dloop:")
        for (p, q) in CYC:
            tile_ts()
            A(f"s_sub_u32 s{sDrain}, s{sDrain}, 1")
            A("s_cbranch_scc1 L_exit")
            type_check(p, NU, "L_swap")
            sread()
            A("s_waitcnt vmcnt(8)" if self.wod else "s_waitcnt vmcnt(0)")
            A(f"L_dgo{p}:")
            vbody(p, None, None)
            A(f"s_add_u32 s{sJ}, s{sJ}, 1")
        A("s_branch L_dloop")

        for piece in side:
            for ln in piece:
                A(ln)

        A("L_tov:")
        A(f"s_mov_b64 {sp(sFB)}, {sp(sVB)}")
        A(f"s_mov_b64 {sp(sFA)}, {sp(sVA)}")
        A(f"s_mov_b32 s{sSub}, {NU}")
        A(f"s_mov_b32 s{sCA}, {self.CV}")
        A(f"s_mov_b32 s{sSw}, 0x7fffffff")
        A(f"v_mov_b32 v{vF}, v{vLin}")
        A(f"s_setpc_b64 {sp(sRet)}")

        if self.wod:
            A("L_wo:")
            wo_loads()
            A(f"s_setpc_b64 {sp(sRet)}")

        A("L_swapq:")
        A(f"s_xor_b32 s{sCur}, s{sCur}, 1")
        for i in range(4):
            A(f"v_swap_b32 v{vQ+i}, v{vQ2+i}")
        A(f"s_setpc_b64 {sp(sRet)}")

        A("L_swap:")
        A("s_nop 3")
        A(f"s_xor_b32 s{sCur}, s{sCur}, 1")
        for i in range(3):
            A(f"v_swap_b32 v{vM+i}, v{vAlt+8+i}")
        for i in range(8):
            A(f"v_swap_b32 v{vO1+i}, v{vAlt+i}")
        A(f"s_setpc_b64 {sp(sRet)}")

        A("L_reread:")
        A(f"s_sub_u32 s{sSpin}, s{sSpin}, 1")
        A("s_cbranch_scc1 L_end")
        sread()
        A("s_waitcnt lgkmcnt(0)")
        A(f"s_setpc_b64 {sp(sRet)}")

        A("L_resc:")
        A(f"v_max_f32 v{vA}, v{vA}, v{vM}")
        A(f"v_mov_b32 v{vB}, v{vA}")
        A("s_nop 1")
        A(f"v_permlane16_swap_b32 v{vA}, v{vB}")
        A(f"v_max_f32 v{vA}, v{vA}, v{vB}")
        A(f"v_mov_b32 v{vB}, v{vA}")
        A("s_nop 1")
        A(f"v_permlane32_swap_b32 v{vA}, v{vB}")
        A(f"v_max_f32 v{vM}, v{vA}, v{vB}")
        A(f"v_mul_f32 v{vA}, s{sC}, v{vM}")
        A(f"v_sub_f32 v{vAl}, v{vMC}, v{vA}")
        A(f"v_exp_f32 v{vAl}, v{vAl}")
        A(f"v_mov_b32 v{vMC}, v{vA}")
        for i in range(8):
            A(f"v_mul_f32 v{vO1+i}, v{vO1+i}, v{vAl}")
        A(f"v_mul_f32 v{vL}, v{vL}, v{vAl}")
        A(f"s_setpc_b64 {sp(sRet)}")

        A("L_exit:")
        self.TS(5)
        L2 = vAlt + 9
        A(f"v_mov_b32 v{vB}, v{vL}")
        A(f"v_mov_b32 v{vAl}, v{L2}")
        A(f"s_mul_i32 s{sT1}, s{sW}, {W_STR}")
        A(f"s_mul_i32 s{sT2}, s{sCur}, {NW*W_STR}")
        A(f"v_permlane16_swap_b32 v{vL}, v{vB}")
        A(f"v_permlane16_swap_b32 v{L2}, v{vAl}")
        A(f"s_add_u32 s{sT3}, s{sT1}, s{sT2}")
        A(f"v_add_f32 v{vL}, v{vL}, v{vB}")
        A(f"v_add_f32 v{L2}, v{L2}, v{vAl}")
        A(f"s_sub_u32 s{sT1}, s{sT1}, s{sT2}")
        A(f"v_mov_b32 v{vB}, v{vL}")
        A(f"v_mov_b32 v{vAl}, v{L2}")
        A(f"s_add_u32 s{sT1}, s{sT1}, {NW*W_STR}")
        A(f"v_add_u32 v{vA}, s{sT1}, v{vLin}")
        A(f"v_permlane32_swap_b32 v{vL}, v{vB}")
        A(f"v_permlane32_swap_b32 v{L2}, v{vAl}")
        A(f"v_add_u32 v{vx0}, s{sT3}, v{vLin}")
        A(f"ds_write_b128 v{vA}, {vr(vO1,4)} offset:{L_O}")
        A(f"ds_write_b128 v{vA}, {vr(vO2,4)} offset:{L_O+U_STR}")
        A(f"v_add_f32 v{vL}, v{vL}, v{vB}")
        A(f"v_add_f32 v{L2}, v{L2}, v{vAl}")
        A(f"s_lshl_b32 s{sT2}, s{sCur}, 7")
        A(f"ds_write_b128 v{vx0}, {vr(vAlt,4)} offset:{L_O}")
        A(f"ds_write_b128 v{vx0}, {vr(vAlt+4,4)} offset:{L_O+U_STR}")
        A(f"v_add_u32 v{vAl}, s{sT2}, v{vMlW}")
        A(f"v_subrev_u32 v{vA}, s{sT2}, v{vMlW}")
        A(f"v_add_u32 v{vA}, 128, v{vA}")
        A("s_mov_b64 exec, 0x1111")
        A(f"ds_write_b64 v{vA}, {vr(vM,2)} offset:{L_ML}")
        A(f"ds_write_b64 v{vAl}, {vr(vAlt+8,2)} offset:{L_ML}")
        A("s_mov_b64 exec, -1")
        if not self.wod:
            wo_loads()
        vG = slot(R - 2, 0)
        l = self.lab("nogate")
        A(f"s_lshl_b32 s{sT1}, s{sRed}, 3")
        A(f"s_or_b32 s{sT1}, s{sT1}, s{sW}")
        A(f"s_cmp_lg_u32 s{sT1}, 3")
        A(f"s_cbranch_scc1 {l}")
        A(f"s_lshl_b32 s{sT1}, s2, 7")
        A(f"s_and_b32 s{sT1}, s{sT1}, 1024")
        A(f"buffer_load_dwordx4 {vr(vG,4)}, v{vLin}, {srd(sX)}, s{sT1} offen")
        A(f"global_load_dwordx4 {vr(vG+4,4)}, v{vLin}, s[68:69]")
        A(f"{l}:")
        ml = RING
        od = RING + 8
        tb = vTb
        Mx, Ls = DD + 4, DD + 6
        res = DD + 8
        A("s_waitcnt lgkmcnt(0)")
        A("s_barrier")
        self.TS(6)
        for i in range(2):
            A(f"ds_read_b128 {vr(ml+4*i,4)}, v{vT1m} offset:{L_ML+16*i}")
        for w in range(NW):
            A(f"ds_read_b128 {vr(od+4*w,4)}, v{vT1o} offset:{L_O+W_STR*w}")
        A(f"v_mov_b32 v{DD+5}, v{vT}")
        A(f"v_mov_b32 v{DD+7}, v{vT}")
        A(f"v_lshlrev_b32 v{vx0}, 1, v{vLane}")
        A("s_waitcnt lgkmcnt(4)")
        A(f"v_max3_f32 v{Mx}, v{ml}, v{ml+2}, v{ml+4}")
        A(f"v_max_f32 v{Mx}, v{Mx}, v{ml+6}")
        A(f"v_mul_f32 v{vAl}, s{sC}, v{Mx}")
        for w in range(NW):
            A(f"v_fma_f32 v{ml+2*w}, v{ml+2*w}, s{sC}, -v{vAl}")
        for w in range(NW):
            A(f"v_exp_f32 v{ml+2*w}, v{ml+2*w}")
        A("s_waitcnt lgkmcnt(0)")
        for i in range(4):
            A(f"v_mul_f32 v{res+i}, v{ml}, v{od+i}")
        for w in range(1, NW):
            for i in range(4):
                A(f"v_fmac_f32 v{res+i}, v{ml+2*w}, v{od+4*w+i}")
        for i in range(4):
            A(f"v_and_or_b32 v{res+i}, v{res+i}, s{sMaskHi}, v{tb+i}")
        A(f"buffer_store_dwordx4 {vr(res,4)}, v{vLin}, {srd(sWS)}, s{sSt1} offen sc1")
        A(f"s_bitcmp1_b32 s{sW}, 0")
        A("s_cbranch_scc1 L_t2")
        A(f"v_mul_f32 v{Ls}, v{ml}, v{ml+1}")
        for w in range(1, NW):
            A(f"v_fmac_f32 v{Ls}, v{ml+2*w}, v{ml+2*w+1}")
        A("s_mov_b32 exec_lo, 0x01010101")
        A("s_mov_b32 exec_hi, 0x01010101")
        A(f"buffer_store_dwordx4 {vr(Mx,4)}, v{vx0}, {srd(sWS)}, s{sStM} offen sc1")
        A("s_mov_b64 exec, -1")
        A("L_t2:")
        self.TS(7)
        mk = vMk
        A(f"v_and_b32 v{vA}, 1, v{vLane}")
        A(f"v_lshlrev_b32 v{vA}, 4, v{vA}")
        A(f"v_mov_b32 v{vB}, 0xffff")
        A(f"v_lshlrev_b32 v{vB}, v{vA}, v{vB}")
        A(f"v_bfe_u32 v{vA}, v{vLane}, 1, 2")
        for j in range(4):
            A(f"v_cmp_eq_u32 vcc, {j}, v{vA}")
            A("s_nop 1")
            A(f"v_cndmask_b32 v{mk+j}, 0, v{vB}, vcc")

        def tagcheck(regs, extra):
            n = 0
            for r in regs:
                A(f"v_perm_b32 v{vD+n}, v{r+1}, v{r}, s{sSelx}")
                A(f"v_perm_b32 v{vD+n+1}, v{r+3}, v{r+2}, s{sSely}")
                A(f"v_or_b32 v{vD+n}, v{vD+n}, v{vD+n+1}")
                A(f"v_xor_b32 v{vD+n}, v{vD+n}, v{vT}")
                n += 1
            for r in extra:
                A(f"v_xor_b32 v{vD+n}, v{r}, v{vT}")
                n += 1
            for i in range(1, n):
                A(f"v_or_b32 v{vD}, v{vD}, v{vD+i}")
            A(f"v_cmp_ne_u32 vcc, 0, v{vD}")

        def poll(loads, check, delay, lane0=None):
            lp, lok = self.lab("poll"), self.lab("pok")
            if delay:
                A(f"s_sleep {delay}")
            if self.ts == 1 and lane0:
                A(f"s_mov_b32 s{sJ2}, {lane0}")
            A(f"{lp}:")
            if self.ts == 1 and lane0:
                A("s_memrealtime s[96:97]")
                A(f"s_min_u32 m0, s{sJ2}, {lane0+4}")
                A(f"s_add_u32 s{sJ2}, s{sJ2}, 1")
                A("s_waitcnt lgkmcnt(0)")
                A(f"v_writelane_b32 v{vTS}, s96, m0")
            loads()
            A("s_mov_b64 exec, -1")
            A(f"s_sub_u32 s{sSpin}, s{sSpin}, 1")
            A("s_cbranch_scc1 L_end")
            A("s_waitcnt vmcnt(0)")
            check()
            A(f"s_cbranch_vccz {lok}")
            A("s_mov_b64 exec, vcc")
            A(f"s_branch {lp}")
            A(f"{lok}:")

        def xreduce(regs, op, tmp):
            A("s_nop 1")
            for r in regs:
                A(f"{op}_dpp v{r}, v{r}, v{r} row_ror:8 {DPPM}")
            for sw in ("v_permlane16_swap_b32", "v_permlane32_swap_b32"):
                for i, r in enumerate(regs):
                    A(f"v_mov_b32 v{tmp+i}, v{r}")
                A("s_nop 1")
                for i, r in enumerate(regs):
                    A(f"{sw} v{r}, v{tmp+i}")
                for i, r in enumerate(regs):
                    A(f"{op} v{r}, v{r}, v{tmp+i}")

        A(f"s_bitcmp1_b32 s{sW}, 0")
        A("s_cbranch_scc0 L_t3")
        oa, obb, mla, mlb = RING, RING + 4, RING + 8, RING + 12
        A(f"s_lshr_b32 s{sT1}, s{sW}, 1")
        A(f"s_lshl_b32 s{sT1}, s{sT1}, 7")
        A(f"v_lshrrev_b32 v{vA}, 4, v{vLane}")
        A(f"v_lshlrev_b32 v{vA}, 5, v{vA}")
        A(f"v_and_b32 v{vB}, 7, v{vLane}")
        A(f"v_lshl_add_u32 v{vA}, v{vB}, 2, v{vA}")
        A(f"v_add_u32 v{vA}, s{sT1}, v{vA}")

        def h1loads():
            A(f"buffer_load_dwordx4 {vr(mla,4)}, v{vT2m}, {srd(sWS)}, s{sGM} offen sc1")
            A(f"buffer_load_dwordx4 {vr(mlb,4)}, v{vT2m}, {srd(sWS)}, s{sGM} offen offset:1024 sc1")
            A(f"buffer_load_dwordx4 {vr(oa,4)}, v{vT2o}, {srd(sWS)}, s{sG1} offen sc1")
            A(f"buffer_load_dwordx4 {vr(obb,4)}, v{vT2o}, {srd(sWS)}, s{sG2} offen sc1")
        poll(h1loads, lambda: tagcheck([oa, obb], [mla + 1, mla + 3, mlb + 1, mlb + 3]), self.d1, 51)
        self.TS(8)
        Mg = vD
        A(f"v_max_f32 v{Mg}, v{mla}, v{mlb}")
        xreduce([Mg], "v_max_f32", vD + 8)
        A(f"v_mul_f32 v{Mg}, s{sC}, v{Mg}")
        A(f"v_fma_f32 v{mla}, v{mla}, s{sC}, -v{Mg}")
        A(f"v_fma_f32 v{mlb}, v{mlb}, s{sC}, -v{Mg}")
        A(f"v_exp_f32 v{mla}, v{mla}")
        A(f"v_exp_f32 v{mlb}, v{mlb}")
        A("s_nop 0")
        Lr, o0 = vD + 1, vD + 2
        A(f"v_mul_f32 v{Lr}, v{mla}, v{mla+2}")
        for i in range(4):
            A(f"v_mul_f32 v{o0+i}, v{mla}, v{oa+i}")
        A(f"v_fmac_f32 v{Lr}, v{mlb}, v{mlb+2}")
        for i in range(4):
            A(f"v_fmac_f32 v{o0+i}, v{mlb}, v{obb+i}")
        A(f"v_mov_b32 v{vD+8}, v{Lr}")
        A("s_nop 0")
        A(f"v_permlane32_swap_b32 v{o0}, v{o0+2}")
        A(f"v_permlane32_swap_b32 v{o0+1}, v{o0+3}")
        A(f"v_permlane32_swap_b32 v{Lr}, v{vD+8}")
        A(f"v_add_f32 v{o0}, v{o0}, v{o0+2}")
        A(f"v_add_f32 v{o0+1}, v{o0+1}, v{o0+3}")
        A(f"v_add_f32 v{Lr}, v{Lr}, v{vD+8}")
        A(f"v_mov_b32 v{vD+8}, v{Lr}")
        A("s_nop 1")
        A(f"v_permlane16_swap_b32 v{Lr}, v{vD+8}")
        A(f"v_permlane16_swap_b32 v{o0}, v{o0+1}")
        A(f"v_add_f32 v{Lr}, v{Lr}, v{vD+8}")
        A(f"v_add_f32 v{o0}, v{o0}, v{o0+1}")
        A("s_nop 0")
        A(f"v_add_f32_dpp v{Lr}, v{Lr}, v{Lr} row_ror:8 {DPPM}")
        A(f"v_add_f32_dpp v{o0}, v{o0}, v{o0} row_ror:8 {DPPM}")
        A(f"v_rcp_f32 v{Lr}, v{Lr}")
        A("s_mov_b32 exec_lo, 0x00ff00ff")
        A("s_mov_b32 exec_hi, 0x00ff00ff")
        A(f"v_mul_f32 v{o0}, v{o0}, v{Lr}")
        A(f"v_cvt_pk_bf16_f32 v{o0}, v{o0}, v{o0}")
        A(f"ds_write_b32 v{vA}, v{o0} offset:{L_OF}")
        A("s_mov_b64 exec, -1")

        A("L_t3:")
        A("s_waitcnt vmcnt(0) lgkmcnt(0)")
        A("s_barrier")
        ob = RING
        bo = slot(2, 0)
        A(f"ds_read_b128 {vr(ob,4)}, v{vOfR} offset:{L_OF}")
        A(f"ds_read_b128 {vr(ob+4,4)}, v{vOfR} offset:{L_OF+16}")
        for i in range(8):
            if i == 0:
                A("s_waitcnt lgkmcnt(1)")
            if i == 4:
                A("s_waitcnt lgkmcnt(0)")
            for j in range(4):
                A(f"v_and_b32 v{bo+4*i+j}, v{ob+i}, v{mk+j}")
            if i > 0:
                c = "0" if i == 1 else vr(res, 4)
                A(f"v_mfma_f32_16x16x32_bf16 {vr(res,4)}, {vr(vWO+4*(i-1),4)}, {vr(bo+4*(i-1),4)}, {c}")
        A("s_nop 0")
        A(f"v_mfma_f32_16x16x32_bf16 {vr(res,4)}, {vr(vWO+28,4)}, {vr(bo+28,4)}, {vr(res,4)}")
        A("s_nop 7")
        for i in range(4):
            A(f"v_and_or_b32 v{res+i}, v{res+i}, s{sMaskHi}, v{tb+i}")
        A(f"buffer_store_dwordx4 {vr(res,4)}, v{vLin}, {srd(sWS)}, s{sSt2} offen sc1")
        self.TS(9)

        LC = self.LC
        lg = LC.bit_length() - 1
        if self.ts:
            la = self.lab("ack")
            A(f"s_cmp_eq_u32 s{sRed}, 0")
            A(f"s_cbranch_scc1 {la}")
            A("s_waitcnt vmcnt(0)")
            self.TS(61)
            A(f"{la}:")
        A(f"s_cmp_lg_u32 s{sRed}, 0")
        A("s_cbranch_scc1 L_fin")
        ca = RING
        A(f"s_lshr_b32 s{sT1}, s2, 3")
        A(f"s_lshl_b32 s{sT2}, s{sT1}, 7")
        A(f"s_lshl_b32 s{sT3}, s{sW}, 18")
        A(f"s_add_u32 s{sT2}, s{sT2}, s{sT3}")
        A(f"s_and_b32 s{sIdx}, s2, {8-LC}")
        A(f"s_lshl_b32 s{sT3}, s{sIdx}, 4")
        A(f"s_add_u32 s{sT2}, s{sT2}, s{sT3}")
        A(f"s_add_u32 s{sT2}, s{sT2}, {WS_C}")
        A(f"v_and_b32 v{vB}, {LC-1}, v{vLane}")
        for k in range(LC):
            A(f"s_add_u32 s{12+k}, s{sT2}, {k*(64//LC)*4096}")
        l = self.lab("nog2")
        A(f"s_cmp_lg_u32 s{sW}, 3")
        A(f"s_cbranch_scc1 {l}")
        g0 = slot(4, 0)
        for j in range(4):
            A(f"v_lshlrev_b32 v{g0+4*j}, 16, v{vG+j}")
            A(f"v_and_b32 v{g0+4*j+1}, 0xffff0000, v{vG+j}")
            A(f"v_lshlrev_b32 v{g0+4*j+2}, 16, v{vG+4+j}")
            A(f"v_and_b32 v{g0+4*j+3}, 0xffff0000, v{vG+4+j}")
        for j in range(4):
            A(f"v_mul_f32 v{g0+4*j}, v{g0+4*j}, v{g0+4*j+2}")
            A(f"v_mul_f32 v{g0+4*j+1}, v{g0+4*j+1}, v{g0+4*j+3}")
        for j in range(4):
            A(f"v_cvt_pk_bf16_f32 v{g0+4*j}, v{g0+4*j}, v{g0+4*j+1}")
        for j in range(4):
            A(f"v_and_b32 v{g0+4*j+1}, 0xffff0000, v{g0+4*j}")
            A(f"v_lshlrev_b32 v{g0+4*j}, 16, v{g0+4*j}")
        for j in range(4):
            A(f"v_add_f32 v{g0+4*j}, v{g0+4*j}, v{g0+4*j+1}")
        A(f"v_add_f32 v{g0}, v{g0}, v{g0+4}")
        A(f"v_add_f32 v{g0+8}, v{g0+8}, v{g0+12}")
        A(f"v_add_f32 v{g0}, v{g0}, v{g0+8}")
        for ror in (1, 2, 4):
            A("s_nop 1")
            A(f"v_add_f32_dpp v{g0}, v{g0}, v{g0} row_ror:{ror} {DPPM}")
        xreduce([g0], "v_add_f32", g0 + 1)
        A(f"v_cvt_pk_bf16_f32 v{g0}, v{g0}, v{g0}")
        A(f"v_and_b32 v{g0}, 0xffff0000, v{g0}")
        A(f"v_mul_f32 v{g0}, {f2u(-1.4426950408889634):#x}, v{g0}")
        A(f"v_exp_f32 v{g0}, v{g0}")
        A("s_nop 0")
        A(f"v_add_f32 v{g0}, 1.0, v{g0}")
        A(f"v_rcp_f32 v{g0}, v{g0}")
        A("s_nop 0")
        A(f"v_cvt_pk_bf16_f32 v{g0}, v{g0}, v{g0}")
        A(f"v_and_b32 v{g0}, 0xffff0000, v{g0}")
        A(f"v_mov_b32 v{g0+1}, {L_G}")
        A("s_mov_b64 exec, 1")
        A(f"ds_write_b32 v{g0+1}, v{g0}")
        A("s_mov_b64 exec, -1")
        A(f"{l}:")

        def h2loads():
            for k in range(LC):
                A(f"buffer_load_dwordx4 {vr(ca+4*k,4)}, v{vH2}, {srd(sWS)}, s{12+k} offen sc1")
        poll(h2loads, lambda: tagcheck([ca + 4 * k for k in range(LC)], []), self.d2, 56)
        self.TS(10)
        st = 2 * LC
        while st >= 4:
            for i in range(st):
                A(f"v_add_f32 v{ca+i}, v{ca+i}, v{ca+st+i}")
            st //= 2
        A("s_nop 1")
        A(f"v_permlane32_swap_b32 v{ca}, v{ca+2}")
        A(f"v_permlane32_swap_b32 v{ca+1}, v{ca+3}")
        A(f"v_add_f32 v{ca}, v{ca}, v{ca+2}")
        A(f"v_add_f32 v{ca+1}, v{ca+1}, v{ca+3}")
        A("s_nop 1")
        A(f"v_permlane16_swap_b32 v{ca}, v{ca+1}")
        A(f"v_add_f32 v{ca}, v{ca}, v{ca+1}")
        A(f"v_lshrrev_b32 v{vA}, 4, v{vLane}")
        A(f"v_lshlrev_b32 v{vA}, 5, v{vA}")
        A(f"v_add_f32_dpp v{ca}, v{ca}, v{ca} row_ror:8 {DPPM}")
        A(f"v_lshl_add_u32 v{vA}, v{vB}, 2, v{vA}")
        A(f"s_lshl_b32 s{sT2}, s{sW}, 7")
        ror = 4
        while ror >= LC:
            A(f"v_add_f32_dpp v{ca}, v{ca}, v{ca} row_ror:{ror} {DPPM}")
            A("s_nop 1")
            ror //= 2
        A(f"v_add_u32 v{vA}, s{sT2}, v{vA}")
        m16 = (1 << LC) - 1
        A(f"s_mov_b32 exec_lo, {m16 | (m16 << 16):#x}")
        A(f"s_mov_b32 exec_hi, {m16 | (m16 << 16):#x}")
        A(f"ds_write_b32 v{vA}, v{ca} offset:{L_R}")
        A("s_mov_b64 exec, -1")
        A(f"v_and_b32 v{vB}, 31, v{vLane}")
        A(f"v_lshlrev_b32 v{vA}, 2, v{vB}")
        A(f"v_add_u32 v{vAl}, {L_R}, v{vA}")
        A(f"v_mov_b32 v{vD}, {L_G}")
        A(f"s_lshr_b32 s{sT2}, s{sT1}, 1")
        A(f"s_lshl_b32 s{sT2}, s{sT2}, 6")
        A(f"s_and_b32 s{sT3}, s{sT1}, 1")
        A(f"s_lshl_b32 s{sT3}, s{sT3}, 10")
        A(f"s_add_u32 s{sT2}, s{sT2}, s{sT3}")
        A(f"s_lshl_b32 s{sT3}, s{sIdx}, 1")
        A(f"s_add_u32 s{sT2}, s{sT2}, s{sT3}")
        A(f"v_lshlrev_b32 v{vA}, 1, v{vB}")
        A("s_waitcnt lgkmcnt(0)")
        A("s_barrier")
        A(f"s_cmp_lg_u32 s{sW}, 0")
        A("s_cbranch_scc1 L_fin")
        fa = RING
        for w in range(2):
            A(f"ds_read2_b32 {vr(fa+2*w,2)}, v{vAl} offset0:{w*32} offset1:{w*32+64}")
        A(f"ds_read_b32 v{vD}, v{vD}")
        A("s_waitcnt lgkmcnt(0)")
        A(f"v_add_f32 v{fa}, v{fa}, v{fa+2}")
        A(f"v_add_f32 v{fa+1}, v{fa+1}, v{fa+3}")
        A(f"v_sub_f32 v{vD+1}, 1.0, v{vD}")
        A(f"v_cvt_pk_bf16_f32 v{fa}, v{fa}, v{fa+1}")
        A(f"v_cvt_pk_bf16_f32 v{vD+1}, v{vD+1}, v{vD+1}")
        A(f"v_and_b32 v{fa+1}, 0xffff0000, v{fa}")
        A(f"v_lshlrev_b32 v{fa}, 16, v{fa}")
        A(f"v_and_b32 v{vD+1}, 0xffff0000, v{vD+1}")
        A(f"v_mul_f32 v{fa}, v{fa}, v{vD}")
        A(f"v_mul_f32 v{fa+1}, v{fa+1}, v{vD+1}")
        A(f"v_cvt_pk_bf16_f32 v{fa}, v{fa}, v{fa+1}")
        A(f"v_and_b32 v{fa+1}, 0xffff0000, v{fa}")
        A(f"v_lshlrev_b32 v{fa}, 16, v{fa}")
        A(f"v_add_f32 v{fa}, v{fa}, v{fa+1}")
        A(f"v_cvt_pk_bf16_f32 v{fa}, v{fa}, v{fa}")
        A("s_mov_b32 exec_hi, 0")
        A(f"s_mov_b32 exec_lo, {m16 * 0x01010101:#x}")
        A(f"buffer_store_short v{fa}, v{vA}, {srd(sOUT)}, s{sT2} offen {self.op}")
        A("s_cmp_lg_u32 s2, 0")
        A("s_cbranch_scc1 L_fin")
        A("s_mov_b64 exec, 1")
        A(f"v_mov_b32 v{vA}, {WS_EPOCH}")
        A(f"buffer_store_dword v{vT}, v{vA}, {srd(sWS)}, 0 offen sc1")
        A("L_fin:")
        if self.ts:
            A("s_mov_b64 exec, -1")
            self.TS(11)
            A(f"v_writelane_b32 v{vTS}, s{sJ}, 12")
            A("s_getreg_b32 s96, hwreg(HW_REG_XCC_ID)")
            A("s_nop 0")
            A(f"v_writelane_b32 v{vTS}, s96, 13")
            A(f"s_sub_u32 s96, {self.spin}, s{sSpin}")
            A(f"v_writelane_b32 v{vTS}, s96, 14")
            A(f"s_lshl_b32 s{sT1}, s2, 2")
            A(f"s_add_u32 s{sT1}, s{sT1}, s{sW}")
            A(f"s_lshl_b32 s{sT1}, s{sT1}, 8")
            A(f"s_add_u32 s{sT1}, s{sT1}, {WS_TS}")
            A(f"v_lshlrev_b32 v{vA}, 2, v{vLane}")
            A(f"buffer_store_dword v{vTS}, v{vA}, {srd(sWS)}, s{sT1} offen")
        A("L_end:")
        A("s_endpgm")
        body_txt = "\n".join(self.L)
        out = HDR + f"; @launch grid=(256,1,1) block=({64*NW},1,1) lds={LDS_BYTES}\n"
        out += '.amdgcn_target "amdgcn-amd-amdhsa--gfx950"\n.text\n'
        out += f".globl {name}\n.p2align 8\n.type {name},@function\n" + body_txt + "\n"
        out += f""".section .rodata,"a"
.p2align 6
.amdhsa_kernel {name}
  .amdhsa_next_free_vgpr 264
  .amdhsa_next_free_sgpr 102
  .amdhsa_accum_offset 256
  .amdhsa_group_segment_fixed_size 0
  .amdhsa_kernarg_size 112
  .amdhsa_user_sgpr_count 2
  .amdhsa_user_sgpr_kernarg_segment_ptr 1
  .amdhsa_system_sgpr_workgroup_id_x 1
.end_amdhsa_kernel
"""
        return out


if __name__ == "__main__":
    out = sys.argv[1]
    kw = {}
    for a in sys.argv[2:]:
        k, v = a.split("=")
        assert k in DEFAULTS, k
        kw[k] = type(DEFAULTS[k])(v.replace("+", " "))
    open(out, "w").write(Gen(**kw).gen())
    print("lds", LDS_BYTES)
```

```python
import sys, struct

NAME = "gated_mix__sliding_block_cached__gqa_block_cached__decode_kernel"

HDR = """; Kernarg layout for this problem (112 bytes, ptrs only, base s[0:1]):
"""

def f2u(x):
    return struct.unpack("<I", struct.pack("<f", x))[0]

WS_EPOCH = 0
WS_Q = 0x10000
WS_PML = 0x20000
WS_PO = 0x40000
WS_C = 0x140000
WS_TS = 0x300000
WS_SIZE = 0x400000

NW = 4
NU = 72
L_S = 0
U_STR = 1024 + 64
W_STR = 2 * U_STR
L_O = NU * 512
L_ML = L_O + 2 * NW * W_STR
L_Q = L_ML + 256
L_OF = L_Q + 1024
L_R = L_OF + 256
L_G = L_R + 512
L_C = L_G + 16
L_TK = L_C + 4
LDS_BYTES = L_C + 48
SENT = 0x7fc0dead

DEFAULTS = dict(D=5, DF=8, DQ=6, DE=12, R=5, P1=30, F0=0, fm=0, KF=4, d1=16, d2=22, ts=0, dbgts=0,
                kvpol="nt", wqpol="nt", wopol="nt", LC=8, qx=4, qn=8, ex=3, CK=0, CV=64, dk="65555555", dv="65555555", wod=0, st=0, vt=16, vx=0, op="sc1", P2=0, kpol="nt", vpol="nt", kapol="nt", vapol="nt", agl=0, bgl=0, qb=0, tq=0)

class Gen:
    def __init__(self, **kw):
        self.o = dict(DEFAULTS)
        self.o.update(kw)
        for k, v in self.o.items():
            setattr(self, k, v)
        if self.dbgts:
            self.ts = self.ts or 1
        self.L = []
        self.name = NAME
        self.spin = 1 << 20
        self.uid = 0

    def A(self, s):
        for line in s.split("\n"):
            line = line.strip()
            self.L.append(line if line.endswith(":") else "    " + line)

    def lab(self, base):
        self.uid += 1
        return f"L{base}_{self.uid}"

    def TS(self, k):
        if not self.ts:
            return
        A = self.A
        A("s_memrealtime s[96:97]")
        A("s_waitcnt lgkmcnt(0)")
        A(f"v_writelane_b32 v69, s96, {k}")

    def gen(self):
        A = self.A
        D, DF, DQ, R, P1, F0 = self.D, self.DF, self.DQ, self.R, self.P1, self.F0
        QBR = 0x200000 if self.qb else 32768
        WS_C = 0x220000 if self.qb else 0x140000
        WS_TS = 0x340000
        name = self.name
        DPPM = "row_mask:0xf bank_mask:0xf"
        sIdx = 3
        sRet = 4
        sDrain, sRed = 6, 7
        sF = 8
        sFB, sFA = 12, 14
        sVB, sVA = 16, 18
        sSlot = 20
        sWQ = 60
        sWO, sWS, sX, sOUT = 28, 32, 36, 40
        sW, sBH, sS, sB, sH = 44, 45, 46, 47, 76
        sPC = 52
        sCur, sJ2, sSw, sSub = 56, 57, 58, 59
        sBase, sAoff, sCA = 64, 65, 66
        sC, sJ, sOff2, sOff, sTk, sT, sSpin = 77, 78, 80, 81, 82, 83, 84
        sT0, sT1, sT2, sT3 = 85, 86, 87, 88
        sSelx, sSely, sMaskHi = 89, 90, 91
        sQm = 92
        vKoff, vLin, vLane = 1, 2, 3
        vQ, vQ2, DD = 4, 8, 12
        vM, vL, vMC, vmX, vmY, vA, vB, vAl = 28, 29, 30, 31, 32, 33, 34, 35
        vS, vt, vpd, vXY = 36, 40, 44, 48
        vO1, vO2 = 56, 60
        vTkA, vTkV, vF, vSl = 64, 65, 0, 71
        vT, vTS, vx0 = 68, 69, 70
        RING = 72
        vAlt = 232
        vD = 36
        vWoA, vMlW, vT1o, vT1m, vT2o, vT2m, vOfR, vH2 = 248, 249, 250, 251, 252, 253, 254, 255
        vTb, vMk = 244, 4
        sWo1, sWo2, sSt1, sStM, sG1, sG2, sGM, sSt2 = 48, 49, 50, 51, 60, 61, 62, 63
        assert R <= 5

        def srd(s):
            return f"s[{s}:{s+3}]"

        def sp(s):
            return f"s[{s}:{s+1}]"

        def vr(r, n):
            return f"v[{r}:{r+n-1}]"

        def slot(p, i):
            return RING + (p * 8 + i) * 4

        def fetch(p, i):
            A(f"buffer_load_dwordx4 {vr(slot(p,i),4)}, v{vF}, {srd(sF)}, s{(sOff, sOff2)[i>>2]} offen offset:{(i&3)*1024} {self.pol}")

        self.L.append(f"{name}:")
        A("s_cmp_ge_u32 s2, 256")
        A("s_cbranch_scc1 L_end")
        A("s_load_dwordx16 s[48:63], s[0:1], 0")
        A("s_load_dwordx8 s[64:71], s[0:1], 64")
        A("s_load_dwordx4 s[72:75], s[0:1], 96")
        if self.ts:
            A(f"v_mov_b32 v{vTS}, 0")
            A("s_memrealtime s[96:97]")
        A(f"v_lshrrev_b32 v{vA}, 6, v0")
        A(f"v_and_b32 v{vLane}, 63, v0")
        A(f"s_lshr_b32 s{sBH}, s2, 4")
        A(f"v_readfirstlane_b32 s{sW}, v{vA}")
        A(f"s_and_b32 s{sS}, s2, 15")
        A(f"s_lshr_b32 s{sB}, s{sBH}, 3")
        A(f"s_and_b32 s{sH}, s{sBH}, 7")
        A(f"v_lshrrev_b32 v{vA}, 2, v{vLane}")
        A(f"v_lshlrev_b32 v{vB}, 16, v{vA}")
        A(f"v_and_b32 v{vAl}, 3, v{vLane}")
        A(f"v_lshl_add_u32 v{vB}, v{vAl}, 4, v{vB}")
        A(f"v_lshlrev_b32 v{vSl}, 4, v{vA}")
        A(f"s_and_b32 s{sT0}, s{sS}, 7")
        A(f"s_lshl_b32 s{sT0}, s{sT0}, 7")
        A(f"s_lshr_b32 s{sT1}, s{sS}, 3")
        A(f"s_lshl_b32 s{sT1}, s{sT1}, 6")
        A(f"s_add_u32 s{sT0}, s{sT0}, s{sT1}")
        A(f"s_lshl_b32 s{sT1}, s{sH}, 10")
        A(f"s_add_u32 s{sT1}, s{sT1}, s{sT0}")
        A(f"s_lshl_b32 s{sT2}, s{sW}, 20")
        A(f"s_add_u32 s{sT1}, s{sT1}, s{sT2}")
        A(f"s_lshl_b32 s{sT2}, s{sW}, 8")
        A(f"v_lshlrev_b32 v{vLin}, 4, v{vLane}")
        A(f"v_lshrrev_b32 v{vKoff}, 4, v{vLane}")
        A(f"v_lshlrev_b32 v{vKoff}, 6, v{vKoff}")
        A(f"v_lshl_add_u32 v{vKoff}, v{vAl}, 4, v{vKoff}")
        A(f"v_bfe_u32 v{vA}, v{vLane}, 2, 2")
        A(f"v_lshl_add_u32 v{vKoff}, v{vA}, 8, v{vKoff}")
        A(f"v_mov_b32 v{vF}, v{vKoff}")
        A(f"s_lshl_b32 s{sT3}, s{sBH}, 23")
        ASH, BSH = (15 if self.agl else 16), (15 if self.bgl else 19)
        ARS, BRS = (19 if self.agl else 15), (19 if self.bgl else 15)
        if self.CK == 0:
            A(f"s_lshl_b32 s{sOff}, s{sS}, {ASH}")
            A(f"s_add_u32 s{sOff}, s{sOff}, {(32768-4096)*256}")
        else:
            A(f"s_lshl_b32 s{sOff}, s{sS}, {BSH}")
        A(f"s_lshl_b32 s{sOff2}, s{sW}, 12")
        A(f"s_add_u32 s{sOff}, s{sOff}, s{sOff2}")
        A(f"s_add_u32 s{sOff2}, s{sOff}, 16384")
        A(f"s_cmp_eq_u32 s{sB}, 0")
        A("s_waitcnt lgkmcnt(0)")
        if self.ts:
            A(f"v_writelane_b32 v{vTS}, s96, 0")
        A(f"s_cselect_b64 {sp(24)}, s[54:55], s[64:65]")
        A(f"s_cselect_b64 {sp(sWO)}, s[56:57], s[66:67]")
        A("s_mov_b32 s26, 0x400000")
        A("s_mov_b32 s27, 0x20000")
        A(f"s_mov_b64 {sp(sX)}, s[48:49]")
        A(f"s_mov_b32 s{sX+2}, 2048")
        A(f"s_mov_b32 s{sX+3}, 0x20000")
        vXd, vWd = DD, slot(R - 1, 0)
        A(f"buffer_load_dwordx4 {vr(vXd,4)}, v{vSl}, {srd(sX)}, s{sT2} offen")
        A(f"buffer_load_dwordx4 {vr(vXd+4,4)}, v{vSl}, {srd(sX)}, s{sT2} offen offset:1024")
        for i in range(8):
            A(f"buffer_load_dwordx4 {vr(vWd+4*i,4)}, v{vB}, {srd(24)}, s{sT1} offen {self.wqpol}")
            if i < 7:
                A(f"s_add_u32 s{sT1}, s{sT1}, 8192")
        A(f"s_load_dword s{sT}, s[74:75], {WS_EPOCH}")
        for (d, src) in ((sFB, 60), (sFA, 50), (sVB, 62), (sVA, 52)):
            A(f"s_add_u32 s{d}, s{src}, s{sT3}")
            A(f"s_addc_u32 s{d+1}, s{src+1}, 0")
        A(f"s_mov_b64 {sp(sF)}, {sp(sFA if self.CK == 0 else sFB)}")
        A(f"s_mov_b32 s{sF+2}, 0x800000")
        A(f"s_mov_b32 s{sF+3}, 0x20000")

        self.fill_pos = 0

        def issue_fill(paced):
            t, i = divmod(self.fill_pos, 8)
            if paced:
                extra = self.qx if (P1 <= self.fill_pos < P1 + self.qn or (self.P2 and self.fill_pos >= self.P2)) else 0
                dq = DQ + extra if self.fill_pos < 8 * R - 4 else self.DE
                A(f"s_waitcnt vmcnt({dq-1})")
            if i == 0 and t == 2 and self.CK == 0:
                A(f"s_mov_b64 {sp(sF)}, {sp(sFB)}")
                A(f"s_lshl_b32 s{sOff}, s{sS}, {BSH}")
                A(f"s_lshl_b32 s{sOff2}, s{sW}, 12")
                A(f"s_add_u32 s{sOff}, s{sOff}, s{sOff2}")
                A(f"s_add_u32 s{sOff2}, s{sOff}, 16384")
            elif i == 0 and t > 0:
                rs = 1 << (ARS if (self.CK == 0 and t < 2) else BRS)
                A(f"s_add_u32 s{sOff}, s{sOff}, {rs}")
                A(f"s_add_u32 s{sOff2}, s{sOff2}, {rs}")
            self.pol = self.kapol if (self.CK == 0 and t < 2) else self.kpol
            fetch(t, i)
            self.fill_pos += 1
            if self.ts == 2 and self.fill_pos % 2 == 0:
                self.TS(40 + self.fill_pos // 2)

        for _ in range(F0):
            issue_fill(False)
        A(f"s_getpc_b64 {sp(sPC)}")
        A("L_pc:")
        A(f"s_mov_b32 s{sPC+2}, L_end-L_pc")
        A(f"s_mov_b32 s{sPC+3}, 0x20000")
        A(f"v_mov_b32 v{vx0}, {L_C}")
        A(f"v_mov_b32 v{vM}, 0")
        A(f"v_mov_b32 v{vM+1}, {R*NW}")
        A(f"ds_write_b64 v{vx0}, {vr(vM,2)}")
        for i in range(4):
            A(f"v_mov_b32 v{vS+i}, {SENT:#x}")
        A(f"s_mul_i32 s{sT1}, s{sW}, {NU*512//NW}")
        A(f"v_add_u32 v{vx0}, s{sT1}, v{vLin}")
        for i in range(NU * 512 // NW // 1024):
            A(f"ds_write_b128 v{vx0}, {vr(vS,4)} offset:{L_S+i*1024}")
        A(f"s_mov_b64 {sp(sWS)}, s[74:75]")
        A(f"s_mov_b32 s{sWS+2}, {WS_SIZE}")
        A(f"s_mov_b32 s{sWS+3}, 0x20000")
        A(f"s_mov_b32 s{sC}, {f2u(128 ** -0.5 * 1.4426950408889634):#x}")
        A(f"s_mov_b32 s{sWO+2}, 0x400000")
        A(f"s_mov_b32 s{sWO+3}, 0x20000")
        A(f"s_mov_b64 {sp(sOUT)}, s[70:71]")
        A(f"s_mov_b32 s{sOUT+2}, 2048")
        A(f"s_mov_b32 s{sOUT+3}, 0x20000")
        A(f"s_mov_b32 s{sSelx}, 0x0c0c0400")
        A(f"s_mov_b32 s{sSely}, 0x04000c0c")
        A(f"s_mov_b32 s{sMaskHi}, 0xffffff00")
        A(f"s_mov_b32 s{sQm}, 0x11111111")
        A(f"s_mov_b32 s{sQm+1}, 0x11111111")
        A(f"s_mov_b32 s{sJ}, 0")
        A(f"s_mov_b32 s{sCur}, 0")
        A(f"s_mov_b32 s{sSw}, {NU}")
        A(f"s_mov_b32 s{sSub}, 0")
        A(f"s_mov_b32 s{sSpin}, {self.spin}")
        A(f"s_lshr_b32 s{sRed}, s2, 3")
        A(f"s_xor_b32 s{sRed}, s{sRed}, s2")
        A(f"s_and_b32 s{sRed}, s{sRed}, {self.LC-1}")
        A(f"s_lshl_b32 s{sBase}, s{sS}, {BSH}")
        A(f"s_lshl_b32 s{sAoff}, s{sS}, {ASH}")
        A(f"s_add_u32 s{sAoff}, s{sAoff}, {(32768-4096)*256}")
        A(f"s_mov_b32 s{sCA}, {self.CK}")
        assert (self.CK == 0 or self.CK >= R * NW) and self.CK <= 64 and self.CV <= 64
        A(f"v_and_b32 v{vA}, 1, v{vLane}")
        A(f"v_lshlrev_b32 v{vA}, 4, v{vA}")
        A(f"v_mov_b32 v{vmX}, 0xffff")
        A(f"v_lshlrev_b32 v{vmX}, v{vA}, v{vmX}")
        A(f"v_and_b32 v{vA}, 2, v{vLane}")
        A(f"v_cmp_eq_u32 vcc, 0, v{vA}")
        A(f"v_mov_b32 v{vTkA}, {L_TK}")
        A(f"v_mov_b32 v{vMC}, 0xff7fffff")
        A(f"v_cndmask_b32 v{vmY}, v{vmX}, 0, vcc")
        A(f"v_cndmask_b32 v{vmX}, 0, v{vmX}, vcc")
        A(f"v_lshrrev_b32 v{vA}, 5, v{vLane}")
        A(f"v_lshlrev_b32 v{vA}, 7, v{vA}")
        A(f"v_lshl_add_u32 v{vA}, v{vAl}, 5, v{vA}")
        A(f"v_and_b32 v{vB}, 16, v{vLane}")
        A(f"s_lshl_b32 s{sT1}, s{sW}, 8")
        A(f"v_add3_u32 v{vA}, v{vA}, v{vB}, s{sT1}")
        A("s_waitcnt lgkmcnt(0)")
        A("s_barrier")
        A(f"s_mul_i32 s{sT}, s{sT}, 0x9e3779b1")
        A(f"s_add_u32 s{sT}, s{sT}, 0x7f4a7c15")
        A(f"s_or_b32 s{sT}, s{sT}, 1")
        A(f"v_mov_b32 v{vT}, s{sT}")
        A(f"v_mov_b32 v{vM}, 0xff7fffff")
        A(f"v_mov_b32 v{vL}, 0")
        A(f"s_waitcnt vmcnt({F0+7})")
        self.TS(1)
        acc = vAlt
        xs = 36
        tw = 20
        for b in range(2):
            for j in range(4):
                A(f"v_lshlrev_b32 v{xs+b*8+2*j}, 16, v{vXd+4*b+j}")
                A(f"v_and_b32 v{xs+b*8+2*j+1}, 0xffff0000, v{vXd+4*b+j}")
        for i in range(8):
            if i > 0:
                A(f"s_waitcnt vmcnt({F0+7})")
            issue_fill(False)
            for j in range(4):
                w = vWd + 4 * i + j
                lo, hi = tw + (j & 1) * 2, tw + (j & 1) * 2 + 1
                A(f"v_lshlrev_b32 v{lo}, 16, v{w}")
                A(f"v_and_b32 v{hi}, 0xffff0000, v{w}")
                for b in range(2):
                    op = "v_mul_f32" if i == 0 else "v_fmac_f32"
                    A(f"{op} v{acc+8*b+2*j}, v{lo}, v{xs+8*b+i}")
                    A(f"{op} v{acc+8*b+2*j+1}, v{hi}, v{xs+8*b+i}")
        A("s_nop 1")
        for i in range(8):
            A(f"v_permlane32_swap_b32 v{acc+i}, v{acc+i+8}")
        for i in range(8):
            A(f"v_add_f32 v{acc+i}, v{acc+i}, v{acc+i+8}")
        if self.ex >= 1:
            issue_fill(False)
        A("s_nop 1")
        for i in range(4):
            A(f"v_permlane16_swap_b32 v{acc+i}, v{acc+i+4}")
        for i in range(4):
            A(f"v_add_f32 v{acc+i}, v{acc+i}, v{acc+i+4}")
        A("s_nop 1")
        for i in range(4):
            A(f"v_add_f32_dpp v{acc+i}, v{acc+i}, v{acc+i} row_ror:8 {DPPM}")
        A("s_nop 1")
        for i in range(4):
            A(f"v_add_f32_dpp v{acc+i}, v{acc+i}, v{acc+i} row_ror:4 {DPPM}")
        A("s_mov_b32 exec_lo, 0x000f000f")
        A("s_mov_b32 exec_hi, 0x000f000f")
        A(f"ds_write_b128 v{vA}, {vr(acc,4)} offset:{L_Q}")
        A("s_mov_b64 exec, 1")
        A(f"v_mov_b32 v{vA}, {L_C}")
        A(f"v_mov_b32 v{vB}, 1")
        A("s_waitcnt lgkmcnt(0)")
        A(f"ds_add_rtn_u32 v{vB}, v{vA}, v{vB}")
        A("s_mov_b64 exec, -1")
        if self.ex >= 2:
            issue_fill(False)
        l = self.lab("nopf")
        A(f"s_cmp_lg_u32 s{sW}, {NW-1}")
        A(f"s_cbranch_scc1 {l}")
        A(f"v_lshlrev_b32 v{vx0}, 7, v{vLane}")
        A(f"s_movk_i32 s{sT1}, 0x2000")
        A(f"buffer_load_dword v66, v{vx0}, {srd(sPC)}, 0 offen")
        A(f"buffer_load_dword v67, v{vx0}, {srd(sPC)}, s{sT1} offen")
        A(f"s_movk_i32 s{sT1}, 0x4000")
        A(f"buffer_load_dword v67, v{vx0}, {srd(sPC)}, s{sT1} offen")
        A(f"{l}:")
        A("s_waitcnt lgkmcnt(0)")
        if self.ex >= 3:
            issue_fill(False)
        A(f"v_readfirstlane_b32 s{sT1}, v{vB}")
        l = self.lab("nosvc")
        A(f"v_lshlrev_b32 v{vA}, 2, v{vLane}")
        A("s_nop 2")
        A(f"s_cmp_lg_u32 s{sT1}, {NW-1}")
        A(f"s_cbranch_scc1 {l}")
        for w in range(NW):
            A(f"ds_read_b32 v{acc+w}, v{vA} offset:{L_Q+w*256}")
        A(f"s_mul_i32 s{sT1}, s{sB}, {QBR}")
        A(f"s_lshl_b32 s{sT2}, s{sH}, 11")
        A(f"s_add_u32 s{sT1}, s{sT1}, s{sT2}")
        A(f"s_lshl_b32 s{sT2}, s{sT0}, 1")
        A(f"s_add_u32 s{sT1}, s{sT1}, s{sT2}")
        A(f"s_add_u32 s{sT1}, s{sT1}, {WS_Q}")
        A(f"v_lshrrev_b32 v{vB}, 5, v{vLane}")
        A(f"v_lshlrev_b32 v{vB}, 14, v{vB}")
        A(f"v_and_b32 v{vA}, 31, v{vLane}")
        A(f"v_lshl_add_u32 v{vB}, v{vA}, 2, v{vB}")
        A("s_waitcnt lgkmcnt(0)")
        A(f"v_add_f32 v{acc}, v{acc}, v{acc+1}")
        A(f"v_add_f32 v{acc+2}, v{acc+2}, v{acc+3}")
        A(f"v_add_f32 v{acc}, v{acc}, v{acc+2}")
        A(f"v_mov_b32 v{acc+13}, v{vT}")
        A(f"v_mov_b32 v{acc+15}, v{vT}")
        A(f"v_mov_b32_dpp v{acc+1}, v{acc} quad_perm:[1,1,3,3] {DPPM}")
        A("s_nop 0")
        A(f"v_cvt_pk_bf16_f32 v{acc+12}, v{acc}, v{acc+1}")
        A("s_nop 1")
        A(f"v_mov_b32_dpp v{acc+14}, v{acc+12} quad_perm:[2,2,2,2] {DPPM}")
        A(f"s_mov_b64 exec, {sp(sQm)}")
        A(f"buffer_store_dwordx4 {vr(acc+12,4)}, v{vB}, {srd(sWS)}, s{sT1} offen sc1")
        A("s_mov_b64 exec, -1")
        self.TS(2)
        A(f"{l}:")
        vQg = DD
        A(f"v_lshlrev_b32 v{vA}, 1, v{vKoff}")
        A(f"s_lshl_b32 s{sT1}, s{sBH}, 11")
        A(f"s_add_u32 s{sT1}, s{sT1}, {WS_Q}")
        A(f"s_add_u32 s{sT2}, s{sT1}, {QBR}")
        for i in range(8):
            A(f"v_mov_b32 v{vO1+i}, 0")
            A(f"v_mov_b32 v{vAlt+i}, 0")
        A(f"v_mov_b32 v{vAlt+8}, 0xff7fffff")
        A(f"v_mov_b32 v{vAlt+9}, 0")
        A(f"v_mov_b32 v{vAlt+10}, 0xff7fffff")
        for p in range(R):
            if self.CK == 0:
                A(f"s_add_u32 s{sSlot+p}, s{sW}, {64+NW*p if p < 2 else NW*(p-2)}")
            else:
                A(f"s_add_u32 s{sSlot+p}, s{sW}, {NW*p}")


        def tail_constants(part):
            if part == 0:
                A(f"s_lshl_b32 s{sWo1}, s{sH}, 19")
                A(f"s_lshl_b32 s{sWo2}, s{sS}, 15")
                A(f"s_add_u32 s{sWo1}, s{sWo1}, s{sWo2}")
                A(f"s_lshl_b32 s{sWo2}, s{sW}, 8")
                A(f"s_add_u32 s{sWo1}, s{sWo1}, s{sWo2}")
                A(f"s_add_u32 s{sWo2}, s{sWo1}, 4096")
                A(f"v_lshrrev_b32 v{vWoA}, 4, v{vLane}")
                A(f"v_lshlrev_b32 v{vWoA}, 13, v{vWoA}")
                A(f"v_and_b32 v{vB}, 15, v{vLane}")
                A(f"v_lshl_add_u32 v{vWoA}, v{vB}, 4, v{vWoA}")
                A(f"v_bfe_u32 v{vMlW}, v{vLane}, 2, 2")
                A(f"v_lshlrev_b32 v{vMlW}, 5, v{vMlW}")
                A(f"s_lshl_b32 s{sT3}, s{sW}, 3")
                A(f"v_add_u32 v{vMlW}, s{sT3}, v{vMlW}")
            if part == 1:
                A(f"s_lshr_b32 s{sT0}, s{sW}, 1")
                A(f"s_and_b32 s{sIdx}, s{sW}, 1")
                A(f"s_lshl_b32 s{sT3}, s{sT0}, 7")
                A(f"v_bfe_u32 v{vT1m}, v{vLane}, 3, 2")
                A(f"v_lshlrev_b32 v{vT1m}, 5, v{vT1m}")
                A(f"v_add_u32 v{vT1m}, s{sT3}, v{vT1m}")
                A(f"s_mul_i32 s{sT3}, s{sT0}, {NW*W_STR}")
                A(f"s_lshl_b32 s{sSt1}, s{sIdx}, 9")
                A(f"s_add_u32 s{sT3}, s{sT3}, s{sSt1}")
                A(f"v_lshrrev_b32 v{vT1o}, 3, v{vLane}")
                A(f"v_lshlrev_b32 v{vT1o}, 6, v{vT1o}")
                A(f"v_and_b32 v{vB}, 3, v{vLane}")
                A(f"v_lshl_add_u32 v{vT1o}, v{vB}, 4, v{vT1o}")
                A(f"v_bfe_u32 v{vB}, v{vLane}, 2, 1")
                A(f"v_mul_u32_u24 v{vB}, {U_STR}, v{vB}")
                A(f"v_add3_u32 v{vT1o}, v{vT1o}, v{vB}, s{sT3}")
                A(f"s_lshl_b32 s{sT3}, s{sT0}, 8")
                A(f"s_add_u32 s{sT3}, s{sT3}, s2")
                A(f"s_lshl_b32 s{sSt1}, s{sT3}, 11")
                A(f"s_lshl_b32 s{sStM}, s{sIdx}, 10")
                A(f"s_add_u32 s{sSt1}, s{sSt1}, s{sStM}")
                A(f"s_add_u32 s{sSt1}, s{sSt1}, {WS_PO}")
                A(f"s_lshl_b32 s{sStM}, s{sT3}, 7")
                A(f"s_add_u32 s{sStM}, s{sStM}, {WS_PML}")
            if part == 2:
                A(f"s_lshr_b32 s{sT0}, s{sW}, 1")
                A(f"s_lshl_b32 s{sT0}, s{sT0}, 7")
                A(f"s_lshl_b32 s{sT3}, s{sB}, 8")
                A(f"s_add_u32 s{sT0}, s{sT0}, s{sT3}")
                A(f"s_lshl_b32 s{sT3}, s{sH}, 4")
                A(f"s_add_u32 s{sT0}, s{sT0}, s{sT3}")
                A(f"s_and_b32 s{sG1}, s{sS}, 3")
                A(f"s_lshl_b32 s{sG1}, s{sG1}, 9")
                A(f"s_lshr_b32 s{sT3}, s{sS}, 2")
                A(f"s_lshl_b32 s{sG2}, s{sT3}, 7")
                A(f"s_add_u32 s{sG1}, s{sG1}, s{sG2}")
                A(f"s_lshl_b32 s{sG2}, s{sT0}, 11")
                A(f"s_add_u32 s{sG1}, s{sG1}, s{sG2}")
                A(f"s_add_u32 s{sG1}, s{sG1}, {WS_PO}")
                A(f"s_add_u32 s{sG2}, s{sG1}, 16384")
                A(f"s_lshl_b32 s{sGM}, s{sT0}, 7")
                A(f"s_lshl_b32 s{sT3}, s{sT3}, 4")
                A(f"s_add_u32 s{sGM}, s{sGM}, s{sT3}")
                A(f"s_add_u32 s{sGM}, s{sGM}, {WS_PML}")
                A(f"v_lshrrev_b32 v{vT2m}, 3, v{vLane}")
                A(f"v_lshlrev_b32 v{vT2o}, 11, v{vT2m}")
                A(f"v_and_b32 v{vB}, 7, v{vLane}")
                A(f"v_lshl_add_u32 v{vT2o}, v{vB}, 4, v{vT2o}")
                A(f"v_lshlrev_b32 v{vT2m}, 7, v{vT2m}")
            if part == 3:
                A(f"v_and_b32 v{vTb}, 0xff, v{vT}")
                A(f"v_bfe_u32 v{vTb+1}, v{vT}, 8, 8")
                A(f"v_bfe_u32 v{vTb+2}, v{vT}, 16, 8")
                A(f"v_lshrrev_b32 v{vTb+3}, 24, v{vT}")
                A(f"v_bfe_u32 v{vOfR}, v{vLane}, 3, 1")
                A(f"v_lshlrev_b32 v{vOfR}, 7, v{vOfR}")
                A(f"v_lshrrev_b32 v{vB}, 4, v{vLane}")
                A(f"v_lshl_add_u32 v{vOfR}, v{vB}, 5, v{vOfR}")
                A(f"s_lshl_b32 s{sSt2}, s{sW}, 10")
                A(f"s_lshl_b32 s{sT3}, s2, 12")
                A(f"s_add_u32 s{sSt2}, s{sSt2}, s{sT3}")
                A(f"s_add_u32 s{sSt2}, s{sSt2}, {WS_C}")
                A(f"v_lshrrev_b32 v{vH2}, {self.LC.bit_length()-1}, v{vLane}")
                A(f"v_lshlrev_b32 v{vH2}, 12, v{vH2}")
                A(f"v_and_b32 v{vB}, {self.LC-1}, v{vLane}")
                A(f"v_lshl_add_u32 v{vH2}, v{vB}, 4, v{vH2}")

        def q_loads():
            A(f"buffer_load_dwordx4 {vr(vQg,4)}, v{vA}, {srd(sWS)}, s{sT1} offen sc1")
            A(f"buffer_load_dwordx4 {vr(vQg+4,4)}, v{vA}, {srd(sWS)}, s{sT1} offen offset:16 sc1")
            A(f"buffer_load_dwordx4 {vr(vQg+8,4)}, v{vA}, {srd(sWS)}, s{sT2} offen sc1")
            A(f"buffer_load_dwordx4 {vr(vQg+12,4)}, v{vA}, {srd(sWS)}, s{sT2} offen offset:16 sc1")

        def claim():
            A(f"v_mov_b32 v{vTkV}, 1")
            A("s_mov_b64 exec, 1")
            A(f"ds_add_rtn_u32 v{vTkV}, v{vTkA}, v{vTkV}")
            A("s_mov_b64 exec, -1")

        assert self.DE <= 16
        while self.fill_pos < 8 * R:
            if self.fill_pos == P1 or (self.P2 and self.fill_pos == self.P2):
                q_loads()
                if self.tq and self.fill_pos == P1:
                    A("s_mov_b64 exec, 1")
                    if self.tq & 1:
                        A(f"buffer_load_dword v66, v{vLin}, {srd(sWO)}, s{sWo1} offen nt")
                    if self.tq & 2:
                        A(f"buffer_load_dword v67, v{vLin}, {srd(sOUT)}, 0 offen nt")
                    if self.tq & 4:
                        A(f"global_load_dword v67, v{vLin}, s[68:69] nt")
                    A("s_mov_b64 exec, -1")
            if self.vt and self.fill_pos == self.vt:
                A(f"s_mov_b64 s[12+0:12+1], s[12:13]") if False else None
                A("s_mov_b64 exec, 1")
                A(f"v_mov_b32 v{vx0}, s{sBase}")
                A(f"global_load_dword v66, v{vx0}, {sp(sVB)} nt")
                A(f"v_mov_b32 v{vB}, s{sAoff}")
                A(f"global_load_dword v67, v{vB}, {sp(sVA)} nt")
                if self.vx:
                    A(f"s_lshl_b32 s{sT3}, s{sH}, 19")
                    A(f"v_mov_b32 v{vB}, 0")
                    A(f"buffer_load_dword v67, v{vB}, {srd(sWO)}, s{sT3} offen nt")
                    A(f"s_mov_b32 s{sT3}, {WS_C + 0xfff00}")
                    A(f"buffer_load_dword v67, v{vB}, {srd(sWS)}, s{sT3} offen nt")
                    A(f"buffer_load_dword v67, v{vB}, {srd(sOUT)}, 0 offen nt")
                A("s_mov_b64 exec, -1")
            issue_fill(True)
            if 17 <= self.fill_pos < 21:
                tail_constants(self.fill_pos - 17)
        if self.st:
            l = self.lab("nst")
            if self.st & 8:
                A(f"s_cmp_lg_u32 s{sW}, 2")
                A(f"s_cbranch_scc1 {l}")
            if self.st & 1:
                A(f"s_add_u32 s{sT3}, s{sBase}, 0x7f000")
                A(f"s_load_dword s100, {sp(sVB)}, s{sBase}")
                A(f"s_load_dword s100, {sp(sVB)}, s{sT3}")
                A(f"s_load_dword s100, {sp(sVA)}, s{sAoff}")
            if self.st & 4:
                A(f"s_lshl_b32 s{sT3}, s{sH}, 19")
                A(f"s_load_dword s100, {sp(sWO)}, s{sT3}")
                A(f"s_mov_b32 s{sT3}, {WS_C + 0xfff00}")
                A(f"s_load_dword s100, {sp(sWS)}, s{sT3}")
                A(f"s_load_dword s100, {sp(sOUT)}, 0")
                A(f"s_load_dword s100, s[68:69], 0")
            A(f"{l}:")
        claim()
        self.TS(3)
        lchk, lok = self.lab("qchk"), self.lab("qok")
        A(f"s_waitcnt vmcnt({8*R - max(P1, self.P2) + (bin(self.tq).count('1') if not self.P2 else 0)})")
        A(f"{lchk}:")
        A(f"v_xor_b32 v{vAl}, v{vQg+1}, v{vT}")
        for i in range(1, 8):
            A(f"v_xor_b32 v{vB}, v{vQg+2*i+1}, v{vT}")
            A(f"v_or_b32 v{vAl}, v{vAl}, v{vB}")
        A(f"v_cmp_ne_u32 vcc, 0, v{vAl}")
        A(f"s_cbranch_vccz {lok}")
        A(f"s_sub_u32 s{sSpin}, s{sSpin}, 1")
        A("s_cbranch_scc1 L_end")
        q_loads()
        A("s_waitcnt vmcnt(0)")
        A(f"s_branch {lchk}")
        A(f"{lok}:")
        for i in range(4):
            A(f"v_mov_b32 v{vQ2+i}, v{vQg+2*i}")
        for i in range(4):
            A(f"v_mov_b32 v{vQ+i}, v{vQg+8+2*i}")
        self.TS(4)

        vWO = slot(1, 0)

        def wo_loads():
            for i in range(8):
                A(f"buffer_load_dwordx4 {vr(vWO+4*i,4)}, v{vWoA}, {srd(sWO)}, s{(sWo1, sWo2)[i>>2]} offen offset:{(i&3)*1024} {self.wopol}")

        side = []

        def tile_ts():
            if self.ts:
                A("s_memrealtime s[96:97]")
                A(f"s_min_u32 s{sT1}, s{sJ}, {34 if self.ts == 1 else 20}")
                A(f"s_add_u32 m0, s{sT1}, 16")
                A("s_waitcnt lgkmcnt(0)")
                A(f"v_writelane_b32 v{vTS}, s96, m0")

        def type_check(p, sub, routine):
            l1, l2 = self.lab("sw"), self.lab("swr")
            if sub:
                A(f"s_sub_u32 s{sT1}, s{sSlot+p}, {sub}")
                src = sT1
            else:
                src = sSlot + p
            A(f"s_lshl_b32 s{sT2}, s{src}, 9")
            A(f"v_add_u32 v{vx0}, s{sT2}, v{vSl}")
            A(f"s_lshr_b32 s{sT1}, s{src}, 6")
            A(f"s_cmp_lg_u32 s{sT1}, s{sCur}")
            A(f"s_cbranch_scc1 {l1}")
            A(f"{l2}:")
            side.append([f"{l1}:", f"s_call_b64 {sp(sRet)}, {routine}", f"s_branch {l2}"])

        def decode(p):
            A(f"s_sub_u32 s{sT3}, s{sTk}, s{sSub}")
            A(f"s_sub_u32 s{sT1}, s{sT3}, s{sCA}")
            A(f"s_cselect_b32 s{sT2}, 0, 8")
            A(f"s_sub_u32 s{sT2}, s{sT3}, s{sT2}")
            A(f"s_cmp_lt_u32 s{sT1}, 8")
            A(f"s_cselect_b32 s{sT1}, s{sT1}, s{sT2}")
            A(f"s_cselect_b32 s{sT2}, s{sAoff}, s{sBase}")
            A(f"s_cselect_b32 s{sT3}, 64, 0")
            A(f"s_cselect_b64 {sp(sF)}, {sp(sFA)}, {sp(sFB)}")
            if ARS != BRS:
                A(f"s_cselect_b32 s{sOff}, {ARS}, {BRS}")
            A(f"s_add_u32 s{sT3}, s{sT3}, s{sSub}")
            A(f"s_add_u32 s{sSlot+p}, s{sT3}, s{sT1}")
            A(f"s_lshr_b32 s{sT3}, s{sT1}, 2")
            A(f"s_lshl_b32 s{sT3}, s{sT3}, {ARS if ARS == BRS else f's{sOff}'}")
            A(f"s_and_b32 s{sT1}, s{sT1}, 3")
            A(f"s_lshl_b32 s{sT1}, s{sT1}, 12")
            A(f"s_add_u32 s{sT2}, s{sT2}, s{sT3}")
            A(f"s_add_u32 s{sOff}, s{sT2}, s{sT1}")
            A(f"s_add_u32 s{sOff2}, s{sOff}, 16384")

        def issue(q, i, pace, pat):
            d = int(pat[i]) if (pat and pace == D) else pace
            A(f"s_waitcnt vmcnt({d-1})")
            if i == 7:
                claim()
            fetch(q, i)

        def kbody(p, q):
            def I(i):
                if q is not None:
                    issue(q, i, D, self.dk)
            for hf in range(2):
                I(4 * hf)
                for b in range(4):
                    A(f"v_mfma_f32_16x16x32_bf16 {vr(DD+4*b,4)}, {vr(slot(p,4*hf+b),4)}, {vr(vQ,4)}, 0")
                I(4 * hf + 1)
                A("s_nop 2" if q is not None else "s_nop 4")
                for b in range(4):
                    d, t = DD + 4 * b, vS + 4 * hf + b
                    A(f"v_mov_b32_dpp v{t}, v{d} quad_perm:[0,0,0,0] {DPPM}")
                    for k in range(1, 4):
                        A(f"v_add_f32_dpp v{t}, v{d+k}, v{t} quad_perm:[{k},{k},{k},{k}] {DPPM}")
                    if b == 0:
                        I(4 * hf + 2)
                    if b == 2:
                        I(4 * hf + 3)
                A(f"s_mov_b64 exec, {sp(sQm)}")
                A(f"ds_write_b128 v{vx0}, {vr(vS+4*hf,4)} offset:{L_S+256*hf}")
                A("s_mov_b64 exec, -1")

        def sread():
            A(f"ds_read_b128 {vr(DD,4)}, v{vx0} offset:{L_S}")
            A(f"ds_read_b128 {vr(DD+4,4)}, v{vx0} offset:{L_S+256}")

        def vbody(p, q, pace):
            def I(i):
                if q is not None:
                    issue(q, i, pace, self.dv)
            lw, lwb = self.lab("nr"), self.lab("nrb")
            I(0)
            A("s_waitcnt lgkmcnt(0)")
            A(f"{lwb}:")
            A(f"v_max3_f32 v{vA}, v{DD}, v{DD+1}, v{DD+2}")
            A(f"v_cmp_eq_u32 vcc, {SENT:#x}, v{DD+3}")
            A(f"v_max3_f32 v{vA}, v{vA}, v{DD+3}, v{DD+4}")
            A(f"s_cbranch_vccnz {lw}")
            A(f"v_cmp_eq_u32 vcc, {SENT:#x}, v{DD+7}")
            A(f"v_max3_f32 v{vA}, v{vA}, v{DD+5}, v{DD+6}")
            A(f"s_cbranch_vccnz {lw}")
            side.append([f"{lw}:", f"s_call_b64 {sp(sRet)}, L_reread", f"s_branch {lwb}"])
            A(f"v_max_f32 v{vA}, v{vA}, v{DD+7}")
            lr, lb = self.lab("rs"), self.lab("rsb")
            A(f"v_cmp_gt_f32 vcc, v{vA}, v{vM}")
            A(f"s_cbranch_vccnz {lr}")
            A(f"{lb}:")
            side.append([f"{lr}:", f"s_call_b64 {sp(sRet)}, L_resc", f"s_branch {lb}"])
            for hf in range(2):
                for b in range(4):
                    A(f"v_fma_f32 v{vt+b}, v{DD+4*hf+b}, s{sC}, -v{vMC}")
                if hf == 0:
                    I(1)
                for b in range(4):
                    A(f"v_exp_f32 v{vt+b}, v{vt+b}")
                if hf == 1:
                    I(5)
                for b in range(4):
                    A(f"v_cvt_pk_bf16_f32 v{vpd+b}, v{vt+b}, v{vt+b}")
                if hf == 0:
                    I(2)
                for b in range(4):
                    A(f"v_and_b32 v{vXY+2*b}, v{vpd+b}, v{vmX}")
                    A(f"v_and_b32 v{vXY+2*b+1}, v{vpd+b}, v{vmY}")
                A(f"v_add_f32 v{vA}, v{vt}, v{vt+1}")
                A(f"v_add_f32 v{vB}, v{vt+2}, v{vt+3}")
                I(3 if hf == 0 else 6)
                for b in range(4):
                    r = slot(p, 4 * hf + b)
                    A(f"v_mfma_f32_16x16x16_bf16 {vr(vO1,4)}, {vr(r,2)}, {vr(vXY+2*b,2)}, {vr(vO1,4)}")
                    A(f"v_mfma_f32_16x16x16_bf16 {vr(vO2,4)}, {vr(r+2,2)}, {vr(vXY+2*b,2)}, {vr(vO2,4)}")
                    if b == 0:
                        A(f"v_add_f32 v{vL}, v{vL}, v{vA}")
                    if b == 1:
                        A(f"v_add_f32 v{vL}, v{vL}, v{vB}")
                I(4 if hf == 0 else 7)

        for p in range(R - 2):
            tile_ts()
            type_check(p, 0, "L_swapq")
            A("s_nop 1")
            kbody(p, None)
            A(f"s_add_u32 s{sJ}, s{sJ}, 1")
        CYC = [(R - 2, R - 3), (R - 1, R - 2), (R - 3, R - 1)]
        A(".p2align 6")
        A("L_kloop:")
        self.pol = self.kpol
        for (p, q) in CYC:
            l1, l2 = self.lab("tov"), self.lab("tovr")
            tile_ts()
            A("s_waitcnt lgkmcnt(0)")
            A(f"v_readfirstlane_b32 s{sTk}, v{vTkV}")
            A(f"s_cmp_ge_u32 s{sSlot+p}, {NU}")
            A(f"s_cbranch_scc1 L_v0_{p}")
            type_check(p, 0, "L_swapq")
            A(f"s_cmp_ge_u32 s{sTk}, s{sSw}")
            A(f"s_cbranch_scc1 {l1}")
            A(f"{l2}:")
            side.append([f"{l1}:", f"s_call_b64 {sp(sRet)}, L_tov", f"s_branch {l2}"])
            decode(q)
            kbody(p, q)
            A(f"s_add_u32 s{sJ}, s{sJ}, 1")
        A("s_branch L_kloop")
        for (p, q) in CYC:
            A(f"L_v0_{p}:")
            A(f"s_mov_b32 s{sCur}, 0")
            A(f"s_branch L_vina{p}")
        for (ln, pace) in (("a", D), ("b", DF)):
            if ln == "b" and not self.fm:
                break
            A(f"L_vloop{ln}:")
            self.pol = self.vpol if ln == "a" else self.vapol
            for (p, q) in CYC:
                tile_ts()
                A("s_waitcnt lgkmcnt(0)")
                A(f"v_readfirstlane_b32 s{sTk}, v{vTkV}")
                A(f"L_vin{ln}{p}:")
                type_check(p, NU, "L_swap")
                sread()
                A(f"s_cmp_ge_u32 s{sTk}, {2*NU}")
                A(f"s_cbranch_scc1 L_fdrain{p}")
                decode(q)
                if self.fm and ln == "a":
                    A(f"s_cmp_ge_u32 s{sTk}, {2*NU-self.KF}")
                    A(f"s_cbranch_scc1 L_vgob{p}")
                A(f"L_vgo{ln}{p}:")
                vbody(p, q, pace)
                A(f"s_add_u32 s{sJ}, s{sJ}, 1")
            A(f"s_branch L_vloop{ln}")
        assert max(D, DF) <= 8
        for (p, q) in CYC:
            A(f"L_fdrain{p}:")
            A(f"s_mov_b32 s{sDrain}, 1")
            if self.wod:
                A(f"s_call_b64 {sp(sRet)}, L_wo")
            A(f"s_branch L_dgo{p}")
        A("L_dloop:")
        for (p, q) in CYC:
            tile_ts()
            A(f"s_sub_u32 s{sDrain}, s{sDrain}, 1")
            A("s_cbranch_scc1 L_exit")
            type_check(p, NU, "L_swap")
            sread()
            A("s_waitcnt vmcnt(8)" if self.wod else "s_waitcnt vmcnt(0)")
            A(f"L_dgo{p}:")
            vbody(p, None, None)
            A(f"s_add_u32 s{sJ}, s{sJ}, 1")
        A("s_branch L_dloop")

        for piece in side:
            for ln in piece:
                A(ln)

        A("L_tov:")
        A(f"s_mov_b64 {sp(sFB)}, {sp(sVB)}")
        A(f"s_mov_b64 {sp(sFA)}, {sp(sVA)}")
        A(f"s_mov_b32 s{sSub}, {NU}")
        A(f"s_mov_b32 s{sCA}, {self.CV}")
        A(f"s_mov_b32 s{sSw}, 0x7fffffff")
        A(f"v_mov_b32 v{vF}, v{vLin}")
        A(f"s_setpc_b64 {sp(sRet)}")

        if self.wod:
            A("L_wo:")
            wo_loads()
            A(f"s_setpc_b64 {sp(sRet)}")

        A("L_swapq:")
        A(f"s_xor_b32 s{sCur}, s{sCur}, 1")
        for i in range(4):
            A(f"v_swap_b32 v{vQ+i}, v{vQ2+i}")
        A(f"s_setpc_b64 {sp(sRet)}")

        A("L_swap:")
        A("s_nop 3")
        A(f"s_xor_b32 s{sCur}, s{sCur}, 1")
        for i in range(3):
            A(f"v_swap_b32 v{vM+i}, v{vAlt+8+i}")
        for i in range(8):
            A(f"v_swap_b32 v{vO1+i}, v{vAlt+i}")
        A(f"s_setpc_b64 {sp(sRet)}")

        A("L_reread:")
        A(f"s_sub_u32 s{sSpin}, s{sSpin}, 1")
        A("s_cbranch_scc1 L_end")
        sread()
        A("s_waitcnt lgkmcnt(0)")
        A(f"s_setpc_b64 {sp(sRet)}")

        A("L_resc:")
        A(f"v_max_f32 v{vA}, v{vA}, v{vM}")
        A(f"v_mov_b32 v{vB}, v{vA}")
        A("s_nop 1")
        A(f"v_permlane16_swap_b32 v{vA}, v{vB}")
        A(f"v_max_f32 v{vA}, v{vA}, v{vB}")
        A(f"v_mov_b32 v{vB}, v{vA}")
        A("s_nop 1")
        A(f"v_permlane32_swap_b32 v{vA}, v{vB}")
        A(f"v_max_f32 v{vM}, v{vA}, v{vB}")
        A(f"v_mul_f32 v{vA}, s{sC}, v{vM}")
        A(f"v_sub_f32 v{vAl}, v{vMC}, v{vA}")
        A(f"v_exp_f32 v{vAl}, v{vAl}")
        A(f"v_mov_b32 v{vMC}, v{vA}")
        for i in range(8):
            A(f"v_mul_f32 v{vO1+i}, v{vO1+i}, v{vAl}")
        A(f"v_mul_f32 v{vL}, v{vL}, v{vAl}")
        A(f"s_setpc_b64 {sp(sRet)}")

        A("L_exit:")
        self.TS(5)
        L2 = vAlt + 9
        A(f"v_mov_b32 v{vB}, v{vL}")
        A(f"v_mov_b32 v{vAl}, v{L2}")
        A(f"s_mul_i32 s{sT1}, s{sW}, {W_STR}")
        A(f"s_mul_i32 s{sT2}, s{sCur}, {NW*W_STR}")
        A(f"v_permlane16_swap_b32 v{vL}, v{vB}")
        A(f"v_permlane16_swap_b32 v{L2}, v{vAl}")
        A(f"s_add_u32 s{sT3}, s{sT1}, s{sT2}")
        A(f"v_add_f32 v{vL}, v{vL}, v{vB}")
        A(f"v_add_f32 v{L2}, v{L2}, v{vAl}")
        A(f"s_sub_u32 s{sT1}, s{sT1}, s{sT2}")
        A(f"v_mov_b32 v{vB}, v{vL}")
        A(f"v_mov_b32 v{vAl}, v{L2}")
        A(f"s_add_u32 s{sT1}, s{sT1}, {NW*W_STR}")
        A(f"v_add_u32 v{vA}, s{sT1}, v{vLin}")
        A(f"v_permlane32_swap_b32 v{vL}, v{vB}")
        A(f"v_permlane32_swap_b32 v{L2}, v{vAl}")
        A(f"v_add_u32 v{vx0}, s{sT3}, v{vLin}")
        A(f"ds_write_b128 v{vA}, {vr(vO1,4)} offset:{L_O}")
        A(f"ds_write_b128 v{vA}, {vr(vO2,4)} offset:{L_O+U_STR}")
        A(f"v_add_f32 v{vL}, v{vL}, v{vB}")
        A(f"v_add_f32 v{L2}, v{L2}, v{vAl}")
        A(f"s_lshl_b32 s{sT2}, s{sCur}, 7")
        A(f"ds_write_b128 v{vx0}, {vr(vAlt,4)} offset:{L_O}")
        A(f"ds_write_b128 v{vx0}, {vr(vAlt+4,4)} offset:{L_O+U_STR}")
        A(f"v_add_u32 v{vAl}, s{sT2}, v{vMlW}")
        A(f"v_subrev_u32 v{vA}, s{sT2}, v{vMlW}")
        A(f"v_add_u32 v{vA}, 128, v{vA}")
        A("s_mov_b64 exec, 0x1111")
        A(f"ds_write_b64 v{vA}, {vr(vM,2)} offset:{L_ML}")
        A(f"ds_write_b64 v{vAl}, {vr(vAlt+8,2)} offset:{L_ML}")
        A("s_mov_b64 exec, -1")
        if not self.wod:
            wo_loads()
        vG = slot(R - 2, 0)
        l = self.lab("nogate")
        A(f"s_lshl_b32 s{sT1}, s{sRed}, 3")
        A(f"s_or_b32 s{sT1}, s{sT1}, s{sW}")
        A(f"s_cmp_lg_u32 s{sT1}, 3")
        A(f"s_cbranch_scc1 {l}")
        A(f"s_lshl_b32 s{sT1}, s2, 7")
        A(f"s_and_b32 s{sT1}, s{sT1}, 1024")
        A(f"buffer_load_dwordx4 {vr(vG,4)}, v{vLin}, {srd(sX)}, s{sT1} offen")
        A(f"global_load_dwordx4 {vr(vG+4,4)}, v{vLin}, s[68:69]")
        A(f"{l}:")
        ml = RING
        od = RING + 8
        tb = vTb
        Mx, Ls = DD + 4, DD + 6
        res = DD + 8
        A("s_waitcnt lgkmcnt(0)")
        A("s_barrier")
        self.TS(6)
        for i in range(2):
            A(f"ds_read_b128 {vr(ml+4*i,4)}, v{vT1m} offset:{L_ML+16*i}")
        for w in range(NW):
            A(f"ds_read_b128 {vr(od+4*w,4)}, v{vT1o} offset:{L_O+W_STR*w}")
        A(f"v_mov_b32 v{DD+5}, v{vT}")
        A(f"v_mov_b32 v{DD+7}, v{vT}")
        A(f"v_lshlrev_b32 v{vx0}, 1, v{vLane}")
        A("s_waitcnt lgkmcnt(4)")
        A(f"v_max3_f32 v{Mx}, v{ml}, v{ml+2}, v{ml+4}")
        A(f"v_max_f32 v{Mx}, v{Mx}, v{ml+6}")
        A(f"v_mul_f32 v{vAl}, s{sC}, v{Mx}")
        for w in range(NW):
            A(f"v_fma_f32 v{ml+2*w}, v{ml+2*w}, s{sC}, -v{vAl}")
        for w in range(NW):
            A(f"v_exp_f32 v{ml+2*w}, v{ml+2*w}")
        A("s_waitcnt lgkmcnt(0)")
        for i in range(4):
            A(f"v_mul_f32 v{res+i}, v{ml}, v{od+i}")
        for w in range(1, NW):
            for i in range(4):
                A(f"v_fmac_f32 v{res+i}, v{ml+2*w}, v{od+4*w+i}")
        for i in range(4):
            A(f"v_and_or_b32 v{res+i}, v{res+i}, s{sMaskHi}, v{tb+i}")
        A(f"buffer_store_dwordx4 {vr(res,4)}, v{vLin}, {srd(sWS)}, s{sSt1} offen sc1")
        A(f"s_bitcmp1_b32 s{sW}, 0")
        A("s_cbranch_scc1 L_t2")
        A(f"v_mul_f32 v{Ls}, v{ml}, v{ml+1}")
        for w in range(1, NW):
            A(f"v_fmac_f32 v{Ls}, v{ml+2*w}, v{ml+2*w+1}")
        A("s_mov_b32 exec_lo, 0x01010101")
        A("s_mov_b32 exec_hi, 0x01010101")
        A(f"buffer_store_dwordx4 {vr(Mx,4)}, v{vx0}, {srd(sWS)}, s{sStM} offen sc1")
        A("s_mov_b64 exec, -1")
        A("L_t2:")
        self.TS(7)
        mk = vMk
        A(f"v_and_b32 v{vA}, 1, v{vLane}")
        A(f"v_lshlrev_b32 v{vA}, 4, v{vA}")
        A(f"v_mov_b32 v{vB}, 0xffff")
        A(f"v_lshlrev_b32 v{vB}, v{vA}, v{vB}")
        A(f"v_bfe_u32 v{vA}, v{vLane}, 1, 2")
        for j in range(4):
            A(f"v_cmp_eq_u32 vcc, {j}, v{vA}")
            A("s_nop 1")
            A(f"v_cndmask_b32 v{mk+j}, 0, v{vB}, vcc")

        def tagcheck(regs, extra):
            n = 0
            for r in regs:
                A(f"v_perm_b32 v{vD+n}, v{r+1}, v{r}, s{sSelx}")
                A(f"v_perm_b32 v{vD+n+1}, v{r+3}, v{r+2}, s{sSely}")
                A(f"v_or_b32 v{vD+n}, v{vD+n}, v{vD+n+1}")
                A(f"v_xor_b32 v{vD+n}, v{vD+n}, v{vT}")
                n += 1
            for r in extra:
                A(f"v_xor_b32 v{vD+n}, v{r}, v{vT}")
                n += 1
            for i in range(1, n):
                A(f"v_or_b32 v{vD}, v{vD}, v{vD+i}")
            A(f"v_cmp_ne_u32 vcc, 0, v{vD}")

        def poll(loads, check, delay, lane0=None):
            lp, lok = self.lab("poll"), self.lab("pok")
            if delay:
                A(f"s_sleep {delay}")
            if self.ts == 1 and lane0:
                A(f"s_mov_b32 s{sJ2}, {lane0}")
            A(f"{lp}:")
            if self.ts == 1 and lane0:
                A("s_memrealtime s[96:97]")
                A(f"s_min_u32 m0, s{sJ2}, {lane0+4}")
                A(f"s_add_u32 s{sJ2}, s{sJ2}, 1")
                A("s_waitcnt lgkmcnt(0)")
                A(f"v_writelane_b32 v{vTS}, s96, m0")
            loads()
            A("s_mov_b64 exec, -1")
            A(f"s_sub_u32 s{sSpin}, s{sSpin}, 1")
            A("s_cbranch_scc1 L_end")
            A("s_waitcnt vmcnt(0)")
            check()
            A(f"s_cbranch_vccz {lok}")
            A("s_mov_b64 exec, vcc")
            A(f"s_branch {lp}")
            A(f"{lok}:")

        def xreduce(regs, op, tmp):
            A("s_nop 1")
            for r in regs:
                A(f"{op}_dpp v{r}, v{r}, v{r} row_ror:8 {DPPM}")
            for sw in ("v_permlane16_swap_b32", "v_permlane32_swap_b32"):
                for i, r in enumerate(regs):
                    A(f"v_mov_b32 v{tmp+i}, v{r}")
                A("s_nop 1")
                for i, r in enumerate(regs):
                    A(f"{sw} v{r}, v{tmp+i}")
                for i, r in enumerate(regs):
                    A(f"{op} v{r}, v{r}, v{tmp+i}")

        A(f"s_bitcmp1_b32 s{sW}, 0")
        A("s_cbranch_scc0 L_t3")
        oa, obb, mla, mlb = RING, RING + 4, RING + 8, RING + 12
        A(f"s_lshr_b32 s{sT1}, s{sW}, 1")
        A(f"s_lshl_b32 s{sT1}, s{sT1}, 7")
        A(f"v_lshrrev_b32 v{vA}, 4, v{vLane}")
        A(f"v_lshlrev_b32 v{vA}, 5, v{vA}")
        A(f"v_and_b32 v{vB}, 7, v{vLane}")
        A(f"v_lshl_add_u32 v{vA}, v{vB}, 2, v{vA}")
        A(f"v_add_u32 v{vA}, s{sT1}, v{vA}")

        def h1loads():
            A(f"buffer_load_dwordx4 {vr(mla,4)}, v{vT2m}, {srd(sWS)}, s{sGM} offen sc1")
            A(f"buffer_load_dwordx4 {vr(mlb,4)}, v{vT2m}, {srd(sWS)}, s{sGM} offen offset:1024 sc1")
            A(f"buffer_load_dwordx4 {vr(oa,4)}, v{vT2o}, {srd(sWS)}, s{sG1} offen sc1")
            A(f"buffer_load_dwordx4 {vr(obb,4)}, v{vT2o}, {srd(sWS)}, s{sG2} offen sc1")
        poll(h1loads, lambda: tagcheck([oa, obb], [mla + 1, mla + 3, mlb + 1, mlb + 3]), self.d1, 51)
        self.TS(8)
        Mg = vD
        A(f"v_max_f32 v{Mg}, v{mla}, v{mlb}")
        xreduce([Mg], "v_max_f32", vD + 8)
        A(f"v_mul_f32 v{Mg}, s{sC}, v{Mg}")
        A(f"v_fma_f32 v{mla}, v{mla}, s{sC}, -v{Mg}")
        A(f"v_fma_f32 v{mlb}, v{mlb}, s{sC}, -v{Mg}")
        A(f"v_exp_f32 v{mla}, v{mla}")
        A(f"v_exp_f32 v{mlb}, v{mlb}")
        A("s_nop 0")
        Lr, o0 = vD + 1, vD + 2
        A(f"v_mul_f32 v{Lr}, v{mla}, v{mla+2}")
        for i in range(4):
            A(f"v_mul_f32 v{o0+i}, v{mla}, v{oa+i}")
        A(f"v_fmac_f32 v{Lr}, v{mlb}, v{mlb+2}")
        for i in range(4):
            A(f"v_fmac_f32 v{o0+i}, v{mlb}, v{obb+i}")
        A(f"v_mov_b32 v{vD+8}, v{Lr}")
        A("s_nop 0")
        A(f"v_permlane32_swap_b32 v{o0}, v{o0+2}")
        A(f"v_permlane32_swap_b32 v{o0+1}, v{o0+3}")
        A(f"v_permlane32_swap_b32 v{Lr}, v{vD+8}")
        A(f"v_add_f32 v{o0}, v{o0}, v{o0+2}")
        A(f"v_add_f32 v{o0+1}, v{o0+1}, v{o0+3}")
        A(f"v_add_f32 v{Lr}, v{Lr}, v{vD+8}")
        A(f"v_mov_b32 v{vD+8}, v{Lr}")
        A("s_nop 1")
        A(f"v_permlane16_swap_b32 v{Lr}, v{vD+8}")
        A(f"v_permlane16_swap_b32 v{o0}, v{o0+1}")
        A(f"v_add_f32 v{Lr}, v{Lr}, v{vD+8}")
        A(f"v_add_f32 v{o0}, v{o0}, v{o0+1}")
        A("s_nop 0")
        A(f"v_add_f32_dpp v{Lr}, v{Lr}, v{Lr} row_ror:8 {DPPM}")
        A(f"v_add_f32_dpp v{o0}, v{o0}, v{o0} row_ror:8 {DPPM}")
        A(f"v_rcp_f32 v{Lr}, v{Lr}")
        A("s_mov_b32 exec_lo, 0x00ff00ff")
        A("s_mov_b32 exec_hi, 0x00ff00ff")
        A(f"v_mul_f32 v{o0}, v{o0}, v{Lr}")
        A(f"v_cvt_pk_bf16_f32 v{o0}, v{o0}, v{o0}")
        A(f"ds_write_b32 v{vA}, v{o0} offset:{L_OF}")
        A("s_mov_b64 exec, -1")

        A("L_t3:")
        A("s_waitcnt vmcnt(0) lgkmcnt(0)")
        A("s_barrier")
        ob = RING
        bo = slot(2, 0)
        A(f"ds_read_b128 {vr(ob,4)}, v{vOfR} offset:{L_OF}")
        A(f"ds_read_b128 {vr(ob+4,4)}, v{vOfR} offset:{L_OF+16}")
        for i in range(8):
            if i == 0:
                A("s_waitcnt lgkmcnt(1)")
            if i == 4:
                A("s_waitcnt lgkmcnt(0)")
            for j in range(4):
                A(f"v_and_b32 v{bo+4*i+j}, v{ob+i}, v{mk+j}")
            if i > 0:
                c = "0" if i == 1 else vr(res, 4)
                A(f"v_mfma_f32_16x16x32_bf16 {vr(res,4)}, {vr(vWO+4*(i-1),4)}, {vr(bo+4*(i-1),4)}, {c}")
        A("s_nop 0")
        A(f"v_mfma_f32_16x16x32_bf16 {vr(res,4)}, {vr(vWO+28,4)}, {vr(bo+28,4)}, {vr(res,4)}")
        A("s_nop 7")
        for i in range(4):
            A(f"v_and_or_b32 v{res+i}, v{res+i}, s{sMaskHi}, v{tb+i}")
        A(f"buffer_store_dwordx4 {vr(res,4)}, v{vLin}, {srd(sWS)}, s{sSt2} offen sc1")
        self.TS(9)

        LC = self.LC
        lg = LC.bit_length() - 1
        if self.ts:
            la = self.lab("ack")
            A(f"s_cmp_eq_u32 s{sRed}, 0")
            A(f"s_cbranch_scc1 {la}")
            A("s_waitcnt vmcnt(0)")
            self.TS(61)
            A(f"{la}:")
        A(f"s_cmp_lg_u32 s{sRed}, 0")
        A("s_cbranch_scc1 L_fin")
        ca = RING
        A(f"s_lshr_b32 s{sT1}, s2, 3")
        A(f"s_lshl_b32 s{sT2}, s{sT1}, 7")
        A(f"s_lshl_b32 s{sT3}, s{sW}, 18")
        A(f"s_add_u32 s{sT2}, s{sT2}, s{sT3}")
        A(f"s_and_b32 s{sIdx}, s2, {8-LC}")
        A(f"s_lshl_b32 s{sT3}, s{sIdx}, 4")
        A(f"s_add_u32 s{sT2}, s{sT2}, s{sT3}")
        A(f"s_add_u32 s{sT2}, s{sT2}, {WS_C}")
        A(f"v_and_b32 v{vB}, {LC-1}, v{vLane}")
        for k in range(LC):
            A(f"s_add_u32 s{12+k}, s{sT2}, {k*(64//LC)*4096}")
        l = self.lab("nog2")
        A(f"s_cmp_lg_u32 s{sW}, 3")
        A(f"s_cbranch_scc1 {l}")
        g0 = slot(4, 0)
        for j in range(4):
            A(f"v_lshlrev_b32 v{g0+4*j}, 16, v{vG+j}")
            A(f"v_and_b32 v{g0+4*j+1}, 0xffff0000, v{vG+j}")
            A(f"v_lshlrev_b32 v{g0+4*j+2}, 16, v{vG+4+j}")
            A(f"v_and_b32 v{g0+4*j+3}, 0xffff0000, v{vG+4+j}")
        for j in range(4):
            A(f"v_mul_f32 v{g0+4*j}, v{g0+4*j}, v{g0+4*j+2}")
            A(f"v_mul_f32 v{g0+4*j+1}, v{g0+4*j+1}, v{g0+4*j+3}")
        for j in range(4):
            A(f"v_cvt_pk_bf16_f32 v{g0+4*j}, v{g0+4*j}, v{g0+4*j+1}")
        for j in range(4):
            A(f"v_and_b32 v{g0+4*j+1}, 0xffff0000, v{g0+4*j}")
            A(f"v_lshlrev_b32 v{g0+4*j}, 16, v{g0+4*j}")
        for j in range(4):
            A(f"v_add_f32 v{g0+4*j}, v{g0+4*j}, v{g0+4*j+1}")
        A(f"v_add_f32 v{g0}, v{g0}, v{g0+4}")
        A(f"v_add_f32 v{g0+8}, v{g0+8}, v{g0+12}")
        A(f"v_add_f32 v{g0}, v{g0}, v{g0+8}")
        for ror in (1, 2, 4):
            A("s_nop 1")
            A(f"v_add_f32_dpp v{g0}, v{g0}, v{g0} row_ror:{ror} {DPPM}")
        xreduce([g0], "v_add_f32", g0 + 1)
        A(f"v_cvt_pk_bf16_f32 v{g0}, v{g0}, v{g0}")
        A(f"v_and_b32 v{g0}, 0xffff0000, v{g0}")
        A(f"v_mul_f32 v{g0}, {f2u(-1.4426950408889634):#x}, v{g0}")
        A(f"v_exp_f32 v{g0}, v{g0}")
        A("s_nop 0")
        A(f"v_add_f32 v{g0}, 1.0, v{g0}")
        A(f"v_rcp_f32 v{g0}, v{g0}")
        A("s_nop 0")
        A(f"v_cvt_pk_bf16_f32 v{g0}, v{g0}, v{g0}")
        A(f"v_and_b32 v{g0}, 0xffff0000, v{g0}")
        A(f"v_mov_b32 v{g0+1}, {L_G}")
        A("s_mov_b64 exec, 1")
        A(f"ds_write_b32 v{g0+1}, v{g0}")
        A("s_mov_b64 exec, -1")
        A(f"{l}:")

        def h2loads():
            for k in range(LC):
                A(f"buffer_load_dwordx4 {vr(ca+4*k,4)}, v{vH2}, {srd(sWS)}, s{12+k} offen sc1")
        poll(h2loads, lambda: tagcheck([ca + 4 * k for k in range(LC)], []), self.d2, 56)
        self.TS(10)
        st = 2 * LC
        while st >= 4:
            for i in range(st):
                A(f"v_add_f32 v{ca+i}, v{ca+i}, v{ca+st+i}")
            st //= 2
        A("s_nop 1")
        A(f"v_permlane32_swap_b32 v{ca}, v{ca+2}")
        A(f"v_permlane32_swap_b32 v{ca+1}, v{ca+3}")
        A(f"v_add_f32 v{ca}, v{ca}, v{ca+2}")
        A(f"v_add_f32 v{ca+1}, v{ca+1}, v{ca+3}")
        A("s_nop 1")
        A(f"v_permlane16_swap_b32 v{ca}, v{ca+1}")
        A(f"v_add_f32 v{ca}, v{ca}, v{ca+1}")
        A(f"v_lshrrev_b32 v{vA}, 4, v{vLane}")
        A(f"v_lshlrev_b32 v{vA}, 5, v{vA}")
        A(f"v_add_f32_dpp v{ca}, v{ca}, v{ca} row_ror:8 {DPPM}")
        A(f"v_lshl_add_u32 v{vA}, v{vB}, 2, v{vA}")
        A(f"s_lshl_b32 s{sT2}, s{sW}, 7")
        ror = 4
        while ror >= LC:
            A(f"v_add_f32_dpp v{ca}, v{ca}, v{ca} row_ror:{ror} {DPPM}")
            A("s_nop 1")
            ror //= 2
        A(f"v_add_u32 v{vA}, s{sT2}, v{vA}")
        m16 = (1 << LC) - 1
        A(f"s_mov_b32 exec_lo, {m16 | (m16 << 16):#x}")
        A(f"s_mov_b32 exec_hi, {m16 | (m16 << 16):#x}")
        A(f"ds_write_b32 v{vA}, v{ca} offset:{L_R}")
        A("s_mov_b64 exec, -1")
        A(f"v_and_b32 v{vB}, 31, v{vLane}")
        A(f"v_lshlrev_b32 v{vA}, 2, v{vB}")
        A(f"v_add_u32 v{vAl}, {L_R}, v{vA}")
        A(f"v_mov_b32 v{vD}, {L_G}")
        A(f"s_lshr_b32 s{sT2}, s{sT1}, 1")
        A(f"s_lshl_b32 s{sT2}, s{sT2}, 6")
        A(f"s_and_b32 s{sT3}, s{sT1}, 1")
        A(f"s_lshl_b32 s{sT3}, s{sT3}, 10")
        A(f"s_add_u32 s{sT2}, s{sT2}, s{sT3}")
        A(f"s_lshl_b32 s{sT3}, s{sIdx}, 1")
        A(f"s_add_u32 s{sT2}, s{sT2}, s{sT3}")
        A(f"v_lshlrev_b32 v{vA}, 1, v{vB}")
        A("s_waitcnt lgkmcnt(0)")
        A("s_barrier")
        A(f"s_cmp_lg_u32 s{sW}, 0")
        A("s_cbranch_scc1 L_fin")
        fa = RING
        for w in range(2):
            A(f"ds_read2_b32 {vr(fa+2*w,2)}, v{vAl} offset0:{w*32} offset1:{w*32+64}")
        A(f"ds_read_b32 v{vD}, v{vD}")
        A("s_waitcnt lgkmcnt(0)")
        A(f"v_add_f32 v{fa}, v{fa}, v{fa+2}")
        A(f"v_add_f32 v{fa+1}, v{fa+1}, v{fa+3}")
        A(f"v_sub_f32 v{vD+1}, 1.0, v{vD}")
        A(f"v_cvt_pk_bf16_f32 v{fa}, v{fa}, v{fa+1}")
        A(f"v_cvt_pk_bf16_f32 v{vD+1}, v{vD+1}, v{vD+1}")
        A(f"v_and_b32 v{fa+1}, 0xffff0000, v{fa}")
        A(f"v_lshlrev_b32 v{fa}, 16, v{fa}")
        A(f"v_and_b32 v{vD+1}, 0xffff0000, v{vD+1}")
        A(f"v_mul_f32 v{fa}, v{fa}, v{vD}")
        A(f"v_mul_f32 v{fa+1}, v{fa+1}, v{vD+1}")
        A(f"v_cvt_pk_bf16_f32 v{fa}, v{fa}, v{fa+1}")
        A(f"v_and_b32 v{fa+1}, 0xffff0000, v{fa}")
        A(f"v_lshlrev_b32 v{fa}, 16, v{fa}")
        A(f"v_add_f32 v{fa}, v{fa}, v{fa+1}")
        A(f"v_cvt_pk_bf16_f32 v{fa}, v{fa}, v{fa}")
        A("s_mov_b32 exec_hi, 0")
        A(f"s_mov_b32 exec_lo, {m16 * 0x01010101:#x}")
        A(f"buffer_store_short v{fa}, v{vA}, {srd(sOUT)}, s{sT2} offen {self.op}")
        A("s_cmp_lg_u32 s2, 0")
        A("s_cbranch_scc1 L_fin")
        A("s_mov_b64 exec, 1")
        A(f"v_mov_b32 v{vA}, {WS_EPOCH}")
        A(f"buffer_store_dword v{vT}, v{vA}, {srd(sWS)}, 0 offen sc1")
        A("L_fin:")
        if self.ts:
            A("s_mov_b64 exec, -1")
            self.TS(11)
            A(f"v_writelane_b32 v{vTS}, s{sJ}, 12")
            A("s_getreg_b32 s96, hwreg(HW_REG_XCC_ID)")
            A("s_nop 0")
            A(f"v_writelane_b32 v{vTS}, s96, 13")
            A(f"s_sub_u32 s96, {self.spin}, s{sSpin}")
            A(f"v_writelane_b32 v{vTS}, s96, 14")
            A(f"s_lshl_b32 s{sT1}, s2, 2")
            A(f"s_add_u32 s{sT1}, s{sT1}, s{sW}")
            A(f"s_lshl_b32 s{sT1}, s{sT1}, 8")
            A(f"s_add_u32 s{sT1}, s{sT1}, {WS_TS}")
            A(f"v_lshlrev_b32 v{vA}, 2, v{vLane}")
            A(f"buffer_store_dword v{vTS}, v{vA}, {srd(sWS)}, s{sT1} offen")
        A("L_end:")
        A("s_endpgm")
        body_txt = "\n".join(self.L)
        out = HDR + f"; @launch grid=(256,1,1) block=({64*NW},1,1) lds={LDS_BYTES}\n"
        out += '.amdgcn_target "amdgcn-amd-amdhsa--gfx950"\n.text\n'
        out += f".globl {name}\n.p2align 8\n.type {name},@function\n" + body_txt + "\n"
        out += f""".section .rodata,"a"
.p2align 6
.amdhsa_kernel {name}
  .amdhsa_next_free_vgpr 264
  .amdhsa_next_free_sgpr 102
  .amdhsa_accum_offset 256
  .amdhsa_group_segment_fixed_size 0
  .amdhsa_kernarg_size 112
  .amdhsa_user_sgpr_count 2
  .amdhsa_user_sgpr_kernarg_segment_ptr 1
  .amdhsa_system_sgpr_workgroup_id_x 1
.end_amdhsa_kernel
"""
        return out


if __name__ == "__main__":
    out = sys.argv[1]
    kw = {}
    for a in sys.argv[2:]:
        k, v = a.split("=")
        assert k in DEFAULTS, k
        kw[k] = type(DEFAULTS[k])(v.replace("+", " "))
    open(out, "w").write(Gen(**kw).gen())
    print("lds", LDS_BYTES)
```
